```python
import torch

def _softmax(x, axis=-1):
    return torch.softmax(x, dim=axis)
def _gelu(x):
    return torch.nn.functional.gelu(x, approximate="tanh")
def _silu(x):
    return torch.nn.functional.silu(x)
def _sigmoid(x):
    return torch.sigmoid(x)
def _layernorm(x, axis=-1, eps=1e-5):
    m = x.mean(dim=axis, keepdim=True)
    v = x.var(dim=axis, keepdim=True, unbiased=False)
    return (x - m) / torch.sqrt(v + eps)
def _scatter_add(tgt, idx, src, axis=0):
    return tgt.clone().index_add_(axis, idx, src)
def _segment_sum(src, seg, n):
    out = torch.zeros((n,) + src.shape[1:], dtype=src.dtype)
    return out.index_add_(0, seg, src)
def _pad(x, pw):
    flat = tuple(v for pair in reversed(pw) for v in pair)
    return torch.nn.functional.pad(x, flat)

kernel_name = 'gated_mix__ssm_conv_s4__linear_attn_block__prompt'

def setup_inputs():

    _w = (lambda a: (lambda t: t.to(torch.bfloat16) if t.is_floating_point() else t)(torch.as_tensor(a)))
    def _A_setup():
        B, L, D, N = 1, 2048, 640, 128
        A_re = -(lambda _x: torch.exp(torch.as_tensor(_x)))((lambda *s: torch.randn(*s, dtype=torch.bfloat16) * 3.2)(D, N))
        A_im = torch.pi * (lambda *s: torch.randn(*s, dtype=torch.bfloat16) * 0.05)(D, N)
        B_re = (lambda *s: torch.randn(*s, dtype=torch.bfloat16) * 0.2)(D, N)
        B_im = (lambda *s: torch.randn(*s, dtype=torch.bfloat16) * 0.2)(D, N)
        C_re = (lambda *s: torch.randn(*s, dtype=torch.bfloat16) * 0.2)(D, N)
        C_im = (lambda *s: torch.randn(*s, dtype=torch.bfloat16) * 0.2)(D, N)
        log_dt = (lambda *s: torch.randn(*s, dtype=torch.bfloat16) * 0.05)(D) * 0.5 - 4.0
        Dskip = (lambda *s: torch.randn(*s, dtype=torch.bfloat16) * 0.05)(D)
        return {
            "u": _w((lambda *s: torch.randn(*s, dtype=torch.bfloat16) * 0.05)(B, L, D)),
            "A_re": _w(A_re),
            "A_im": _w(A_im),
            "B_re": _w(B_re),
            "B_im": _w(B_im),
            "C_re": _w(C_re),
            "C_im": _w(C_im),
            "log_dt": _w(log_dt),
            "Dskip": _w(Dskip),
        }
    _A_in = _A_setup()

    def _B_setup():
        B, S, D = 1, 2048, 640
        return {
            "x": _w((lambda *s: torch.randn(*s, dtype=torch.bfloat16) * 0.05)(B, S, D)),
            "wqkv": _w((lambda *s: torch.randn(*s, dtype=torch.bfloat16) * 0.8)(D, 3 * D)),
            "wo": _w((lambda *s: torch.randn(*s, dtype=torch.bfloat16) * 0.05)(D, D)),
        }
    _B_in = _B_setup()

    return {
        "A_u": _A_in["u"],
        "A_A_re": _A_in["A_re"],
        "A_A_im": _A_in["A_im"],
        "A_B_re": _A_in["B_re"],
        "A_B_im": _A_in["B_im"],
        "A_C_re": _A_in["C_re"],
        "A_C_im": _A_in["C_im"],
        "A_log_dt": _A_in["log_dt"],
        "A_Dskip": _A_in["Dskip"],
        "B_x": _B_in["x"],
        "B_wqkv": _B_in["wqkv"],
        "B_wo": _B_in["wo"],
        "gate_w": _w((lambda *s: torch.randn(*s, dtype=torch.bfloat16) * 0.05)(640) * 16.0),
    }

def reference(A_u, A_A_re, A_A_im, A_B_re, A_B_im, A_C_re, A_C_im, A_log_dt, A_Dskip, B_x, B_wqkv, B_wo, gate_w):
    def _A_ref(u, A_re, A_im, B_re, B_im, C_re, C_im, log_dt, Dskip):
        Bsz, L, D = u.shape
        dt = torch.exp(log_dt)[:, None]
        A = A_re + 1j * A_im
        Bc = B_re + 1j * B_im
        Cc = C_re + 1j * C_im
        logdA = dt * A
        dB = dt * Bc
        l = (lambda x, dt: x.to(dt))(torch.arange(L), A_re.dtype)
        P = torch.exp(logdA[:, :, None] * l[None, None, :])
        K = torch.einsum("dn,dnl,dn->dl", Cc, P, dB).real
        L2 = 2 * L
        Kp = _pad(K, ((0, 0), (0, L)))
        up = (lambda x, *d: x.permute(*d))(u, 0, 2, 1)
        up = _pad(up, ((0, 0), (0, 0), (0, L)))
        Kf = (lambda x, axes=(-2,-1): torch.fft.rfft2(x.float(), dim=axes))(Kp[:, None, :], axes=(-2, -1))
        Uf = (lambda x, axes=(-2,-1): torch.fft.rfft2(x.float(), dim=axes))(up[:, :, None, :], axes=(-2, -1))
        Yf = Uf * Kf[None, :, :, :]
        y = (lambda x, s, axes=(-2,-1): torch.fft.irfft2(x, s=s, dim=axes).to(torch.bfloat16))(Yf, (1, L2), axes=(-2, -1))[:, :, 0, :L]
        y = (lambda x, *d: x.permute(*d))(y, 0, 2, 1) + u * Dskip[None, None, :]
        return y

    def _B_ref(x, wqkv, wo):
        B, S, D = x.shape
        H = 32; Dh = D // H
        qkv = (lambda x, *d: x.permute(*d))((x @ wqkv).reshape(B, S, 3, H, Dh), 2, 0, 3, 1, 4)
        q, k, v = qkv[0], qkv[1], qkv[2]
        phi = lambda t: torch.where(t > 0, t + 1, torch.exp(t)) + 1e-6
        pq, pk = phi(q), phi(k)
        kv = torch.einsum("bhsd,bhse->bhde", pk, v)
        z = torch.einsum("bhsd->bhd", pk)
        num = torch.einsum("bhqd,bhde->bhqe", pq, kv)
        den = torch.einsum("bhqd,bhd->bhq", pq, z)[..., None] + 1e-6
        o = num / den
        return (lambda x, *d: x.permute(*d))(o, 0, 2, 1, 3).reshape(B, S, D) @ wo

    x = A_u
    g = _sigmoid((x * gate_w).sum(-1, keepdims=True))
    a = _A_ref(x, A_A_re, A_A_im, A_B_re, A_B_im, A_C_re, A_C_im, A_log_dt, A_Dskip)
    b = _B_ref(x, B_wqkv, B_wo)
    return g * a + (1 - g) * b
```

```python
import re

TRANS = ("v_exp_f32", "v_log_f32", "v_rcp_f32", "v_rsq_f32", "v_sqrt_f32", "v_sin_f32", "v_cos_f32", "v_rcp_iflag_f32")

_reg_re = re.compile(r"(?<![\w.])(v|s|a)(?:(\d+)|\[(\d+):(\d+)\])(?![\w])")

def regs_in(op):
    out = []
    for m in _reg_re.finditer(op):
        k = m.group(1)
        if m.group(2) is not None:
            out.append((k, int(m.group(2))))
        else:
            for i in range(int(m.group(3)), int(m.group(4)) + 1):
                out.append((k, i))
    if re.search(r"\bvcc\b", op):
        out.append(("s", 106)); out.append(("s", 107))
    if re.search(r"\bm0\b", op):
        out.append(("m", 0))
    return out

def split_ops(s):
    ops = []; depth = 0; cur = ""
    for ch in s:
        if ch == "[": depth += 1
        if ch == "]": depth -= 1
        if ch == "," and depth == 0:
            ops.append(cur.strip()); cur = ""
        else:
            cur += ch
    if cur.strip(): ops.append(cur.strip())
    return ops

class Ins:
    __slots__ = ("mn", "cls", "dst", "src", "srcA", "srcB", "srcC", "passes", "states", "text", "dpp", "wide_store")

def classify(text):
    t = text.split(";")[0].strip()
    parts = t.split(None, 1)
    mn = parts[0]
    rest = parts[1] if len(parts) > 1 else ""
    ops = split_ops(rest)
    I = Ins(); I.mn = mn; I.text = text; I.dst = []; I.src = []; I.srcA = []; I.srcB = []; I.srcC = []
    I.passes = 0; I.states = 1; I.dpp = False; I.wide_store = False
    if mn == "s_nop":
        I.cls = "nop"; I.states = int(ops[0], 0) + 1; return I
    if mn.startswith("v_mfma"):
        I.cls = "mfma"
        I.dst = regs_in(ops[0]); I.srcA = regs_in(ops[1]); I.srcB = regs_in(ops[2]); I.srcC = regs_in(ops[3].split()[0])
        I.src = I.srcA + I.srcB + I.srcC
        I.passes = 8 if "32x32x16" in mn else 4
        return I
    if mn.startswith("v_"):
        I.cls = "trans" if mn.split("_e")[0] in TRANS or mn in TRANS else "valu"
        I.dpp = ("dpp" in mn) or ("row_" in rest) or ("quad_perm" in rest)
        nd = 1
        if mn.startswith("v_cmp"):
            nd = 1
        if mn.startswith(("v_add_co", "v_sub_co", "v_addc_co", "v_subb_co", "v_div_scale", "v_mad_u64")):
            nd = 2
        if mn.startswith(("v_permlane16_swap", "v_permlane32_swap", "v_swap")):
            I.dst = regs_in(ops[0]) + regs_in(ops[1]); I.src = list(I.dst); return I
        for o in ops[:nd]: I.dst += regs_in(o)
        for o in ops[nd:]: I.src += regs_in(o.split(" ")[0])
        if mn.startswith(("v_fmac", "v_dot2c", "v_pk_fmac")): I.src += I.dst
        if mn.startswith("v_cndmask") and len(ops) == 3: I.src += [("s", 106), ("s", 107)]
        if mn.startswith("v_writelane"): I.src += I.dst
        return I
    if mn.startswith("ds_"):
        I.cls = "ds"
        if mn.startswith(("ds_read", "ds_bpermute", "ds_permute", "ds_swizzle")) or "_rtn" in mn:
            I.dst = regs_in(ops[0])
            for o in ops[1:]: I.src += regs_in(o.split(" ")[0])
            if "d16" in mn: I.src += I.dst
        else:
            for o in ops: I.src += regs_in(o.split(" ")[0])
        return I
    if mn.startswith(("buffer_", "global_", "flat_")):
        I.cls = "vmem"
        islds = re.search(r"\blds\b", rest) is not None or "load_lds" in mn
        if "load" in mn and not islds:
            I.dst = regs_in(ops[0])
            for o in ops[1:]: I.src += regs_in(o.split(" ")[0])
        elif "atomic" in mn and "sc0" in rest:
            if mn.startswith("buffer_"):
                I.dst = regs_in(ops[0])
                for o in ops: I.src += regs_in(o.split(" ")[0])
            else:
                I.dst = regs_in(ops[0])
                for o in ops[1:]: I.src += regs_in(o.split(" ")[0])
        else:
            for o in ops: I.src += regs_in(o.split(" ")[0])
            if islds: I.src.append(("m", 0))
            if "store" in mn and (mn.endswith("x4") or mn.endswith("x3")):
                I.wide_store = True
                d = ops[0] if mn.startswith("buffer_") else ops[1]
                I.srcA = regs_in(d)
        return I
    if mn.startswith("s_"):
        I.cls = "salu"
        if mn.startswith(("s_cmp", "s_cbranch", "s_branch", "s_waitcnt", "s_barrier", "s_endpgm", "s_setprio", "s_sleep", "s_bitcmp")):
            for o in ops: I.src += regs_in(o)
        else:
            if ops: I.dst = regs_in(ops[0])
            for o in ops[1:]: I.src += regs_in(o.split(" ")[0])
        return I
    raise ValueError("unknown instr " + text)

def need(P, C):
    n = 0
    pd = set(P.dst)
    isv = lambda c: c in ("valu", "trans")
    if isv(P.cls):
        vd = {r for r in pd if r[0] in "va"}
        sd = {r for r in pd if r[0] == "s"}
        if C.cls == "mfma" and vd & set(C.src): n = max(n, 2)
        if P.cls == "trans" and C.cls in ("valu", "mfma") and vd & set(C.src + C.dst): n = max(n, 1)
        if isv(C.cls):
            if sd & set(C.src):
                n = max(n, 4 if C.mn.startswith(("v_readlane", "v_writelane", "v_div_fmas")) else 2)
            if vd & set(C.src):
                if C.mn.startswith(("v_readlane", "v_readfirstlane")): n = max(n, 1)
                if C.dpp or C.mn.startswith("v_permlane"): n = max(n, 2)
                if "sdwa" in P.mn or "op_sel" in P.text and not P.mn.startswith("v_pk"): n = max(n, 1)
        if C.cls == "vmem" and sd & set(C.src): n = max(n, 5)
        if C.cls == "salu" and sd & set(C.src): n = max(n, 1)
    if P.cls == "mfma":
        p4 = P.passes == 4
        if C.cls == "mfma":
            if pd & set(C.srcC):
                if C.srcC == P.dst and C.passes == P.passes: pass
                else: n = max(n, 6 if p4 else 10)
            if pd & set(C.srcA + C.srcB): n = max(n, 8 if p4 else 12)
            if pd & set(C.dst) and not (C.srcC == P.dst and C.passes == P.passes): n = max(n, 6 if p4 else 10)
        elif C.cls in ("valu", "trans", "ds", "vmem"):
            if pd & set(C.src + C.dst): n = max(n, 8 if p4 else 12)
        if isv(C.cls) and set(P.srcC) & set(C.dst): n = max(n, 3 if p4 else 7)
    if P.wide_store and set(P.srcA) & set(C.dst):
        n = max(n, 2 if isv(C.cls) else 1)
    if P.cls == "salu" and ("m", 0) in pd and ("m", 0) in C.src: n = max(n, 1)
    return n

class Asm:
    def __init__(self):
        self.lines = []
        self.hist = []
        self.nlabel = 0
    def raw(self, s):
        self.lines.append(s)
    def comment(self, s):
        self.lines.append("  ; " + s)
    def __call__(self, text):
        for ln in text.strip().split("\n"):
            ln = ln.strip()
            if not ln or ln.startswith(";"):
                continue
            self.emit(ln)
    def emit(self, text):
        I = classify(text)
        dist = 0; req = 0
        for P in reversed(self.hist):
            r = need(P, I) - dist
            if r > req: req = r
            dist += P.states
            if dist > 24: break
        while req > 0:
            k = min(req, 16)
            N = classify(f"s_nop {k-1}")
            self.lines.append(f"  s_nop {k-1}")
            self.hist.append(N)
            req -= k
        self.lines.append("  " + text)
        self.hist.append(I)
        if len(self.hist) > 64: self.hist = self.hist[-40:]
    def label(self, name, pad=0):
        self.lines.append(name + ":")
    def fence(self, n=12):
        dist = 0; req = 0
        for P in reversed(self.hist):
            w = 0
            if P.cls == "mfma": w = 8 if P.passes == 4 else 12
            elif P.cls in ("valu", "trans"):
                w = 5 if any(r[0] == "s" for r in P.dst) else 2
            elif P.wide_store: w = 2
            elif P.cls == "salu" and ("m", 0) in P.dst: w = 1
            if w - dist > req: req = w - dist
            dist += P.states
            if dist > 24: break
        if req > 0:
            self.emit(f"s_nop {req-1}")
    def newlabel(self, p="L"):
        self.nlabel += 1
        return f"{p}_{self.nlabel}"
    def text(self):
        return "\n".join(self.lines) + "\n"

def kernel_header(name):
    return f""".globl {name}
.p2align 8
.type {name},@function
{name}:
"""

def kernel_desc(name, vgpr, sgpr=96, agpr=0):
    acc = (vgpr + 3) // 4 * 4
    return f""".p2align 6
.amdhsa_kernel {name}
  .amdhsa_next_free_vgpr {acc + agpr if agpr else vgpr}
  .amdhsa_next_free_sgpr {sgpr}
  .amdhsa_accum_offset {acc}
  .amdhsa_group_segment_fixed_size 0
  .amdhsa_kernarg_size 128
  .amdhsa_user_sgpr_count 2
  .amdhsa_user_sgpr_kernarg_segment_ptr 1
  .amdhsa_system_sgpr_workgroup_id_x 1
.end_amdhsa_kernel
"""
```

```python
import numpy as np
from asmlib import *
from s4 import Regs, v, f2u
from s4b import WS_AT, WS_G, WS_KV, WS_STAMP

WS_PQF = 0x800000
KVZ = 0
WO = 26896
FINAL_LDS = WO + 25600

PAIR = [(0, 0), (0, 1), (0, 3), (0, 4), (0, 2), (1, 2), (1, 0), (1, 1), (1, 3), (1, 4)]

def gen_final(A, rb="s3", cb="s4", sc="", wait=None, stamp_task=None, tid_ready=True):
    stamps = []
    def stamp():
        if stamp_task is None: return
        k = len(stamps); stamps.append(k)
        A(f"s_memtime s[{64+2*k}:{65+2*k}]")
    R = Regs(1, 256)
    A(f"""
    s_load_dwordx2 s[12:13], s[0:1], 88
    s_load_dwordx2 s[16:17], s[0:1], 104
    s_load_dwordx4 s[48:51], s[0:1], 112
    """)
    stamp()
    lane = R.alloc(); vi = R.alloc(); vq = R.alloc(); t1 = R.alloc(); t2 = R.alloc(); t3 = R.alloc()
    A(f"v_and_b32 {v(lane)}, 63, v0")
    A(f"v_lshrrev_b32 {v(t1)}, 6, v0")
    A(f"v_readfirstlane_b32 s28, {v(t1)}")
    A(f"v_and_b32 {v(vi)}, 15, {v(lane)}")
    A(f"v_lshrrev_b32 {v(vq)}, 4, {v(lane)}")
    vDW = R.alloc()
    A(f"v_mul_u32_u24 {v(t1)}, 6554, {v(lane)}")
    A(f"v_lshrrev_b32 {v(t1)}, 16, {v(t1)}")
    A(f"v_mul_u32_u24 {v(t2)}, 10, {v(t1)}")
    A(f"v_sub_u32 {v(t2)}, {v(lane)}, {v(t2)}")
    A(f"s_mul_i32 s29, s28, 5")
    A(f"v_add_u32 {v(t1)}, s29, {v(t1)}")
    A(f"v_mul_u32_u24 {v(t1)}, 1280, {v(t1)}")
    A(f"v_lshl_add_u32 {v(t1)}, {v(t2)}, 4, {v(t1)}")
    A(f"s_mul_i32 s29, {cb}, 160")
    A(f"v_add_u32 {v(vDW)}, s29, {v(t1)}")
    A(f"s_mul_i32 s35, s28, 800")
    A(f"s_add_u32 s35, s35, {WO}")
    A("s_mov_b32 s60, -1")
    A("s_mov_b32 s61, 0x3ffff")
    A("s_mov_b32 s62, -1")
    A("s_mov_b32 s63, 0xffff")
    A("s_mov_b32 s38, 0")
    A("s_waitcnt lgkmcnt(0)")
    A("s_mov_b32 s14, 819200")
    A("s_mov_b32 s15, 0x20000")
    def issueW(h0):
        A("s_mov_b64 exec, s[60:61]")
        for h in range(h0, h0 + 4):
            A(f"s_add_u32 m0, s35, {3200*h}")
            A(f"buffer_load_dwordx4 {v(vDW)}, s[12:15], s38 offen lds")
            A(f"s_add_u32 s38, s38, 25600")
        A("s_mov_b64 exec, -1")
    issueW(0); issueW(4)
    VW = [[R.alloc() for _ in range(2)] for _ in range(5)]
    vr = R.alloc(); vc8 = R.alloc()
    A(f"v_lshrrev_b32 {v(vr)}, 2, {v(vi)}")
    A(f"v_and_b32 {v(vc8)}, 3, {v(vi)}")
    A(f"v_lshlrev_b32 {v(vc8)}, 3, {v(vc8)}")
    A(f"v_add_u32 {v(vc8)}, {WO}, {v(vc8)}")
    A(f"v_lshlrev_b32 {v(t3)}, 3, {v(vr)}")
    for f in range(5):
        for hf in range(2):
            bases = 0; mults = 0
            for rp in range(4):
                idx = 8 * f + 4 * hf + rp
                ho, r = PAIR[idx % 10]
                head = 2 * (idx // 10) + ho
                base = 20 * head + (r if r < 3 else 12 + r - 3)
                mult = 3 if r < 3 else 2
                bases |= base << (8 * rp); mults |= mult << (8 * rp)
            A(f"s_mov_b32 s29, {bases}")
            A(f"s_mov_b32 s30, {mults}")
            A(f"v_bfe_u32 {v(t1)}, s29, {v(t3)}, 8")
            A(f"v_bfe_u32 {v(t2)}, s30, {v(t3)}, 8")
            A(f"v_mad_u32_u24 {v(t1)}, {v(t2)}, {v(vq)}, {v(t1)}")
            A(f"v_mul_u32_u24 {v(t1)}, 160, {v(t1)}")
            A(f"v_add_u32 {v(VW[f][hf])}, {v(t1)}, {v(vc8)}")
    R.rel(vr); R.rel(vc8)
    vK0 = R.alloc(); vK1 = R.alloc()
    A(f"v_lshrrev_b32 {v(t1)}, 2, {v(vi)}")
    A(f"v_and_b32 {v(t2)}, 3, {v(vi)}")
    A(f"v_min_u32 {v(t3)}, 2, {v(vq)}")
    A(f"v_lshlrev_b32 {v(t3)}, 4, {v(t3)}")
    A(f"v_mad_u32_u24 {v(vK0)}, {v(t1)}, 3, {v(t2)}")
    A(f"v_cmp_eq_u32 vcc, 3, {v(t2)}")
    A(f"v_cndmask_b32 {v(vK0)}, {v(vK0)}, 20, vcc")
    A(f"v_mad_u32_u24 {v(vK0)}, {v(vK0)}, 40, {v(t3)}")
    A(f"v_lshl_add_u32 {v(vK1)}, {v(t1)}, 1, {v(t2)}")
    A(f"v_add_u32 {v(vK1)}, 12, {v(vK1)}")
    A(f"v_cmp_lt_u32 vcc, 1, {v(t2)}")
    A(f"v_cndmask_b32 {v(vK1)}, {v(vK1)}, 20, vcc")
    A(f"v_mad_u32_u24 {v(vK1)}, {v(vK1)}, 40, {v(t3)}")
    vPQ = R.alloc(); vMask = R.alloc()
    A(f"s_lshl_b32 s29, {rb}, 2")
    A(f"s_add_u32 s29, s29, s28")
    A(f"s_mul_i32 s29, s29, {32*768}")
    A(f"s_add_u32 s29, s29, {WS_PQF}")
    A(f"v_lshl_add_u32 {v(vPQ)}, {v(lane)}, 4, s29")
    A(f"v_cmp_gt_u32 vcc, 2, {v(vq)}")
    A(f"v_cndmask_b32 {v(vMask)}, 0, -1, vcc")
    NPQ = 8
    PQ = [R.alloc(4, 4) for _ in range(NPQ)]
    for p in PQ:
        for k in range(4): A(f"v_mov_b32 {v(p+k)}, 0")
    ACC = [R.alloc(4, 4) for _ in range(5)]
    for a in ACC:
        for k in range(4): A(f"v_mov_b32 {v(a+k)}, 0")
    if wait is not None: wait("kvpq")
    stamp()
    KL = [R.alloc(4, 4) for _ in range(14)]
    A(f"s_add_u32 s44, s50, {WS_KV}")
    A(f"s_addc_u32 s45, s51, 0")
    A(f"s_mov_b32 s46, {32*21*20*4}")
    A(f"s_mov_b32 s47, 0x20000")
    A(f"v_lshlrev_b32 {v(t1)}, 4, v0")
    for m in range(14):
        A(f"s_mov_b32 s29, {4096*m}")
        A(f"buffer_load_dwordx4 {v(KL[m],4)}, {v(t1)}, s[44:47], s29 offen {sc}")
    def ldpq(slot, hloc):
        A(f"global_load_dwordx4 {v(PQ[slot],4)}, {v(vPQ)}, s[50:51] offset:{768*hloc} {sc}")
    A("s_mov_b64 exec, s[62:63]")
    for k in range(4): ldpq(k, k)
    A(f"v_add_u32 {v(vPQ)}, 3072, {v(vPQ)}")
    for k in range(4): ldpq(4 + k, k)
    A(f"v_add_u32 {v(vPQ)}, 3072, {v(vPQ)}")
    A("s_mov_b64 exec, -1")
    A(f"v_lshlrev_b32 {v(t1)}, 3, v0")
    for m in range(14):
        A(f"s_waitcnt vmcnt({8 + 13 - m})")
        A(f"v_cvt_pk_bf16_f32 {v(KL[m])}, {v(KL[m])}, {v(KL[m]+1)}")
        A(f"v_cvt_pk_bf16_f32 {v(KL[m]+1)}, {v(KL[m]+2)}, {v(KL[m]+3)}")
        if m == 13:
            A(f"v_cmp_gt_u32 vcc, 34, v0")
            A("s_and_saveexec_b64 s[30:31], vcc")
        A(f"ds_write_b64 {v(t1)}, {v(KL[m],2)} offset:{KVZ + 2048*m}")
        if m == 13:
            A("s_mov_b64 exec, -1")
    for k in KL: R.rel(k, 4)
    A(f"s_mov_b32 s58, {f2u(1e-6)}")
    A("s_waitcnt vmcnt(0) lgkmcnt(0)")
    A("s_barrier")
    stamp()
    KF = [[R.alloc(4, 4) for _ in range(2)] for _ in range(2)]
    D = [[R.alloc(4, 4) for _ in range(2)] for _ in range(2)]
    OF = [R.alloc(4, 4) for _ in range(5)]
    WF = [R.alloc(4, 4) for _ in range(5)]
    TP = [R.alloc() for _ in range(4)]
    RC = [R.alloc(2, 2) for _ in range(2)]
    def rdk(par, hodd):
        o = 105 * hodd
        A(f"ds_read2_b64 {v(KF[par][0],4)}, {v(vK0)} offset0:{o} offset1:{o+1}")
        A(f"ds_read2_b64 {v(KF[par][1],4)}, {v(vK1)} offset0:{o} offset1:{o+1}")
    A("s_mov_b32 s41, 0")
    loop = A.newlabel("L_f_loop")
    rdk(0, 0); rdk(1, 1)
    A(f"v_add_u32 {v(vK0)}, 1680, {v(vK0)}")
    A(f"v_add_u32 {v(vK1)}, 1680, {v(vK1)}")
    A.label(loop)
    for hp in range(4):
        A("s_waitcnt vmcnt(14)")
        for ho in range(2):
            p = PQ[2 * hp + ho]
            A(f"v_and_b32 {v(p+2)}, {v(vMask)}, {v(p+2)}")
            A(f"v_and_b32 {v(p+3)}, {v(vMask)}, {v(p+3)}")
        A("s_waitcnt lgkmcnt(0)")
        for ho in range(2):
            p = PQ[2 * hp + ho]
            A(f"v_mfma_f32_16x16x32_bf16 {v(D[ho][0],4)}, {v(KF[ho][0],4)}, {v(p,4)}, 0")
            A(f"v_mfma_f32_16x16x32_bf16 {v(D[ho][1],4)}, {v(KF[ho][1],4)}, {v(p,4)}, 0")
        rdk(0, 0); rdk(1, 1)
        A(f"v_add_u32 {v(vK0)}, 1680, {v(vK0)}")
        A(f"v_add_u32 {v(vK1)}, 1680, {v(vK1)}")
        A("s_mov_b64 exec, s[62:63]")
        ldpq(2 * hp, 2 * (hp & 1)); ldpq(2 * hp + 1, 2 * (hp & 1) + 1)
        A("s_mov_b64 exec, -1")
        if hp & 1: A(f"v_add_u32 {v(vPQ)}, 3072, {v(vPQ)}")
        for ho in range(2):
            d0 = D[ho][0]; d1 = D[ho][1]; rc = RC[ho]
            A(f"v_cvt_pk_bf16_f32 {v(TP[0])}, {v(d0)}, {v(d0+1)}")
            A(f"v_cvt_pk_bf16_f32 {v(TP[1])}, {v(d0+2)}, {v(d0+3)}")
            A(f"v_cvt_pk_bf16_f32 {v(TP[2])}, {v(d1)}, {v(d1+1)}")
            A(f"v_and_b32 {v(rc)}, 0xffff0000, {v(TP[1])}")
            A(f"v_add_f32 {v(rc)}, s58, {v(rc)}")
            A(f"v_cvt_pk_bf16_f32 {v(rc)}, {v(rc)}, {v(rc)}")
            A(f"v_lshlrev_b32 {v(rc)}, 16, {v(rc)}")
            A(f"v_rcp_f32 {v(rc)}, {v(rc)}")
            A(f"v_lshlrev_b32 {v(d0)}, 16, {v(TP[0])}")
            A(f"v_and_b32 {v(d0+1)}, 0xffff0000, {v(TP[0])}")
            A(f"v_lshlrev_b32 {v(d0+2)}, 16, {v(TP[1])}")
            A(f"v_lshlrev_b32 {v(d1)}, 16, {v(TP[2])}")
            A(f"v_and_b32 {v(d1+1)}, 0xffff0000, {v(TP[2])}")
            A(f"v_pk_mul_f32 {v(d0,2)}, {v(d0,2)}, {v(rc,2)} op_sel:[0,0] op_sel_hi:[1,0]")
            A(f"v_mul_f32 {v(d0+2)}, {v(d0+2)}, {v(rc)}")
            A(f"v_pk_mul_f32 {v(d1,2)}, {v(d1,2)}, {v(rc,2)} op_sel:[0,0] op_sel_hi:[1,0]")
        dw = lambda k: OF[(5 * hp + k) // 4] + (5 * hp + k) % 4
        A(f"v_cvt_pk_bf16_f32 {v(dw(0))}, {v(D[0][0])}, {v(D[0][0]+1)}")
        A(f"v_cvt_pk_bf16_f32 {v(dw(1))}, {v(D[0][1])}, {v(D[0][1]+1)}")
        A(f"v_cvt_pk_bf16_f32 {v(dw(2))}, {v(D[0][0]+2)}, {v(D[1][0]+2)}")
        A(f"v_cvt_pk_bf16_f32 {v(dw(3))}, {v(D[1][0])}, {v(D[1][0]+1)}")
        A(f"v_cvt_pk_bf16_f32 {v(dw(4))}, {v(D[1][1])}, {v(D[1][1]+1)}")
    A("s_waitcnt vmcnt(8)")
    A("s_barrier")
    def rdw(f, nt):
        A(f"ds_read_b64_tr_b16 {v(WF[nt],2)}, {v(VW[f][0])} offset:{32*nt}")
        A(f"ds_read_b64_tr_b16 {v(WF[nt]+2,2)}, {v(VW[f][1])} offset:{32*nt}")
    for nt in range(5): rdw(0, nt)
    lskip = A.newlabel("L_f_sk"); lskip2 = A.newlabel("L_f_sk2"); lat = A.newlabel("L_f_at")
    for f in range(5):
        for nt in range(5):
            n = 8 if f < 4 else 2 * (4 - nt)
            A(f"s_waitcnt lgkmcnt({n})")
            A(f"v_mfma_f32_16x16x32_bf16 {v(ACC[nt],4)}, {v(WF[nt],4)}, {v(OF[f],4)}, {v(ACC[nt],4)}")
            if f < 4: rdw(f + 1, nt)
        if f == 2:
            A("s_barrier")
            A("s_cmp_eq_u32 s41, 3")
            A(f"s_cbranch_scc1 {lat}")
            issueW(0)
            A(f"s_branch {lskip}")
            A.label(lat)
            if wait is not None: wait("at")
            A(f"s_mul_i32 s29, s28, 160")
            A(f"v_add_u32 {v(t1)}, s29, {v(lane)}")
            A(f"v_lshrrev_b32 {v(t2)}, 3, {v(t1)}")
            A(f"v_and_b32 {v(t1)}, 7, {v(t1)}")
            A(f"v_lshlrev_b32 {v(t2)}, 12, {v(t2)}")
            A(f"v_lshl_add_u32 {v(t1)}, {v(t1)}, 4, {v(t2)}")
            A(f"s_mul_i32 s29, {cb}, {80*4096}")
            A(f"s_lshl_b32 s30, {rb}, 7")
            A(f"s_add_u32 s29, s29, s30")
            A(f"s_add_u32 s44, s50, {WS_AT}")
            A(f"s_addc_u32 s45, s51, 0")
            A(f"s_mov_b32 s46, {640*4096}")
            A(f"s_mul_i32 s30, s28, 2560")
            A(f"s_add_u32 s30, s30, {WO}")
            for j in range(3):
                A(f"s_add_u32 m0, s30, {1024*j}")
                if j == 2: A("s_mov_b64 exec, 0xffffffff")
                A(f"buffer_load_dwordx4 {v(t1)}, s[44:47], s29 offen lds {sc}")
                A(f"s_add_u32 s29, s29, {8*4096}")
            A("s_mov_b64 exec, -1")
            A(f"s_lshl_b32 s29, {rb}, 8")
            A(f"s_lshl_b32 s30, s28, 6")
            A(f"s_add_u32 s29, s29, s30")
            A(f"s_add_u32 s29, s29, {WS_G}")
            A(f"v_lshl_add_u32 {v(t2)}, {v(vi)}, 2, s29")
            A(f"global_load_dword {v(t3)}, {v(t2)}, s[50:51] {sc}")
            A.label(lskip)
    A("s_cmp_eq_u32 s41, 3")
    A(f"s_cbranch_scc1 {lskip2}")
    A("s_barrier")
    issueW(4)
    A("s_add_u32 s41, s41, 1")
    A(f"s_branch {loop}")
    A.label(lskip2)
    stamp()
    A(f"v_lshrrev_b32 {v(t1)}, 2, {v(vi)}")
    A(f"v_lshl_add_u32 {v(t1)}, {v(vq)}, 2, {v(t1)}")
    A(f"v_lshlrev_b32 {v(t1)}, 7, {v(t1)}")
    A(f"v_and_b32 {v(t2)}, 3, {v(vi)}")
    A(f"v_lshl_add_u32 {v(t1)}, {v(t2)}, 3, {v(t1)}")
    A(f"s_lshl_b32 s29, s28, 5")
    A(f"s_add_u32 s29, s29, {WO}")
    A(f"v_add_u32 {v(t1)}, s29, {v(t1)}")
    A(f"s_lshl_b32 s29, {rb}, 6")
    A(f"s_lshl_b32 s30, s28, 4")
    A(f"s_add_u32 s29, s29, s30")
    A(f"v_add_u32 {v(t2)}, s29, {v(vi)}")
    A(f"v_mul_u32_u24 {v(t2)}, 1280, {v(t2)}")
    A(f"s_mul_i32 s29, {cb}, 160")
    vO8 = TP[3]; vO16 = lane
    A(f"v_lshl_add_u32 {v(vO8)}, {v(vq)}, 3, {v(t2)}")
    A(f"v_add_u32 {v(vO8)}, s29, {v(vO8)}")
    A(f"v_and_b32 {v(TP[0])}, 1, {v(vq)}")
    A(f"v_lshl_add_u32 {v(t2)}, {v(TP[0])}, 5, {v(t2)}")
    A(f"v_lshrrev_b32 {v(TP[0])}, 1, {v(vq)}")
    A(f"v_lshl_add_u32 {v(t2)}, {v(TP[0])}, 4, {v(t2)}")
    A(f"v_add_u32 {v(vO16)}, s29, {v(t2)}")
    A("s_waitcnt vmcnt(0)")
    A("s_barrier")
    AT = [WF[k] for k in range(5)]
    for nt in range(5):
        A(f"ds_read_b64_tr_b16 {v(AT[nt],2)}, {v(t1)} offset:{2048*nt}")
    G2 = RC[0]; M2 = RC[1]
    A(f"v_mov_b32 {v(G2)}, {v(t3)}")
    A(f"v_sub_f32 {v(M2)}, 1.0, {v(t3)}")
    A(f"v_cvt_pk_bf16_f32 {v(M2)}, {v(M2)}, {v(M2)}")
    A(f"v_lshlrev_b32 {v(M2)}, 16, {v(M2)}")
    OUT = [OF[0], OF[1], OF[2]]
    X = D[0][0]; Y = D[0][1]
    for nt in range(5):
        a = ACC[nt]; at = AT[nt]
        o = OUT[nt // 2] + 2 * (nt % 2)
        A(f"v_cvt_pk_bf16_f32 {v(o)}, {v(a)}, {v(a+1)}")
        A(f"v_cvt_pk_bf16_f32 {v(o+1)}, {v(a+2)}, {v(a+3)}")
        A(f"v_lshlrev_b32 {v(a)}, 16, {v(o)}")
        A(f"v_and_b32 {v(a+1)}, 0xffff0000, {v(o)}")
        A(f"v_lshlrev_b32 {v(a+2)}, 16, {v(o+1)}")
        A(f"v_and_b32 {v(a+3)}, 0xffff0000, {v(o+1)}")
        A(f"v_pk_mul_f32 {v(a,2)}, {v(a,2)}, {v(M2,2)} op_sel:[0,0] op_sel_hi:[1,0]")
        A(f"v_pk_mul_f32 {v(a+2,2)}, {v(a+2,2)}, {v(M2,2)} op_sel:[0,0] op_sel_hi:[1,0]")
        A(f"v_cvt_pk_bf16_f32 {v(o)}, {v(a)}, {v(a+1)}")
        A(f"v_cvt_pk_bf16_f32 {v(o+1)}, {v(a+2)}, {v(a+3)}")
        A(f"v_lshlrev_b32 {v(a)}, 16, {v(o)}")
        A(f"v_and_b32 {v(a+1)}, 0xffff0000, {v(o)}")
        A(f"v_lshlrev_b32 {v(a+2)}, 16, {v(o+1)}")
        A(f"v_and_b32 {v(a+3)}, 0xffff0000, {v(o+1)}")
        A(f"s_waitcnt lgkmcnt({4-nt})")
        A(f"v_lshlrev_b32 {v(X)}, 16, {v(at)}")
        A(f"v_and_b32 {v(X+1)}, 0xffff0000, {v(at)}")
        A(f"v_lshlrev_b32 {v(X+2)}, 16, {v(at+1)}")
        A(f"v_and_b32 {v(X+3)}, 0xffff0000, {v(at+1)}")
        A(f"v_pk_mul_f32 {v(X,2)}, {v(X,2)}, {v(G2,2)} op_sel:[0,0] op_sel_hi:[1,0]")
        A(f"v_pk_mul_f32 {v(X+2,2)}, {v(X+2,2)}, {v(G2,2)} op_sel:[0,0] op_sel_hi:[1,0]")
        A(f"v_cvt_pk_bf16_f32 {v(o)}, {v(X)}, {v(X+1)}")
        A(f"v_cvt_pk_bf16_f32 {v(o+1)}, {v(X+2)}, {v(X+3)}")
        A(f"v_lshlrev_b32 {v(X)}, 16, {v(o)}")
        A(f"v_and_b32 {v(X+1)}, 0xffff0000, {v(o)}")
        A(f"v_lshlrev_b32 {v(X+2)}, 16, {v(o+1)}")
        A(f"v_and_b32 {v(X+3)}, 0xffff0000, {v(o+1)}")
        A(f"v_pk_add_f32 {v(a,2)}, {v(a,2)}, {v(X,2)}")
        A(f"v_pk_add_f32 {v(a+2,2)}, {v(a+2,2)}, {v(X+2,2)}")
        A(f"v_cvt_pk_bf16_f32 {v(o)}, {v(a)}, {v(a+1)}")
        A(f"v_cvt_pk_bf16_f32 {v(o+1)}, {v(a+2)}, {v(a+3)}")
        if nt % 2 == 1:
            ob = OUT[nt // 2]
            A(f"v_permlane16_swap_b32 {v(ob)}, {v(ob+2)}")
            A(f"v_permlane16_swap_b32 {v(ob+1)}, {v(ob+3)}")
            A(f"global_store_dwordx4 {v(vO16)}, {v(ob,4)}, s[16:17] offset:{64*(nt//2)}")
        elif nt == 4:
            A(f"global_store_dwordx2 {v(vO8)}, {v(o,2)}, s[16:17] offset:128")
    if stamp_task is not None:
        stamp()
        A("s_waitcnt vmcnt(0)")
        stamp()
        A("s_waitcnt lgkmcnt(0)")
        A(f"s_lshl_b32 s36, {stamp_task}, 3")
        A(f"s_add_u32 s36, s36, s28")
        A(f"s_lshl_b32 s36, s36, 6")
        A(f"s_add_u32 s36, s36, {WS_STAMP + 0x100000}")
        A(f"v_mov_b32 v1, s36")
        for k in stamps:
            A(f"v_mov_b32 v2, s{64+2*k}")
            A(f"global_store_dword v1, v2, s[50:51] offset:{4*k}")
    return R.hi, FINAL_LDS

def gen_gate(A, task="s3", sc=""):
    A(f"""
    s_load_dwordx2 s[8:9], s[0:1], 0
    s_load_dwordx2 s[12:13], s[0:1], 96
    s_load_dwordx4 s[48:51], s[0:1], 112
    v_and_b32 v1, 63, v0
    v_lshrrev_b32 v2, 6, v0
    """)
    A("v_readfirstlane_b32 s28, v2")
    A(f"s_lshl_b32 s29, {task}, 5")
    A("s_lshl_b32 s30, s28, 3")
    A("s_add_u32 s29, s29, s30")
    A("s_mul_i32 s30, s29, 1280")
    A("v_lshlrev_b32 v3, 4, v1")
    A("v_and_b32 v4, 15, v1")
    A("v_lshrrev_b32 v5, 4, v1")
    A("v_lshlrev_b32 v4, 4, v4")
    A("v_add_u32 v4, 1024, v4")
    A("v_mul_u32_u24 v6, 1280, v5")
    A("v_add_u32 v6, v6, v4")
    A("v_add_u32 v7, s30, v3")
    A("v_add_u32 v6, s30, v6")
    A("s_waitcnt lgkmcnt(0)")
    A("global_load_dwordx4 v[8:11], v3, s[12:13]")
    A("global_load_dwordx4 v[12:15], v4, s[12:13]")
    for r in range(8):
        if r == 4: A("v_add_u32 v7, 5120, v7")
        A(f"global_load_dwordx4 v[{16+4*r}:{19+4*r}], v7, s[8:9] offset:{1280*(r%4) if r%4<4 else 0}")
    A("global_load_dwordx4 v[48:51], v6, s[8:9]")
    A("v_add_u32 v6, 5120, v6")
    A("global_load_dwordx4 v[52:55], v6, s[8:9]")
    A("s_waitcnt vmcnt(10)")
    for k in range(8):
        A(f"v_lshlrev_b32 v{64+2*k}, 16, v{8+k}")
        A(f"v_and_b32 v{65+2*k}, 0xffff0000, v{8+k}")
    A("s_mov_b32 s31, 0x3f803f80")
    def dot(src, wbase, acc):
        for k in range(4):
            A(f"v_lshlrev_b32 v90, 16, v{src+k}")
            A(f"v_and_b32 v91, 0xffff0000, v{src+k}")
            A(f"v_pk_mul_f32 v[90:91], v[90:91], v[{wbase+2*k}:{wbase+2*k+1}]")
            A(f"v_cvt_pk_bf16_f32 v90, v90, v91")
            A(f"v_lshlrev_b32 v92, 16, v90")
            A(f"v_and_b32 v93, 0xffff0000, v90")
            if k == 0: A(f"v_add_f32 v{acc}, v92, v93")
            else:
                A(f"v_add_f32 v{acc}, v{acc}, v92")
                A(f"v_add_f32 v{acc}, v{acc}, v93")
    for r in range(8):
        A(f"s_waitcnt vmcnt({9-r})")
        dot(16 + 4 * r, 64, 96 + r)
    A("s_waitcnt vmcnt(0)")
    dot(48, 72, 104); dot(52, 72, 105)
    for r in range(8):
        A(f"v_cmp_eq_u32 vcc, {r%4}, v5")
        A(f"v_cndmask_b32 v90, 0, v{104 + r//4}, vcc")
        A(f"v_add_f32 v{96+r}, v{96+r}, v90")
    for r in range(8):
        x = f"v{96+r}"
        A(f"v_add_f32_dpp {x}, {x}, {x} quad_perm:[1,0,3,2] row_mask:0xf bank_mask:0xf")
        A(f"v_add_f32_dpp {x}, {x}, {x} quad_perm:[2,3,0,1] row_mask:0xf bank_mask:0xf")
        A(f"v_add_f32_dpp {x}, {x}, {x} row_half_mirror row_mask:0xf bank_mask:0xf")
        A(f"v_add_f32_dpp {x}, {x}, {x} row_mirror row_mask:0xf bank_mask:0xf")
    for r in range(8):
        for l in range(4):
            A(f"v_readlane_b32 s{32+4*(r%4)+l}, v{96+r}, {16*l}")
        A(f"v_mov_b32 v90, s{32+4*(r%4)}")
        A(f"v_add_f32 v90, s{33+4*(r%4)}, v90")
        A(f"v_add_f32 v90, s{34+4*(r%4)}, v90")
        A(f"v_add_f32 v90, s{35+4*(r%4)}, v90")
        A(f"v_cmp_eq_u32 vcc, {r}, v1")
        if r == 0: A("v_mov_b32 v94, v90")
        else: A("v_cndmask_b32 v94, v94, v90, vcc")
    A("v_cvt_pk_bf16_f32 v94, v94, v94")
    A("v_lshlrev_b32 v94, 16, v94")
    A(f"v_mul_f32 v94, {f2u(-1.4426950408889634)}, v94")
    A("v_exp_f32 v94, v94")
    A("v_add_f32 v94, 1.0, v94")
    A("v_rcp_f32 v94, v94")
    A("v_cvt_pk_bf16_f32 v94, v94, v94")
    A("v_lshlrev_b32 v94, 16, v94")
    A("s_lshl_b32 s29, s29, 2")
    A(f"s_add_u32 s29, s29, {WS_G}")
    A("v_lshl_add_u32 v3, v1, 2, s29")
    A("s_mov_b64 exec, 0xff")
    A(f"global_store_dword v3, v94, s[50:51] {sc}")
    A("s_mov_b64 exec, -1")
    return 106
```

```python
import numpy as np
from asmlib import *
from s4 import Regs, v, f2u
from s4b import WS_PQ, WS_KV, WS_STAMP

SLOT = 10240
ABL = set()
GEMM_LDS = 40960
KV_BYTES = 32 * 21 * 20 * 4

def phi_pair(A, x0, x1, t, c1, out):
    assert x1 == x0 + 1
    A(f"v_cvt_pk_bf16_f32 {v(out)}, {v(x0)}, {v(x1)}")
    A(f"v_lshlrev_b32 {v(x0)}, 16, {v(out)}")
    A(f"v_and_b32 {v(x1)}, 0xffff0000, {v(out)}")
    A(f"v_pk_mul_f32 {v(t,2)}, {v(x0,2)}, {c1}")
    A(f"v_min_f32 {v(t)}, 0, {v(t)}")
    A(f"v_min_f32 {v(t+1)}, 0, {v(t+1)}")
    A(f"v_exp_f32 {v(t)}, {v(t)}")
    A(f"v_exp_f32 {v(t+1)}, {v(t+1)}")
    A(f"v_max_f32 {v(x0)}, 0, {v(x0)}")
    A(f"v_max_f32 {v(x1)}, 0, {v(x1)}")
    A(f"v_pk_add_f32 {v(x0,2)}, {v(x0,2)}, {v(t,2)}")
    A(f"v_cvt_pk_bf16_f32 {v(out)}, {v(x0)}, {v(x1)}")
    A(f"v_lshlrev_b32 {v(x0)}, 16, {v(out)}")
    A(f"v_and_b32 {v(x1)}, 0xffff0000, {v(out)}")
    A(f"v_pk_add_f32 {v(x0,2)}, {v(x0,2)}, s[58:59]")
    A(f"v_cvt_pk_bf16_f32 {v(out)}, {v(x0)}, {v(x1)}")

def gen_gemm(A, rb="s3", ct="s4", sc="", done_label=None, stamp_task=None, pre=None):
    stamps = []
    def stamp():
        if stamp_task is None: return
        k = len(stamps); stamps.append(k)
        A(f"s_memtime s[{64+2*k}:{65+2*k}]")
    A(f"""
    s_load_dwordx2 s[8:9], s[0:1], 0
    s_load_dwordx2 s[12:13], s[0:1], 80
    s_load_dwordx4 s[48:51], s[0:1], 112
    """)
    stamp()
    ACC = [[16 * 0 + 4 * (2 * nt + rt) for rt in range(2)] for nt in range(10)]
    AST = [[80 + 8 * s + 4 * rt for rt in range(2)] for s in range(3)]
    NB = 5
    BW = [104 + 4 * k for k in range(NB)]
    vA, vBe, vBo, vD = 124, 125, 126, 127
    tid = 10; lane = 11; t1 = 12; t2 = 13; t3 = 14; vi = 15; vq = 16
    A(f"v_mov_b32 {v(tid)}, v0")
    A(f"v_and_b32 {v(lane)}, 63, v0")
    A(f"v_lshrrev_b32 {v(t1)}, 6, v0")
    A(f"v_readfirstlane_b32 s28, {v(t1)}")
    A(f"v_and_b32 {v(vi)}, 15, {v(lane)}")
    A(f"v_lshrrev_b32 {v(vq)}, 4, {v(lane)}")
    A(f"s_mul_i32 s30, {ct}, 160")
    A(f"s_add_u32 s31, s30, {2560 - 160}")
    A(f"s_add_u32 s30, s30, 1280")
    A(f"s_sub_u32 s32, {ct}, 8")
    A(f"s_mul_i32 s32, s32, 320")
    A(f"s_cmp_ge_u32 {ct}, 8")
    A(f"s_cselect_b32 s30, s32, s30")
    A(f"s_cselect_b32 s31, s32, s31")
    A(f"s_lshl_b32 s33, {rb}, 7")
    A(f"s_lshl_b32 s34, s28, 5")
    A(f"s_add_u32 s33, s33, s34")
    A(f"v_add_u32 {v(t1)}, s33, {v(vi)}")
    A(f"v_mul_u32_u24 {v(t1)}, 1280, {v(t1)}")
    A(f"v_lshl_add_u32 {v(vA)}, {v(vq)}, 4, {v(t1)}")
    A(f"v_mul_u32_u24 {v(t1)}, 3277, {v(lane)}")
    A(f"v_lshrrev_b32 {v(t1)}, 16, {v(t1)}")
    A(f"v_mul_u32_u24 {v(t2)}, 20, {v(t1)}")
    A(f"v_sub_u32 {v(t2)}, {v(lane)}, {v(t2)}")
    A(f"s_and_b32 s34, s28, 1")
    A(f"s_lshl_b32 s34, s34, 1")
    A(f"v_xor_b32 {v(t2)}, s34, {v(t2)}")
    A(f"v_cmp_gt_u32 vcc, 10, {v(t2)}")
    A(f"v_mov_b32 {v(t3)}, s31")
    A(f"v_mov_b32 {v(vD)}, s30")
    A(f"v_cndmask_b32 {v(t3)}, {v(t3)}, {v(vD)}, vcc")
    A(f"v_lshl_add_u32 {v(t3)}, {v(t2)}, 4, {v(t3)}")
    A(f"s_lshl_b32 s34, s28, 3")
    A(f"v_add_u32 {v(t1)}, s34, {v(t1)}")
    A(f"v_mul_u32_u24 {v(t1)}, 3840, {v(t1)}")
    A(f"v_add_u32 {v(vD)}, {v(t1)}, {v(t3)}")
    A(f"v_lshrrev_b32 {v(t1)}, 2, {v(vi)}")
    A(f"v_lshl_add_u32 {v(t1)}, {v(vq)}, 3, {v(t1)}")
    A(f"v_mul_u32_u24 {v(t1)}, 320, {v(t1)}")
    A(f"v_and_b32 {v(t2)}, 3, {v(vi)}")
    A(f"v_lshl_add_u32 {v(t1)}, {v(t2)}, 3, {v(t1)}")
    A(f"v_and_b32 {v(t2)}, 1, {v(vq)}")
    A(f"v_lshlrev_b32 {v(t2)}, 5, {v(t2)}")
    A(f"v_add_u32 {v(vBe)}, {v(t1)}, {v(t2)}")
    A(f"v_sub_u32 {v(vBo)}, {v(t1)}, {v(t2)}")
    A(f"s_mul_i32 s35, s28, 2560")
    A("s_mov_b32 s60, -1")
    A("s_mov_b32 s61, 0x0fffffff")
    A("s_mov_b32 s62, -1")
    A("s_mov_b32 s63, 0xff")
    A("s_waitcnt lgkmcnt(0)")
    A(f"""
    s_mov_b32 s10, 2621440
    s_mov_b32 s11, 0x20000
    s_mov_b32 s14, 2457600
    s_mov_b32 s15, 0x20000
    """)
    A("s_mov_b32 s36, 0")
    A("s_mov_b32 s37, 20480")
    A("s_mov_b32 s38, 0")
    def issueA(stage, imm):
        A(f"buffer_load_dwordx4 {v(AST[stage][0],4)}, {v(vA)}, s[8:11], s36 offen offset:{imm}")
        A(f"buffer_load_dwordx4 {v(AST[stage][1],4)}, {v(vA)}, s[8:11], s37 offen offset:{imm}")
    def issueB(slot):
        A(f"s_add_u32 s39, s38, 11520")
        A(f"s_add_u32 s40, s38, 23040")
        A(f"s_add_u32 m0, s35, {slot*SLOT}")
        A("s_mov_b64 exec, s[60:61]")
        A(f"buffer_load_dwordx4 {v(vD)}, s[12:15], s38 offen lds")
        A(f"s_add_u32 m0, s35, {slot*SLOT + 960}")
        A(f"buffer_load_dwordx4 {v(vD)}, s[12:15], s39 offen lds")
        A(f"s_add_u32 m0, s35, {slot*SLOT + 1920}")
        A("s_mov_b64 exec, s[62:63]")
        A(f"buffer_load_dwordx4 {v(vD)}, s[12:15], s40 offen lds")
        A("s_mov_b64 exec, -1")
        A(f"s_add_u32 s38, s38, {32*3840}")
    if pre is not None:
        pa, pb = pre
        A(f"s_mul_i32 s34, {rb}, 163840")
        A(f"s_mul_i32 s39, {pa}, {214*128}")
        A(f"s_add_u32 s34, s34, s39")
        A(f"v_min_u32 {v(t1)}, 213, {v(tid)}")
        A(f"v_lshl_add_u32 {v(t1)}, {v(t1)}, 7, s34")
        A(f"buffer_load_dword {v(104)}, {v(t1)}, s[8:11], 0 offen")
        for it in range(3):
            A(f"v_add_u32 {v(t1)}, {256*it}, {v(tid)}")
            A(f"v_min_u32 {v(t1)}, 639, {v(t1)}")
            A(f"v_lshrrev_b32 {v(t2)}, 2, {v(t1)}")
            A(f"s_mul_i32 s34, {pb}, 160")
            A(f"v_add_u32 {v(t2)}, s34, {v(t2)}")
            A(f"v_mul_u32_u24 {v(t2)}, 3840, {v(t2)}")
            A(f"v_and_b32 {v(t3)}, 1, {v(t1)}")
            A(f"v_mul_u32_u24 {v(t3)}, 156, {v(t3)}")
            A(f"v_add_u32 {v(t2)}, {v(t2)}, {v(t3)}")
            A(f"v_and_b32 {v(t1)}, 2, {v(t1)}")
            A(f"v_cmp_eq_u32 vcc, 0, {v(t1)}")
            A(f"s_add_u32 s34, s31, 160")
            A(f"v_mov_b32 {v(t1)}, s34")
            A(f"v_mov_b32 {v(t3)}, s30")
            A(f"v_cndmask_b32 {v(t1)}, {v(t1)}, {v(t3)}, vcc")
            A(f"v_add_u32 {v(t2)}, {v(t2)}, {v(t1)}")
            A(f"buffer_load_dword {v(105+it)}, {v(t2)}, s[12:15], 0 offen")
    issueA(0, 0); issueB(0); issueA(1, 64); issueB(1); issueA(2, 128)
    for r in range(80):
        A(f"v_mov_b32 {v(r)}, 0")
    A("s_mov_b32 s41, 0")
    lq = A.newlabel("L_g_q")
    A(f"s_cmp_ge_u32 {ct}, 8")
    A(f"s_cbranch_scc1 {lq}")
    ends = {}
    for variant in ("kv", "q"):
        if variant == "q": A.label(lq)
        loop = A.newlabel("L_g_loop"); ex = A.newlabel("L_g_exit")
        ends[variant] = ex
        A.label(loop)
        for st in range(3):
            A("s_waitcnt vmcnt(%d)" % (7 - (4 if "A" in ABL else 0) - (3 if "B" in ABL else 0)))
            if "bar" not in ABL: A("s_barrier")
            if "B" not in ABL: issueB((st + 2) % 3)
            def rd(nt):
                if "rd" in ABL: return
                b = BW[nt % NB]; base = vBe if nt % 2 == 0 else vBo
                o = st * SLOT + nt * 32
                A(f"ds_read_b64_tr_b16 {v(b,2)}, {v(base)} offset:{o}")
                A(f"ds_read_b64_tr_b16 {v(b+2,2)}, {v(base)} offset:{o+1280}")
            PRE = NB - 1
            for nt in range(PRE): rd(nt)
            for nt in range(10):
                rem = min(9 - nt, PRE - 1)
                A(f"s_waitcnt lgkmcnt({2*rem})")
                for rt in range(2):
                    a = v(AST[st][rt], 4); b = v(BW[nt % NB], 4); c = v(ACC[nt][rt], 4)
                    if "mfma" in ABL: pass
                    elif variant == "kv":
                        A(f"v_mfma_f32_16x16x32_bf16 {c}, {a}, {b}, {c}")
                    else:
                        A(f"v_mfma_f32_16x16x32_bf16 {c}, {b}, {a}, {c}")
                if nt + PRE < 10: rd(nt + PRE)
            if "A" not in ABL: issueA(st, 192 + 64 * st)
            if st == 1:
                A("s_cmp_eq_u32 s41, 6")
                A(f"s_cbranch_scc1 {ex}")
        A("s_add_u32 s36, s36, 192")
        A("s_add_u32 s37, s37, 192")
        A("s_add_u32 s41, s41, 1")
        A(f"s_branch {loop}")
        A.label(ex)
        A.fence()
        if "again" in ABL:
            l2 = A.newlabel("L_g_2")
            A("s_waitcnt vmcnt(0) lgkmcnt(0)")
            A("s_barrier")
            A("s_cmp_eq_u32 s90, 1")
            A(f"s_cbranch_scc1 {l2}")
            A("s_mov_b32 s90, 1")
            A("v_mbcnt_lo_u32_b32 v0, -1, 0")
            A("v_mbcnt_hi_u32_b32 v0, -1, v0")
            A("s_lshl_b32 s91, s28, 6")
            A("v_add_u32 v0, s91, v0")
            A("s_branch L_again")
            A.label(l2)
        stamp()
        A(f"s_mov_b32 s56, {f2u(1.4426950408889634)}")
        A(f"s_mov_b32 s57, {f2u(1.4426950408889634)}")
        A(f"s_mov_b32 s58, {f2u(1e-6)}")
        A(f"s_mov_b32 s59, {f2u(1e-6)}")
        A("s_waitcnt vmcnt(0)")
        lane = 124; vi = 125; vq = 126; vO = 127
        A(f"v_mbcnt_lo_u32_b32 {v(lane)}, -1, 0")
        A(f"v_mbcnt_hi_u32_b32 {v(lane)}, -1, {v(lane)}")
        A(f"v_and_b32 {v(vi)}, 15, {v(lane)}")
        A(f"v_lshrrev_b32 {v(vq)}, 4, {v(lane)}")
        if variant == "q":
            T = 120
            A(f"v_add_u32 {v(T)}, s33, {v(vi)}")
            A(f"v_mul_u32_u24 {v(T)}, 1280, {v(T)}")
            A(f"v_and_b32 {v(T+1)}, 1, {v(vq)}")
            A(f"v_lshl_add_u32 {v(T)}, {v(T+1)}, 5, {v(T)}")
            A(f"v_lshrrev_b32 {v(T+1)}, 1, {v(vq)}")
            A(f"v_lshl_add_u32 {v(T)}, {v(T+1)}, 4, {v(T)}")
            A(f"s_add_u32 s34, s30, {WS_PQ}")
            A(f"v_add_u32 {v(vO)}, s34, {v(T)}")
            A(f"v_add_u32 {v(lane)}, 20480, {v(vO)}")
            k = 0
            for rt in range(2):
                for np_ in range(5):
                    o = 80 + 4 * (k % 4); tt = 100 + 2 * (k % 4); k += 1
                    a0 = ACC[2 * np_][rt]; a1 = ACC[2 * np_ + 1][rt]
                    phi_pair(A, a0, a0 + 1, tt, "s[56:57]", o)
                    phi_pair(A, a0 + 2, a0 + 3, tt, "s[56:57]", o + 1)
                    phi_pair(A, a1, a1 + 1, tt, "s[56:57]", o + 2)
                    phi_pair(A, a1 + 2, a1 + 3, tt, "s[56:57]", o + 3)
                    A(f"v_permlane16_swap_b32 {v(o)}, {v(o+2)}")
                    A(f"v_permlane16_swap_b32 {v(o+1)}, {v(o+3)}")
                    A(f"global_store_dwordx4 {v(vO if rt == 0 else lane)}, {v(o,4)}, s[50:51] offset:{64*np_} {sc}")
            if done_label is None:
                fin = A.newlabel("L_g_fin")
                ends["fin"] = fin
            A(f"s_branch {done_label or ends['fin']}")
        else:
            A("s_barrier")
            A(f"s_mul_i32 s34, s28, 10240")
            A(f"v_lshl_add_u32 {v(vO)}, {v(lane)}, 4, s34")
            k = 0
            for nt in range(10):
                o = 80 + 4 * (k % 4); tt = 100 + 2 * (k % 4); k += 1
                for rt in range(2):
                    a = ACC[nt][rt]
                    if nt < 5:
                        phi_pair(A, a, a + 1, tt, "s[56:57]", o + 2 * rt)
                        phi_pair(A, a + 2, a + 3, tt, "s[56:57]", o + 2 * rt + 1)
                    else:
                        A(f"v_cvt_pk_bf16_f32 {v(o+2*rt)}, {v(a)}, {v(a+1)}")
                        A(f"v_cvt_pk_bf16_f32 {v(o+2*rt+1)}, {v(a+2)}, {v(a+3)}")
                A(f"ds_write_b128 {v(vO)}, {v(o,4)} offset:{1024*nt}")
            hd = [40, 41]; cp = [42, 43]
            he = [[44 + 4 * j + r for r in range(4)] for j in range(2)]
            rp = [[52 + 4 * j + r for r in range(4)] for j in range(2)]
            T = 60
            A(f"s_lshl_b32 s34, s28, 4")
            for j in range(2):
                A(f"v_add_u32 {v(T)}, s34, {v(vi)}")
                if j: A(f"v_add_u32 {v(T)}, 16, {v(T)}")
                A(f"v_mul_u32_u24 {v(hd[j])}, 3277, {v(T)}")
                A(f"v_lshrrev_b32 {v(hd[j])}, 16, {v(hd[j])}")
                A(f"v_mul_u32_u24 {v(T+1)}, 20, {v(hd[j])}")
                A(f"v_sub_u32 {v(T)}, {v(T)}, {v(T+1)}")
                A(f"v_lshlrev_b32 {v(cp[j])}, 2, {v(T)}")
                for r in range(4):
                    A(f"v_lshl_add_u32 {v(T)}, {v(vq)}, 2, s34")
                    A(f"v_add_u32 {v(T)}, {16*j + r}, {v(T)}")
                    A(f"v_mul_u32_u24 {v(he[j][r])}, 3277, {v(T)}")
                    A(f"v_lshrrev_b32 {v(he[j][r])}, 16, {v(he[j][r])}")
                    A(f"v_add_u32 {v(T)}, {v(T)}, {v(he[j][r])}")
                    A(f"v_mul_u32_u24 {v(rp[j][r])}, 80, {v(T)}")
            ones = 64
            for r in range(4): A(f"v_mov_b32 {v(ones+r)}, 0x3f803f80")
            A(f"s_lshl_b32 s34, s28, 10")
            A(f"v_lshl_add_u32 {v(vO)}, {v(lane)}, 4, s34")
            A("s_waitcnt lgkmcnt(0)")
            A("s_barrier")
            P = [[0, 4], [8, 12]]; Z = [16, 20]
            F = lambda ks, t: 80 + 16 * (ks % 2) + 4 * t
            def rdf(ks):
                A(f"ds_read_b128 {v(F(ks,0),4)}, {v(vO)} offset:{10240*ks}")
                A(f"ds_read_b128 {v(F(ks,1),4)}, {v(vO)} offset:{10240*ks + 1024}")
                A(f"ds_read_b128 {v(F(ks,2),4)}, {v(vO)} offset:{10240*ks + 5120}")
                A(f"ds_read_b128 {v(F(ks,3),4)}, {v(vO)} offset:{10240*ks + 6144}")
            rdf(0); rdf(1)
            for ks in range(4):
                A(f"s_waitcnt lgkmcnt({4 if ks < 3 else 0})")
                for a in range(2):
                    for b in range(2):
                        c = v(P[a][b], 4) if ks else "0"
                        A(f"v_mfma_f32_16x16x32_bf16 {v(P[a][b],4)}, {v(F(ks,2+a),4)}, {v(F(ks,b),4)}, {c}")
                for b in range(2):
                    c = v(Z[b], 4) if ks else "0"
                    A(f"v_mfma_f32_16x16x32_bf16 {v(Z[b],4)}, {v(ones,4)}, {v(F(ks,b),4)}, {c}")
                if ks + 2 < 4: rdf(ks + 2)
            A(f"s_mul_i32 s34, {ct}, {4*21*20*4}")
            A(f"s_add_u32 s34, s34, {WS_KV}")
            A(f"s_add_u32 s44, s50, s34")
            A(f"s_addc_u32 s45, s51, 0")
            A(f"s_mov_b32 s46, {4*21*20*4}")
            A(f"s_mov_b32 s47, 0x20000")
            lz = A.newlabel("L_g_z"); lzo = A.newlabel("L_g_zo")
            A(f"v_mov_b32 {v(T)}, 4")
            A.label(lz)
            A(f"global_load_dword {v(T+1)}, {v(T)}, s[48:49] sc1")
            A("s_waitcnt vmcnt(0)")
            A(f"v_readfirstlane_b32 s34, {v(T+1)}")
            A("s_cmp_lg_u32 s34, 0")
            A(f"s_cbranch_scc1 {lzo}")
            A("s_sleep 2")
            A(f"s_branch {lz}")
            A.label(lzo)
            A.fence()
            A(f"v_mov_b32 {v(T+2)}, 0x7ffffff0")
            lsk = A.newlabel("L_g_sk")
            def atom(a, b):
                for r in range(4):
                    tt = 68 + (r % 4)
                    A(f"v_cmp_eq_u32 vcc, {v(he[a][r])}, {v(hd[b])}")
                    A(f"v_add_u32 {v(tt)}, {v(rp[a][r])}, {v(cp[b])}")
                    A(f"v_cndmask_b32 {v(tt)}, {v(T+2)}, {v(tt)}, vcc")
                    A(f"buffer_atomic_add_f32 {v(P[a][b]+r)}, {v(tt)}, s[44:47], 0 offen")
            def atomz(b):
                tt = 72 + b
                A(f"v_mul_u32_u24 {v(tt)}, {21*80}, {v(hd[b])}")
                A(f"v_add3_u32 {v(tt)}, {v(tt)}, {v(cp[b])}, {v(T+3)}")
                A(f"v_cmp_eq_u32 vcc, 0, {v(vq)}")
                A(f"v_cndmask_b32 {v(tt)}, {v(T+2)}, {v(tt)}, vcc")
                A(f"buffer_atomic_add_f32 {v(Z[b])}, {v(tt)}, s[44:47], 0 offen")
            A(f"v_mov_b32 {v(T+3)}, 1600")
            atom(0, 1); atom(1, 0); atom(1, 1); atomz(1)
            A("s_cmp_lg_u32 s28, 0")
            A(f"s_cbranch_scc1 {lsk}")
            atom(0, 0); atomz(0)
            A.label(lsk)
            if done_label is None:
                ends["fin0"] = A.newlabel("L_g_fin0")
                A(f"s_branch {ends['fin0']}")
            else:
                A(f"s_branch {done_label}")
    if done_label is None:
        A.label(ends["fin"])
        A.label(ends["fin0"])
    if stamp_task is not None:
        A("s_waitcnt vmcnt(0)")
        stamp()
        A("s_waitcnt lgkmcnt(0)")
        A(f"s_lshl_b32 s36, {stamp_task}, 3")
        A(f"s_add_u32 s36, s36, s28")
        A(f"s_lshl_b32 s36, s36, 6")
        A(f"s_add_u32 s36, s36, {WS_STAMP}")
        A(f"v_mov_b32 v1, s36")
        for k, sidx in enumerate((0, 2, 3)):
            pass
        for k in stamps:
            A(f"v_mov_b32 v2, s{64+2*k}")
            A(f"global_store_dword v1, v2, s[50:51] offset:{4*k}")
    return 128, GEMM_LDS

def gen_zero(A):
    A(f"""
    s_load_dwordx4 s[48:51], s[0:1], 112
    v_lshlrev_b32 v1, 4, v0
    v_mov_b32 v4, 0
    v_mov_b32 v5, 0
    v_mov_b32 v6, 0
    v_mov_b32 v7, 0
    s_waitcnt lgkmcnt(0)
    s_add_u32 s44, s50, {WS_KV}
    s_addc_u32 s45, s51, 0
    s_mov_b32 s46, {KV_BYTES}
    s_mov_b32 s47, 0x20000
    """)
    n = (KV_BYTES + 4095) // 4096
    for k in range(n):
        A(f"s_mov_b32 s34, {4096*k}")
        A(f"buffer_store_dwordx4 v[4:7], v1, s[44:47], s34 offen sc0 sc1")
    A("s_waitcnt vmcnt(0)")
    A("s_barrier")
    A("v_mov_b32 v2, 4")
    A("v_mov_b32 v3, 1")
    A("v_cmp_eq_u32 vcc, 0, v0")
    l = A.newlabel("L_z")
    A("s_and_saveexec_b64 s[34:35], vcc")
    A(f"s_cbranch_execz {l}")
    A("global_store_dword v2, v3, s[48:49] sc0 sc1")
    A.label(l)
    A("s_mov_b64 exec, s[34:35]")

if __name__ == "__main__":
    import sys
    st = len(sys.argv) > 2
    if len(sys.argv) > 3: ABL.update(sys.argv[3].split(","))
    A = Asm()
    name = "gated_mix__ssm_conv_s4__linear_attn_block__prompt_kernel"
    A(f"s_cmp_ge_u32 s2, 193")
    A("s_cbranch_scc1 L_end")
    A(f"s_cmp_eq_u32 s2, 192")
    A("s_cbranch_scc1 L_zero")
    A("s_and_b32 s5, s2, 7")
    A("s_lshr_b32 s6, s2, 3")
    A(f"s_mul_i32 s7, s6, 43")
    A("s_lshr_b32 s7, s7, 8")
    A("s_mul_i32 s4, s7, 6")
    A("s_sub_u32 s4, s6, s4")
    A("s_lshr_b32 s3, s5, 1")
    A("s_lshl_b32 s3, s3, 2")
    A("s_add_u32 s3, s3, s7")
    A("s_and_b32 s5, s5, 1")
    A("s_mul_i32 s5, s5, 6")
    A("s_mov_b32 s6, s4")
    A("s_add_u32 s4, s4, s5")
    A("s_mov_b32 s90, 0")
    A.label("L_again")
    nv, lds = gen_gemm(A, "s3", "s4", stamp_task="s2" if st else None, pre=("s6", "s7"))
    A("s_branch L_end")
    A.label("L_zero")
    gen_zero(A)
    A.label("L_end")
    A("s_endpgm")
    out = f"; @launch grid=(193,1,1) block=(256,1,1) lds={lds}\n"
    out += '.amdgcn_target "amdgcn-amd-amdhsa--gfx950"\n.text\n' + kernel_header(name) + A.text()
    out += '.section .rodata,"a"\n' + kernel_desc(name, nv, 96)
    open(sys.argv[1], "w").write(out)
    print("vgprs", nv, "lds", lds, "lines", len(A.lines))
```

```python
import numpy as np
from asmlib import *
from s4 import Regs, v, f2u
from s4b import WS_PQ, WS_KV, WS_STAMP
from gemm import gen_zero, KV_BYTES
from final import WS_PQF

SLOT = 10240
ABASE = 0
BBASE = 16384
GEMM_LDS = 47104
ABL = set()

def phi_pair(A, x0, x1, t, c1, out):
    assert x1 == x0 + 1
    A(f"v_cvt_pk_bf16_f32 {v(out)}, {v(x0)}, {v(x1)}")
    A(f"v_lshlrev_b32 {v(x0)}, 16, {v(out)}")
    A(f"v_and_b32 {v(x1)}, 0xffff0000, {v(out)}")
    A(f"v_pk_mul_f32 {v(t,2)}, {v(x0,2)}, {c1}")
    A(f"v_exp_f32 {v(t)}, {v(t)} clamp")
    A(f"v_exp_f32 {v(t+1)}, {v(t+1)} clamp")
    A(f"v_max_f32 {v(x0)}, 0, {v(x0)}")
    A(f"v_max_f32 {v(x1)}, 0, {v(x1)}")
    A(f"v_pk_add_f32 {v(x0,2)}, {v(x0,2)}, {v(t,2)}")
    A(f"v_cvt_pk_bf16_f32 {v(out)}, {v(x0)}, {v(x1)}")
    A(f"v_lshlrev_b32 {v(x0)}, 16, {v(out)}")
    A(f"v_and_b32 {v(x1)}, 0xffff0000, {v(out)}")
    A(f"v_pk_add_f32 {v(x0,2)}, {v(x0,2)}, s[58:59]")
    A(f"v_cvt_pk_bf16_f32 {v(out)}, {v(x0)}, {v(x1)}")

def gen_gemm(A, rb="s3", ct="s4", sc="", done_label=None, stamp_task=None, pre=None):
    stamps = []
    def stamp():
        if stamp_task is None: return
        k = len(stamps); stamps.append(k)
        A(f"s_memtime s[{64+2*k}:{65+2*k}]")
    A(f"""
    s_load_dwordx2 s[8:9], s[0:1], 0
    s_load_dwordx2 s[12:13], s[0:1], 80
    s_load_dwordx4 s[48:51], s[0:1], 112
    """)
    stamp()
    ACC = [[4 * (2 * nt + rt) for rt in range(2)] for nt in range(10)]
    BF = [80 + 4 * k for k in range(10)]
    AF = [[120 + 8 * k, 124 + 8 * k] for k in range(3)]
    vDA, vDB, vBe, vBo, vAr = 144, 145, 146, 147, 148
    NV = 149
    tid = 10; lane = 11; t1 = 12; t2 = 13; t3 = 14; vi = 15; vq = 16
    A(f"v_mov_b32 {v(tid)}, v0")
    A(f"v_and_b32 {v(lane)}, 63, v0")
    A(f"v_lshrrev_b32 {v(t1)}, 6, v0")
    A(f"v_readfirstlane_b32 s28, {v(t1)}")
    A(f"v_and_b32 {v(vi)}, 15, {v(lane)}")
    A(f"v_lshrrev_b32 {v(vq)}, 4, {v(lane)}")
    A(f"s_mul_i32 s30, {ct}, 160")
    A(f"s_add_u32 s31, s30, {2560 - 160}")
    A(f"s_add_u32 s30, s30, 1280")
    A(f"s_sub_u32 s32, {ct}, 8")
    A(f"s_mul_i32 s32, s32, 320")
    A(f"s_cmp_ge_u32 {ct}, 8")
    A(f"s_cselect_b32 s30, s32, s30")
    A(f"s_cselect_b32 s31, s32, s31")
    A(f"s_lshl_b32 s33, {rb}, 7")
    A(f"s_lshl_b32 s34, s28, 5")
    A(f"s_add_u32 s33, s33, s34")
    A("s_mov_b32 s45, 0x78")
    A(f"v_lshrrev_b32 {v(t1)}, 2, {v(lane)}")
    A(f"v_lshrrev_b32 {v(t2)}, 4, {v(lane)}")
    A(f"v_lshlrev_b32 {v(t2)}, 1, {v(t2)}")
    A(f"v_lshrrev_b32 {v(t2)}, {v(t2)}, s45")
    A(f"v_xor_b32 {v(t2)}, {v(t2)}, {v(lane)}")
    A(f"v_and_b32 {v(t2)}, 3, {v(t2)}")
    A(f"v_add_u32 {v(t1)}, s33, {v(t1)}")
    A(f"v_mul_u32_u24 {v(t1)}, 1280, {v(t1)}")
    A(f"v_lshl_add_u32 {v(vDA)}, {v(t2)}, 4, {v(t1)}")
    A(f"v_lshrrev_b32 {v(t2)}, 2, {v(vi)}")
    A(f"v_lshlrev_b32 {v(t2)}, 1, {v(t2)}")
    A(f"v_lshrrev_b32 {v(t2)}, {v(t2)}, s45")
    A(f"v_xor_b32 {v(t2)}, {v(t2)}, {v(vq)}")
    A(f"v_and_b32 {v(t2)}, 3, {v(t2)}")
    A(f"v_lshlrev_b32 {v(t1)}, 6, {v(vi)}")
    A(f"v_lshl_add_u32 {v(t1)}, {v(t2)}, 4, {v(t1)}")
    A(f"s_lshl_b32 s42, s28, 12")
    A(f"s_add_u32 s42, s42, {ABASE}")
    A(f"v_add_u32 {v(vAr)}, s42, {v(t1)}")
    A(f"v_mul_u32_u24 {v(t1)}, 3277, {v(lane)}")
    A(f"v_lshrrev_b32 {v(t1)}, 16, {v(t1)}")
    A(f"v_mul_u32_u24 {v(t2)}, 20, {v(t1)}")
    A(f"v_sub_u32 {v(t2)}, {v(lane)}, {v(t2)}")
    A(f"s_and_b32 s34, s28, 1")
    A(f"s_lshl_b32 s34, s34, 1")
    A(f"v_xor_b32 {v(t2)}, s34, {v(t2)}")
    A(f"v_cmp_gt_u32 vcc, 10, {v(t2)}")
    A(f"v_mov_b32 {v(t3)}, s31")
    A(f"v_mov_b32 {v(vDB)}, s30")
    A(f"v_cndmask_b32 {v(t3)}, {v(t3)}, {v(vDB)}, vcc")
    A(f"v_lshl_add_u32 {v(t3)}, {v(t2)}, 4, {v(t3)}")
    A(f"s_lshl_b32 s34, s28, 3")
    A(f"v_add_u32 {v(t1)}, s34, {v(t1)}")
    A(f"v_mul_u32_u24 {v(t1)}, 3840, {v(t1)}")
    A(f"v_add_u32 {v(vDB)}, {v(t1)}, {v(t3)}")
    A(f"v_lshrrev_b32 {v(t1)}, 2, {v(vi)}")
    A(f"v_lshl_add_u32 {v(t1)}, {v(vq)}, 3, {v(t1)}")
    A(f"v_mul_u32_u24 {v(t1)}, 320, {v(t1)}")
    A(f"v_and_b32 {v(t2)}, 3, {v(vi)}")
    A(f"v_lshl_add_u32 {v(t1)}, {v(t2)}, 3, {v(t1)}")
    A(f"v_and_b32 {v(t2)}, 1, {v(vq)}")
    A(f"v_lshlrev_b32 {v(t2)}, 5, {v(t2)}")
    A(f"v_add_u32 {v(vBe)}, {v(t1)}, {v(t2)}")
    A(f"v_sub_u32 {v(vBo)}, {v(t1)}, {v(t2)}")
    A(f"s_mul_i32 s35, s28, 2560")
    A(f"s_add_u32 s35, s35, {BBASE}")
    A("s_mov_b32 s60, -1")
    A("s_mov_b32 s61, 0x0fffffff")
    A("s_mov_b32 s62, -1")
    A("s_mov_b32 s63, 0xff")
    A("s_waitcnt lgkmcnt(0)")
    A(f"""
    s_mov_b32 s10, 2621440
    s_mov_b32 s11, 0x20000
    s_mov_b32 s14, 2457600
    s_mov_b32 s15, 0x20000
    """)
    if pre is not None:
        pa, pb = pre
        A(f"s_mul_i32 s34, {rb}, 163840")
        A(f"s_mul_i32 s39, {pa}, {214*128}")
        A(f"s_add_u32 s34, s34, s39")
        A(f"v_min_u32 {v(t1)}, 213, {v(tid)}")
        A(f"v_lshl_add_u32 {v(t1)}, {v(t1)}, 7, s34")
        A(f"buffer_load_dword {v(80)}, {v(t1)}, s[8:11], 0 offen")
        for it in range(3):
            A(f"v_add_u32 {v(t1)}, {256*it}, {v(tid)}")
            A(f"v_min_u32 {v(t1)}, 639, {v(t1)}")
            A(f"v_lshrrev_b32 {v(t2)}, 2, {v(t1)}")
            A(f"s_mul_i32 s34, {pb}, 160")
            A(f"v_add_u32 {v(t2)}, s34, {v(t2)}")
            A(f"v_mul_u32_u24 {v(t2)}, 3840, {v(t2)}")
            A(f"v_and_b32 {v(t3)}, 1, {v(t1)}")
            A(f"v_mul_u32_u24 {v(t3)}, 156, {v(t3)}")
            A(f"v_add_u32 {v(t2)}, {v(t2)}, {v(t3)}")
            A(f"v_and_b32 {v(t1)}, 2, {v(t1)}")
            A(f"v_cmp_eq_u32 vcc, 0, {v(t1)}")
            A(f"s_add_u32 s34, s31, 160")
            A(f"v_mov_b32 {v(t1)}, s34")
            A(f"v_mov_b32 {v(t3)}, s30")
            A(f"v_cndmask_b32 {v(t1)}, {v(t1)}, {v(t3)}, vcc")
            A(f"v_add_u32 {v(t2)}, {v(t2)}, {v(t1)}")
            A(f"buffer_load_dword {v(81+it)}, {v(t2)}, s[12:15], 0 offen")
    A("s_mov_b32 s36, 0")
    A("s_mov_b32 s37, 20480")
    A("s_mov_b32 s38, 0")
    A("s_mov_b32 s43, s42")
    A("s_add_u32 s44, s42, 1024")
    def issueA(rt):
        if "A" in ABL: return
        so, sd = ("s36", "s43") if rt == 0 else ("s37", "s44")
        A(f"s_mov_b32 m0, {sd}")
        A(f"s_xor_b32 {sd}, {sd}, 2048")
        A(f"buffer_load_dwordx4 {v(vDA)}, s[8:11], {so} offen lds")
        A(f"s_add_u32 {so}, {so}, 64")
    def issueBp(slot, j):
        if "B" in ABL: return
        A(f"s_add_u32 m0, s35, {slot*SLOT + 960*j}")
        A("s_mov_b64 exec, s[%s]" % ("62:63" if j == 2 else "60:61"))
        A(f"buffer_load_dwordx4 {v(vDB)}, s[12:15], s38 offen lds")
        A("s_mov_b64 exec, -1")
        A(f"s_add_u32 s38, s38, {11520 if j < 2 else 32*3840 - 23040}")
    def issueB(slot):
        for j in range(3): issueBp(slot, j)
    def rdB(nt, slot):
        if "rd" in ABL: return
        base = vBe if nt % 2 == 0 else vBo
        o = BBASE + slot * SLOT + nt * 32
        A(f"ds_read_b64_tr_b16 {v(BF[nt],2)}, {v(base)} offset:{o}")
        A(f"ds_read_b64_tr_b16 {v(BF[nt]+2,2)}, {v(base)} offset:{o+1280}")
    VM = 5 - (2 if "A" in ABL else 0) - (3 if "B" in ABL else 0)
    issueB(0); issueA(0); issueA(1); issueB(1); issueA(0); issueA(1); issueB(2)
    for r in range(80):
        A(f"v_mov_b32 {v(r)}, 0")
    A("s_mov_b32 s41, 0")
    A(f"s_waitcnt vmcnt({VM + (0 if 'B' in ABL else 3)})")
    A("s_barrier")
    A(f"ds_read_b128 {v(AF[0][0],4)}, {v(vAr)}")
    A(f"ds_read_b128 {v(AF[0][1],4)}, {v(vAr)} offset:1024")
    for nt in range(10): rdB(nt, 0)
    A(f"v_xor_b32 {v(vAr)}, 2048, {v(vAr)}")
    A("s_waitcnt lgkmcnt(0)")
    issueA(0); issueA(1)
    stamp()
    lq = A.newlabel("L_g_q")
    A(f"s_cmp_ge_u32 {ct}, 8")
    A(f"s_cbranch_scc1 {lq}")
    ends = {}
    ns0 = len(stamps)
    for variant in ("kv", "q"):
        del stamps[ns0:]
        if variant == "q": A.label(lq)
        loop = A.newlabel("L_g_loop"); ex = A.newlabel("L_g_exit")
        A.label(loop)
        def mf(nt, rt, st):
            if "mfma" in ABL: return
            a = v(AF[st][rt], 4); b = v(BF[nt], 4); c = v(ACC[nt][rt], 4)
            if variant == "kv": A(f"v_mfma_f32_16x16x32_bf16 {c}, {a}, {b}, {c}")
            else: A(f"v_mfma_f32_16x16x32_bf16 {c}, {b}, {a}, {c}")
        for st in range(3):
            nx = (st + 1) % 3
            A("s_waitcnt lgkmcnt(14)")
            for nt in range(2):
                mf(nt, 0, st); mf(nt, 1, st)
            A(f"s_waitcnt vmcnt({VM}) lgkmcnt(0)")
            A("s_barrier")
            A(f"ds_read_b128 {v(AF[nx][0],4)}, {v(vAr)}")
            A(f"ds_read_b128 {v(AF[nx][1],4)}, {v(vAr)} offset:1024")
            for nt in range(2, 10):
                mf(nt, 0, st)
                if nt == 2: rdB(0, nx)
                if nt == 3: rdB(1, nx)
                if nt == 2: issueBp(st, 0)
                if nt == 4: issueBp(st, 1)
                if nt == 5:
                    A("s_waitcnt lgkmcnt(10)")
                    issueA(0)
                if nt == 6: issueBp(st, 2)
                if nt == 8: issueA(1)
                mf(nt, 1, st)
                rdB(nt, nx)
            A(f"v_xor_b32 {v(vAr)}, 2048, {v(vAr)}")
            if st == 1:
                A("s_cmp_eq_u32 s41, 6")
                A(f"s_cbranch_scc1 {ex}")
        A("s_add_u32 s41, s41, 1")
        A(f"s_branch {loop}")
        A.label(ex)
        A.fence()
        if "again" in ABL:
            l2 = A.newlabel("L_g_2")
            A("s_waitcnt vmcnt(0) lgkmcnt(0)")
            A("s_barrier")
            A("s_cmp_eq_u32 s90, 1")
            A(f"s_cbranch_scc1 {l2}")
            A("s_mov_b32 s90, 1")
            A("v_mbcnt_lo_u32_b32 v0, -1, 0")
            A("v_mbcnt_hi_u32_b32 v0, -1, v0")
            A("s_lshl_b32 s91, s28, 6")
            A("v_add_u32 v0, s91, v0")
            A("s_branch L_again")
            A.label(l2)
        stamp()
        A(f"s_mov_b32 s56, {f2u(1.4426950408889634)}")
        A(f"s_mov_b32 s57, {f2u(1.4426950408889634)}")
        A(f"s_mov_b32 s58, {f2u(1e-6)}")
        A(f"s_mov_b32 s59, {f2u(1e-6)}")
        A("s_waitcnt lgkmcnt(0)")
        lane = 144; vi = 145; vq = 146; vO = 147; vO2 = 148
        A(f"v_mbcnt_lo_u32_b32 {v(lane)}, -1, 0")
        A(f"v_mbcnt_hi_u32_b32 {v(lane)}, -1, {v(lane)}")
        A(f"v_and_b32 {v(vi)}, 15, {v(lane)}")
        A(f"v_lshrrev_b32 {v(vq)}, 4, {v(lane)}")
        if variant == "q":
            T = 120
            VO = [124 + k for k in range(5)]
            A(f"s_lshr_b32 s34, s33, 4")
            A(f"s_lshl_b32 s34, s34, 5")
            A(f"s_sub_u32 s36, {ct}, 8")
            A(f"s_lshl_b32 s36, s36, 3")
            A(f"s_add_u32 s34, s34, s36")
            A(f"s_mul_i32 s34, s34, 768")
            A(f"s_add_u32 s34, s34, {WS_PQF}")
            A(f"s_add_u32 s44, s50, {32*768}")
            A(f"s_addc_u32 s45, s51, 0")
            A(f"v_lshl_add_u32 {v(vO)}, {v(vi)}, 4, s34")
            for k in range(5):
                A(f"v_add_u32 {v(T)}, {4*k}, {v(vq)}")
                A(f"v_mul_u32_u24 {v(T+1)}, 13108, {v(T)}")
                A(f"v_lshrrev_b32 {v(T+1)}, 16, {v(T+1)}")
                A(f"v_mul_u32_u24 {v(T+2)}, 5, {v(T+1)}")
                A(f"v_sub_u32 {v(T)}, {v(T)}, {v(T+2)}")
                A(f"v_mul_u32_u24 {v(T+1)}, 768, {v(T+1)}")
                A(f"v_lshrrev_b32 {v(T+2)}, 1, {v(T)}")
                A(f"v_lshl_add_u32 {v(T+1)}, {v(T+2)}, 8, {v(T+1)}")
                A(f"v_and_b32 {v(T)}, 1, {v(T)}")
                A(f"v_lshl_add_u32 {v(T+1)}, {v(T)}, 3, {v(T+1)}")
                A(f"v_add_u32 {v(VO[k])}, {v(T+1)}, {v(vO)}")
            k = 0
            for rt in range(2):
                for nt in range(10):
                    o = 80 + 2 * (k % 8); tt = 100 + 2 * (k % 4); k += 1
                    a0 = ACC[nt][rt]
                    phi_pair(A, a0, a0 + 1, tt, "s[56:57]", o)
                    phi_pair(A, a0 + 2, a0 + 3, tt, "s[56:57]", o + 1)
                    A(f"global_store_dwordx2 {v(VO[nt%5])}, {v(o,2)}, s[{'50:51' if rt == 0 else '44:45'}] offset:{3072*(nt//5)} {sc}")
            if done_label is None:
                ends["fin"] = A.newlabel("L_g_fin")
            A(f"s_branch {done_label or ends['fin']}")
        else:
            A("s_waitcnt vmcnt(0)")
            A("s_barrier")
            A(f"s_mul_i32 s34, s28, 10240")
            A(f"v_lshl_add_u32 {v(vO)}, {v(lane)}, 4, s34")
            A(f"v_mov_b32 {v(120)}, 4")
            A(f"global_load_dword {v(121)}, {v(120)}, s[48:49] sc1")
            k = 0
            for nt in list(range(5, 10)) + list(range(5)):
                o = 80 + 4 * (k % 4); tt = 100 + 2 * (k % 4); k += 1
                for rt in range(2):
                    a = ACC[nt][rt]
                    if nt < 5:
                        phi_pair(A, a, a + 1, tt, "s[56:57]", o + 2 * rt)
                        phi_pair(A, a + 2, a + 3, tt, "s[56:57]", o + 2 * rt + 1)
                    else:
                        A(f"v_cvt_pk_bf16_f32 {v(o+2*rt)}, {v(a)}, {v(a+1)}")
                        A(f"v_cvt_pk_bf16_f32 {v(o+2*rt+1)}, {v(a+2)}, {v(a+3)}")
                A(f"ds_write_b128 {v(vO)}, {v(o,4)} offset:{1024*nt}")
            hd = [40, 41]; cp = [42, 43]
            he = [[44 + 4 * j + r for r in range(4)] for j in range(2)]
            rp = [[52 + 4 * j + r for r in range(4)] for j in range(2)]
            T = 60
            A(f"s_lshl_b32 s34, s28, 10")
            A(f"v_lshl_add_u32 {v(vO)}, {v(lane)}, 4, s34")
            A("s_waitcnt lgkmcnt(0)")
            A("s_barrier")
            P = [[0, 4], [8, 12]]; Z = [16, 20]
            F = lambda ks, t: 80 + 16 * (ks % 2) + 4 * t
            def rdf(ks):
                A(f"ds_read_b128 {v(F(ks,0),4)}, {v(vO)} offset:{10240*ks}")
                A(f"ds_read_b128 {v(F(ks,1),4)}, {v(vO)} offset:{10240*ks + 1024}")
                A(f"ds_read_b128 {v(F(ks,2),4)}, {v(vO)} offset:{10240*ks + 5120}")
                A(f"ds_read_b128 {v(F(ks,3),4)}, {v(vO)} offset:{10240*ks + 6144}")
            rdf(0); rdf(1)
            ones = 64
            for r in range(4): A(f"v_mov_b32 {v(ones+r)}, 0x3f803f80")
            for ks in range(4):
                A(f"s_waitcnt lgkmcnt({4 if ks < 3 else 0})")
                for a in range(2):
                    for b in range(2):
                        c = v(P[a][b], 4) if ks else "0"
                        A(f"v_mfma_f32_16x16x32_bf16 {v(P[a][b],4)}, {v(F(ks,2+a),4)}, {v(F(ks,b),4)}, {c}")
                for b in range(2):
                    c = v(Z[b], 4) if ks else "0"
                    A(f"v_mfma_f32_16x16x32_bf16 {v(Z[b],4)}, {v(ones,4)}, {v(F(ks,b),4)}, {c}")
                if ks + 2 < 4: rdf(ks + 2)
            A(f"s_lshl_b32 s34, s28, 4")
            for j in range(2):
                A(f"v_add_u32 {v(T)}, s34, {v(vi)}")
                if j: A(f"v_add_u32 {v(T)}, 16, {v(T)}")
                A(f"v_mul_u32_u24 {v(hd[j])}, 3277, {v(T)}")
                A(f"v_lshrrev_b32 {v(hd[j])}, 16, {v(hd[j])}")
                A(f"v_mul_u32_u24 {v(T+1)}, 20, {v(hd[j])}")
                A(f"v_sub_u32 {v(T)}, {v(T)}, {v(T+1)}")
                A(f"v_lshlrev_b32 {v(cp[j])}, 2, {v(T)}")
                for r in range(4):
                    A(f"v_lshl_add_u32 {v(T)}, {v(vq)}, 2, s34")
                    A(f"v_add_u32 {v(T)}, {16*j + r}, {v(T)}")
                    A(f"v_mul_u32_u24 {v(he[j][r])}, 3277, {v(T)}")
                    A(f"v_lshrrev_b32 {v(he[j][r])}, 16, {v(he[j][r])}")
                    A(f"v_add_u32 {v(T)}, {v(T)}, {v(he[j][r])}")
                    A(f"v_mul_u32_u24 {v(rp[j][r])}, 80, {v(T)}")
            A(f"s_mul_i32 s34, {ct}, {4*21*20*4}")
            A(f"s_add_u32 s34, s34, {WS_KV}")
            A(f"s_add_u32 s44, s50, s34")
            A(f"s_addc_u32 s45, s51, 0")
            A(f"s_mov_b32 s46, {4*21*20*4}")
            A(f"s_mov_b32 s47, 0x20000")
            lz = A.newlabel("L_g_z"); lzo = A.newlabel("L_g_zo")
            A.label(lz)
            A("s_waitcnt vmcnt(0)")
            A(f"v_readfirstlane_b32 s34, {v(121)}")
            A("s_cmp_lg_u32 s34, 0")
            A(f"s_cbranch_scc1 {lzo}")
            A("s_sleep 2")
            A(f"global_load_dword {v(121)}, {v(120)}, s[48:49] sc1")
            A(f"s_branch {lz}")
            A.label(lzo)
            A.fence()
            A(f"v_mov_b32 {v(T+2)}, 0x7ffffff0")
            lsk = A.newlabel("L_g_sk")
            def atom(a, b):
                for r in range(4):
                    tt = 68 + (r % 4)
                    A(f"v_cmp_eq_u32 vcc, {v(he[a][r])}, {v(hd[b])}")
                    A(f"v_add_u32 {v(tt)}, {v(rp[a][r])}, {v(cp[b])}")
                    A(f"v_cndmask_b32 {v(tt)}, {v(T+2)}, {v(tt)}, vcc")
                    A(f"buffer_atomic_add_f32 {v(P[a][b]+r)}, {v(tt)}, s[44:47], 0 offen")
            def atomz(b):
                tt = 72 + b
                A(f"v_mul_u32_u24 {v(tt)}, {21*80}, {v(hd[b])}")
                A(f"v_add3_u32 {v(tt)}, {v(tt)}, {v(cp[b])}, {v(T+3)}")
                A(f"v_cmp_eq_u32 vcc, 0, {v(vq)}")
                A(f"v_cndmask_b32 {v(tt)}, {v(T+2)}, {v(tt)}, vcc")
                A(f"buffer_atomic_add_f32 {v(Z[b])}, {v(tt)}, s[44:47], 0 offen")
            A(f"v_mov_b32 {v(T+3)}, 1600")
            atom(0, 1); atom(1, 0); atom(1, 1); atomz(1)
            A("s_cmp_lg_u32 s28, 0")
            A(f"s_cbranch_scc1 {lsk}")
            atom(0, 0); atomz(0)
            A.label(lsk)
            if done_label is None:
                ends["fin0"] = A.newlabel("L_g_fin0")
                A(f"s_branch {ends['fin0']}")
            else:
                A(f"s_branch {done_label}")
    if done_label is None:
        A.label(ends["fin"])
        A.label(ends["fin0"])
    if stamp_task is not None:
        stamp()
        A("s_waitcnt vmcnt(0)")
        stamp()
        A("s_waitcnt lgkmcnt(0)")
        A(f"s_lshl_b32 s36, {stamp_task}, 3")
        A(f"s_add_u32 s36, s36, s28")
        A(f"s_lshl_b32 s36, s36, 6")
        A(f"s_add_u32 s36, s36, {WS_STAMP}")
        A(f"v_mov_b32 v1, s36")
        for k in stamps:
            A(f"v_mov_b32 v2, s{64+2*k}")
            A(f"global_store_dword v1, v2, s[50:51] offset:{4*k}")
    return NV, GEMM_LDS

if __name__ == "__main__":
    import sys
    st = len(sys.argv) > 2
    if len(sys.argv) > 3: ABL.update(sys.argv[3].split(","))
    A = Asm()
    name = "gated_mix__ssm_conv_s4__linear_attn_block__prompt_kernel"
    A(f"s_cmp_ge_u32 s2, 193")
    A("s_cbranch_scc1 L_end")
    A(f"s_cmp_eq_u32 s2, 192")
    A("s_cbranch_scc1 L_zero")
    A("s_and_b32 s5, s2, 7")
    A("s_lshr_b32 s6, s2, 3")
    A(f"s_mul_i32 s7, s6, 43")
    A("s_lshr_b32 s7, s7, 8")
    A("s_mul_i32 s4, s7, 6")
    A("s_sub_u32 s4, s6, s4")
    A("s_lshr_b32 s3, s5, 1")
    A("s_lshl_b32 s3, s3, 2")
    A("s_add_u32 s3, s3, s7")
    A("s_and_b32 s5, s5, 1")
    A("s_mul_i32 s5, s5, 6")
    A("s_mov_b32 s6, s4")
    A("s_add_u32 s4, s4, s5")
    A("s_mov_b32 s90, 0")
    A.label("L_again")
    nv, lds = gen_gemm(A, "s3", "s4", stamp_task="s2" if st else None, pre=None if "nopre" in ABL else ("s6", "s7"))
    A("s_branch L_end")
    A.label("L_zero")
    gen_zero(A)
    A.label("L_end")
    A("s_endpgm")
    out = f"; @launch grid=(193,1,1) block=(256,1,1) lds={lds}\n"
    out += '.amdgcn_target "amdgcn-amd-amdhsa--gfx950"\n.text\n' + kernel_header(name) + A.text()
    out += '.section .rodata,"a"\n' + kernel_desc(name, nv, 96)
    open(sys.argv[1], "w").write(out)
    print("vgprs", nv, "lds", lds, "lines", len(A.lines))
```

```python
import numpy as np
from asmlib import *

def f2u(x):
    return int(np.float32(x).view(np.uint32))

class Regs:
    def __init__(self, start, end):
        self.free = [True] * end
        for i in range(start): self.free[i] = False
        self.hi = start
    def alloc(self, n=1, align=None):
        if align is None: align = 1 if n == 1 else (2 if n == 2 else 4)
        i = 0
        while True:
            if i % align == 0 and i + n <= len(self.free) and all(self.free[i:i+n]):
                for k in range(i, i+n): self.free[k] = False
                self.hi = max(self.hi, i + n)
                return i
            i += 1
            if i >= len(self.free): raise RuntimeError("out of regs")
    def rel(self, i, n=1):
        for k in range(i, i+n):
            assert not self.free[k]
            self.free[k] = True

def v(i, n=1):
    return f"v{i}" if n == 1 else f"v[{i}:{i+n-1}]"

WS_AT = 0
STAMP = False
C0 = 0
C1 = 4164
KR = 8288
CH_STRIDE = 12864
ST_ROW = 544
ST_SIZE = 16 * ST_ROW

def gen_s4(A, G, wg_sreg="s2", nwg=None, exit_label="L_s4_end"):
    assert G in (2, 4)
    stamps = []
    def stamp():
        if not STAMP: return
        k = len(stamps); stamps.append(k)
        A(f"s_memtime s[{64+2*k}:{65+2*k}]")
    RPT = 16 // G
    ST_BASE = G * CH_STRIDE
    R = Regs(1, 256)
    L2E = f2u(1.4426950408889634)
    L2E_LO = f2u(1.4426950408889634 - float(np.float32(1.4426950408889634)))
    LN2 = f2u(0.6931471805599453)
    INV2PI = f2u(0.15915494309189535)
    A(f"""
    s_load_dwordx16 s[8:23], s[0:1], 0
    s_load_dwordx2 s[24:25], s[0:1], 64
    s_load_dwordx2 s[26:27], s[0:1], 120
    """)
    stamp()
    vLane = R.alloc(); vT = R.alloc(); vT2 = R.alloc()
    A(f"v_and_b32 {v(vLane)}, 63, v0")
    A(f"v_lshrrev_b32 {v(vT)}, 6, v0")
    A(f"v_readfirstlane_b32 s28, {v(vT)}")
    A(f"s_lshr_b32 s29, s28, 1")
    A(f"s_and_b32 s30, s28, 1")
    A(f"s_mul_i32 s31, {wg_sreg}, {G}")
    A(f"s_add_u32 s31, s31, s29")
    A(f"s_mul_i32 s32, s29, {CH_STRIDE}")
    A(f"s_mul_i32 s33, s28, {ST_SIZE}")
    A(f"s_add_u32 s33, s33, {ST_BASE}")
    A(f"s_xor_b32 s34, s28, 1")
    A(f"s_mul_i32 s34, s34, {ST_SIZE}")
    A(f"s_add_u32 s34, s34, {ST_BASE}")
    A(f"s_lshl_b32 s35, s31, 8")
    A(f"s_lshl_b32 s36, s30, 7")
    A(f"s_add_u32 s35, s35, s36")
    A(f"v_lshl_add_u32 {v(vT)}, {v(vLane)}, 1, s35")
    A(f"s_lshl_b32 s36, s31, 1")
    A(f"v_mov_b32 {v(vT2)}, s36")
    A("s_waitcnt lgkmcnt(0)")
    P = [R.alloc() for _ in range(8)]
    for k in range(6):
        A(f"global_load_ushort {v(P[k])}, {v(vT)}, s[{10+2*k}:{11+2*k}]")
    A(f"global_load_ushort {v(P[6])}, {v(vT2)}, s[22:23]")
    A(f"global_load_ushort {v(P[7])}, {v(vT2)}, s[24:25]")
    A(f"""
    s_mov_b32 s40, s8
    s_mov_b32 s41, s9
    s_mov_b32 s42, 2621440
    s_mov_b32 s43, 0x20000
    """)
    nd = G // 2
    U = [R.alloc(nd, nd) for _ in range(RPT + 1)]
    A(f"s_mul_i32 s36, {wg_sreg}, {2*G}")
    A(f"s_mov_b32 s37, {RPT*1280}")
    A(f"v_mul_lo_u32 {v(vT)}, v0, s37")
    A(f"v_add_u32 {v(vT)}, s36, {v(vT)}")
    A(f"v_subrev_u32 {v(vT2)}, 1280, {v(vT)}")
    ld = "buffer_load_dwordx2" if G == 4 else "buffer_load_dword"
    A(f"{ld} {v(U[0], nd)}, {v(vT2)}, s[40:43], 0 offen")
    for i in range(RPT):
        if i == 4:
            A(f"v_add_u32 {v(vT)}, 5120, {v(vT)}")
        A(f"{ld} {v(U[i+1], nd)}, {v(vT)}, s[40:43], 0 offen offset:{(i%4)*1280}")
    vI = R.alloc(); vQ = R.alloc()
    A(f"v_and_b32 {v(vI)}, 15, {v(vLane)}")
    A(f"v_lshrrev_b32 {v(vQ)}, 4, {v(vLane)}")
    vZ = R.alloc(2, 2)
    A(f"v_mov_b32 {v(vZ)}, 0")
    A(f"v_mov_b32 {v(vZ+1)}, 0")
    A(f"v_min_u32 {v(vT)}, 59, {v(vLane)}")
    A(f"v_lshl_add_u32 {v(vT)}, {v(vT)}, 3, s32")
    A(f"ds_write_b64 {v(vT)}, {v(vZ,2)} offset:{KR+4096}")
    A(f"v_min_u32 {v(vT)}, 7, {v(vLane)}")
    A(f"v_lshl_add_u32 {v(vT)}, {v(vT)}, 2, s32")
    A(f"ds_write_b32 {v(vT)}, {v(vZ)} offset:{C0}")
    A(f"v_min_u32 {v(vT)}, 6, {v(vLane)}")
    A(f"v_lshl_add_u32 {v(vT)}, {v(vT)}, 2, s32")
    A(f"ds_write_b32 {v(vT)}, {v(vZ)} offset:{C1}")
    R.rel(vZ, 2)
    SW = [R.alloc() for _ in range(8)]
    A(f"v_lshl_add_u32 {v(SW[0])}, {v(vLane)}, 2, s33")
    for k in range(1, 8):
        A(f"v_add_u32 {v(SW[k])}, {2*ST_ROW*k}, {v(SW[0])}")
    vSR = R.alloc()
    A(f"v_mul_u32_u24 {v(vSR)}, {ST_ROW}, {v(vI)}")
    A(f"v_lshl_add_u32 {v(vSR)}, {v(vQ)}, 4, {v(vSR)}")
    A(f"v_add_u32 {v(vSR)}, s33, {v(vSR)}")
    A(f"s_waitcnt vmcnt({RPT+1})")
    stamp()
    for k in range(8):
        A(f"v_lshlrev_b32 {v(P[k])}, 16, {v(P[k])}")
    Are, Aim, Bre, Bim, Cre, Cim, Ldt, Dsk = P
    A(f"s_mov_b32 s44, {L2E}")
    A(f"s_mov_b32 s45, {L2E_LO}")
    A(f"s_mov_b32 s46, {LN2}")
    A(f"s_mov_b32 s47, {INV2PI}")
    A(f"v_mul_f32 {v(vT)}, s44, {v(Ldt)}")
    A(f"v_fma_f32 {v(vT2)}, {v(Ldt)}, s44, -{v(vT)}")
    A(f"v_fma_f32 {v(vT2)}, {v(Ldt)}, s45, {v(vT2)}")
    A(f"v_exp_f32 {v(vT)}, {v(vT)}")
    A(f"v_mul_f32 {v(vT2)}, s46, {v(vT2)}")
    A(f"v_fma_f32 {v(vT)}, {v(vT)}, {v(vT2)}, {v(vT)}")
    A(f"v_cvt_pk_bf16_f32 {v(vT)}, {v(vT)}, {v(vT)}")
    A(f"v_lshlrev_b32 {v(Ldt)}, 16, {v(vT)}")
    dt = Ldt
    A(f"v_mul_f32 {v(Are)}, {v(dt)}, {v(Are)}")
    A(f"v_mul_f32 {v(Aim)}, {v(dt)}, {v(Aim)}")
    A(f"v_mul_f32 {v(Are)}, s44, {v(Are)}")
    A(f"v_mul_f32 {v(Aim)}, s47, {v(Aim)}")
    A(f"v_mul_f32 {v(Bre)}, {v(dt)}, {v(Bre)}")
    A(f"v_mul_f32 {v(Bim)}, {v(dt)}, {v(Bim)}")
    W = R.alloc(2, 2)
    A(f"v_mul_f32 {v(W)}, {v(Cre)}, {v(Bre)}")
    A(f"v_fma_f32 {v(W)}, -{v(Cim)}, {v(Bim)}, {v(W)}")
    A(f"v_mul_f32 {v(W+1)}, {v(Cre)}, {v(Bim)}")
    A(f"v_fma_f32 {v(W+1)}, {v(Cim)}, {v(Bre)}, {v(W+1)}")
    for r in (Bre, Bim, Cre, Cim, Ldt): R.rel(r)

    def cexp(x, conj=False):
        z = R.alloc(2, 2)
        xs = f2u(float(x))
        if x == 1:
            A(f"v_exp_f32 {v(vT)}, {v(Are)}")
            A(f"v_fract_f32 {v(vT2)}, {v(Aim)}")
        else:
            A(f"v_mul_f32 {v(vT)}, {xs}, {v(Are)}")
            A(f"v_mul_f32 {v(vT2)}, {xs}, {v(Aim)}")
            A(f"v_exp_f32 {v(vT)}, {v(vT)}")
            A(f"v_fract_f32 {v(vT2)}, {v(vT2)}")
        A(f"v_cos_f32 {v(z)}, {v(vT2)}")
        A(f"v_sin_f32 {v(z+1)}, {v(vT2)}")
        A(f"v_mul_f32 {v(z)}, {v(vT)}, {v(z)}")
        if conj:
            A(f"v_mul_f32 {v(z+1)}, -{v(vT)}, {v(z+1)}")
        else:
            A(f"v_mul_f32 {v(z+1)}, {v(vT)}, {v(z+1)}")
        return z
    def cmul(x, y, z=None):
        if z is None: z = R.alloc(2, 2)
        assert z != x and z != y
        A(f"v_pk_mul_f32 {v(z,2)}, {v(x,2)}, {v(y,2)} op_sel:[0,0] op_sel_hi:[1,0]")
        A(f"v_pk_fma_f32 {v(z,2)}, {v(x,2)}, {v(y,2)}, {v(z,2)} op_sel:[1,1,0] op_sel_hi:[0,1,1] neg_lo:[1,0,0]")
        return z
    TS = [R.alloc(2, 2) for _ in range(2)]
    HL = [R.alloc(2, 2) for _ in range(2)]
    cnt = [0]
    pending = []
    def drain(n=1):
        for _ in range(n):
            if pending: A(pending.pop(0))
    def swrite(x, row):
        k = cnt[0] & 1; cnt[0] += 1
        t = TS[k]; h = HL[k]; l = HL[k] + 1
        A(f"v_cvt_pk_bf16_f32 {v(h)}, {v(x)}, {v(x+1)}")
        A(f"v_lshlrev_b32 {v(t)}, 16, {v(h)}")
        A(f"v_and_b32 {v(t+1)}, 0xffff0000, {v(h)}")
        A(f"v_pk_add_f32 {v(t,2)}, {v(x,2)}, {v(t,2)} neg_lo:[0,1] neg_hi:[0,1]")
        A(f"v_cvt_pk_bf16_f32 {v(l)}, {v(t)}, {v(t+1)}")
        o = 136 * (row & 1)
        A(f"ds_write2_b32 {v(SW[row>>1])}, {v(h)}, {v(l)} offset0:{o} offset1:{o+64}")
        drain(1)
    Y = [None] * 16
    Y[1] = cexp(8, conj=True)
    one = R.alloc(2, 2)
    A(f"v_mov_b32 {v(one)}, 1.0")
    A(f"v_mov_b32 {v(one+1)}, 0")
    swrite(one, 0)
    R.rel(one, 2)
    swrite(Y[1], 1)
    Y[2] = cmul(Y[1], Y[1]); swrite(Y[2], 2)
    Y[3] = cmul(Y[2], Y[1]); swrite(Y[3], 3)
    Y[4] = cmul(Y[2], Y[2]); swrite(Y[4], 4)
    for j in (5, 6, 7):
        Y[j] = cmul(Y[4], Y[j-4]); swrite(Y[j], j)
    Y[8] = cmul(Y[4], Y[4]); swrite(Y[8], 8)
    tmp = [R.alloc(2, 2) for _ in range(2)]
    for j in range(9, 16):
        z = cmul(Y[8], Y[j-8], tmp[j & 1]); swrite(z, j)
    for j in range(1, 9): R.rel(Y[j], 2)
    Bh = [R.alloc(4, 4) for _ in range(4)]
    Bl = [R.alloc(4, 4) for _ in range(4)]
    for k in range(4):
        A(f"ds_read_b128 {v(Bh[k],4)}, {v(vSR)} offset:{64*k}")
        A(f"ds_read_b128 {v(Bl[k],4)}, {v(vSR)} offset:{64*k+256}")
    Ah = [R.alloc(4, 4) for _ in range(4)]
    Al = [R.alloc(4, 4) for _ in range(4)]
    KT = [R.alloc(4, 4) for _ in range(3)]
    def tile_reads():
        for k in range(4):
            A(f"ds_read_b128 {v(Ah[k],4)}, {v(vSR)} offset:{64*k}")
            A(f"ds_read_b128 {v(Al[k],4)}, {v(vSR)} offset:{64*k+256}")
    def tile_mfmas(T):
        out = []
        for k in range(4):
            c = "0" if k == 0 else v(KT[T], 4)
            out.append(f"v_mfma_f32_16x16x32_bf16 {v(KT[T],4)}, {v(Ah[k],4)}, {v(Bh[k],4)}, {c}")
            out.append(f"v_mfma_f32_16x16x32_bf16 {v(KT[T],4)}, {v(Al[k],4)}, {v(Bh[k],4)}, {v(KT[T],4)}")
            out.append(f"v_mfma_f32_16x16x32_bf16 {v(KT[T],4)}, {v(Ah[k],4)}, {v(Bl[k],4)}, {v(KT[T],4)}")
        return out
    Pw = cexp(128)
    P2 = cmul(Pw, Pw); P4 = cmul(P2, P2); P8 = cmul(P4, P4)
    V = [None] * 8
    V[0] = W
    V[1] = cmul(V[0], Pw); V[2] = cmul(V[0], P2); V[3] = cmul(V[1], P2)
    for i in range(4, 8): V[i] = cmul(V[i-4], P4)
    R.rel(Pw, 2); R.rel(P2, 2); R.rel(P4, 2)
    for q in range(4):
        for rho in range(2):
            i = 2 * q + rho
            z = cmul(V[i], P8, tmp[rho]); swrite(z, 4 * q + rho)
            if i == 0:
                z2 = R.alloc(2, 2); cmul(z, P8, z2); swrite(z2, 2); R.rel(z2, 2)
    R.rel(P8, 2)
    tile_reads()
    E = [None] * 8
    E[1] = cexp(1)
    E[2] = cmul(E[1], E[1]); E[3] = cmul(E[2], E[1]); E[4] = cmul(E[2], E[2])
    E[5] = cmul(E[4], E[1]); E[6] = cmul(E[4], E[2]); E[7] = cmul(E[4], E[3])
    A("s_waitcnt lgkmcnt(0)")
    pending += tile_mfmas(2)
    for q in range(4):
        base = V[2 + (q >> 1)]
        for rho in range(2):
            off = 4 * (q & 1) + 2 * rho
            if off == 0: swrite(base, 4 * q + rho)
            else:
                z = cmul(base, E[off], tmp[rho]); swrite(z, 4 * q + rho)
        swrite(V[4 + q], 4 * q + 2)
        z = cmul(V[4 + q], E[4], tmp[0]); swrite(z, 4 * q + 3)
    drain(100)
    for i in range(2, 8): R.rel(V[i], 2)
    tile_reads()
    pre = []
    pr = [R.alloc(2, 2) for _ in range(4)]
    for k, off in enumerate((1, 2, 3, 4)):
        cmul(V[0], E[off], pr[k])
    A("s_waitcnt lgkmcnt(0)")
    pending += tile_mfmas(1)
    swrite(V[0], 0)
    for k, off in enumerate((1, 2, 3, 4)): swrite(pr[k], off)
    for off in (5, 6, 7):
        z = cmul(V[0], E[off], tmp[off & 1]); swrite(z, off)
    swrite(V[1], 8)
    for off in range(1, 8):
        z = cmul(V[1], E[off], tmp[off & 1]); swrite(z, 8 + off)
    drain(100)
    for k in range(4): R.rel(pr[k], 2)
    for i in range(1, 8): R.rel(E[i], 2)
    R.rel(V[0], 2); R.rel(V[1], 2)
    tile_reads()
    stamp()
    A(f"s_waitcnt vmcnt(0)")
    stamp()
    if STAMP: A("s_waitcnt lgkmcnt(0)")
    selL = 0x05040100; selH = 0x07060302
    A(f"s_mov_b32 s44, {selL}")
    A(f"s_mov_b32 s45, {selH}")
    nw = RPT // 2
    UO = [R.alloc(nw, nw) for _ in range(2)]
    A(f"v_lshlrev_b32 {v(vT)}, {2 + (1 if nw == 2 else 2)}, v0")
    wr = "ds_write_b64" if nw == 2 else "ds_write_b128"
    for c in range(G):
        sel = "s44" if c % 2 == 0 else "s45"
        dw = c // 2
        for k in range(nw):
            A(f"v_perm_b32 {v(UO[0]+k)}, {v(U[2*k+2]+dw)}, {v(U[2*k+1]+dw)}, {sel}")
        A(f"{wr} {v(vT)}, {v(UO[0], nw)} offset:{c*CH_STRIDE + C0 + 32}")
        for k in range(nw):
            A(f"v_perm_b32 {v(UO[1]+k)}, {v(U[2*k+1]+dw)}, {v(U[2*k]+dw)}, {sel}")
        A(f"{wr} {v(vT)}, {v(UO[1], nw)} offset:{c*CH_STRIDE + C1 + 28}")
    A(f"s_waitcnt lgkmcnt({2*G})")
    for s in tile_mfmas(0): A(s)
    for k in range(2): R.rel(UO[k], nw)
    for k in range(RPT + 1): R.rel(U[k], nd)
    for k in range(4):
        R.rel(Ah[k], 4); R.rel(Al[k], 4); R.rel(Bh[k], 4); R.rel(Bl[k], 4)
    for k in range(8): R.rel(SW[k])
    vX = R.alloc(); vXp = R.alloc()
    A(f"v_lshl_add_u32 {v(vX)}, {v(vLane)}, 4, s33")
    A(f"v_lshl_add_u32 {v(vXp)}, {v(vLane)}, 4, s34")
    X1 = R.alloc(4, 4); X2 = R.alloc(4, 4)
    lh1 = A.newlabel("L_s4_h1"); lj = A.newlabel("L_s4_j")
    A("s_cmp_eq_u32 s30, 1")
    A.fence()
    A(f"s_cbranch_scc1 {lh1}")
    A(f"ds_write_b128 {v(vX)}, {v(KT[1],4)}")
    A(f"ds_write_b128 {v(vX)}, {v(KT[2],4)} offset:1024")
    A("s_waitcnt lgkmcnt(0)")
    A("s_barrier")
    A(f"ds_read_b128 {v(X1,4)}, {v(vXp)}")
    A(f"v_lshrrev_b32 {v(vT)}, 1, {v(vQ)}")
    A(f"v_lshlrev_b32 {v(vT)}, 8, {v(vT)}")
    A(f"v_and_b32 {v(vT2)}, 1, {v(vQ)}")
    A(f"v_lshl_add_u32 {v(vT)}, {v(vT2)}, 3, {v(vT)}")
    A(f"v_lshl_add_u32 {v(vT)}, {v(vI)}, 4, {v(vT)}")
    A(f"v_sub_u32 {v(vT)}, s32, {v(vT)}")
    A(f"v_add_u32 {v(vT)}, {KR + 4088}, {v(vT)}")
    A("s_waitcnt lgkmcnt(0)")
    A(f"v_pk_add_f32 {v(X1,2)}, {v(X1,2)}, {v(KT[0],2)}")
    A(f"v_pk_add_f32 {v(X1+2,2)}, {v(X1+2,2)}, {v(KT[0]+2,2)}")
    A(f"v_cvt_pk_bf16_f32 {v(X2)}, {v(X1+3)}, {v(X1+2)}")
    A(f"v_cvt_pk_bf16_f32 {v(X2+1)}, {v(X1+1)}, {v(X1)}")
    A(f"ds_write_b64 {v(vT)}, {v(X2,2)}")
    A(f"s_branch {lj}")
    A.label(lh1)
    A(f"ds_write_b128 {v(vX)}, {v(KT[0],4)}")
    A("s_waitcnt lgkmcnt(0)")
    A("s_barrier")
    A(f"ds_read_b128 {v(X1,4)}, {v(vXp)}")
    A(f"ds_read_b128 {v(X2,4)}, {v(vXp)} offset:1024")
    a3 = R.alloc(); a3f = R.alloc(); a2 = R.alloc(); a1 = R.alloc(); a1s = R.alloc()
    A(f"v_lshlrev_b32 {v(vT)}, 9, {v(vQ)}")
    A(f"v_lshl_add_u32 {v(vT)}, {v(vI)}, 4, {v(vT)}")
    A(f"v_sub_u32 {v(a3)}, s32, {v(vT)}")
    A(f"v_add_u32 {v(a3)}, {KR + 2040 - 256}, {v(a3)}")
    A(f"v_and_b32 {v(vT2)}, 1, {v(vI)}")
    A(f"v_lshl_add_u32 {v(a3f)}, {v(vT2)}, 1, {v(a3)}")
    A(f"v_subrev_u32 {v(a3f)}, 2, {v(a3f)}")
    A(f"v_lshlrev_b32 {v(vT)}, 8, {v(vQ)}")
    A(f"v_lshl_add_u32 {v(vT)}, {v(vI)}, 4, {v(vT)}")
    A(f"v_sub_u32 {v(a2)}, s32, {v(vT)}")
    A(f"v_add_u32 {v(a2)}, {KR + 3060}, {v(a2)}")
    A(f"v_lshrrev_b32 {v(vT)}, 1, {v(vQ)}")
    A(f"v_lshlrev_b32 {v(vT)}, 8, {v(vT)}")
    A(f"v_and_b32 {v(vT2)}, 1, {v(vQ)}")
    A(f"v_lshl_add_u32 {v(vT)}, {v(vT2)}, 3, {v(vT)}")
    A(f"v_lshl_add_u32 {v(vT)}, {v(vI)}, 4, {v(vT)}")
    A(f"v_sub_u32 {v(a1)}, s32, {v(vT)}")
    A(f"v_add_u32 {v(a1)}, {KR + 2*(2045-256)}, {v(a1)}")
    A(f"v_cmp_eq_u32 vcc, 0, {v(vLane)}")
    A(f"v_add_u32 {v(a1s)}, 6, {v(a1)}")
    A(f"v_add_u32 {v(vT)}, 2, {v(a1)}")
    A(f"v_cndmask_b32 {v(a1s)}, {v(a1s)}, {v(vT)}, vcc")
    A("s_waitcnt lgkmcnt(0)")
    for k in range(2):
        A(f"v_pk_add_f32 {v(X1+2*k,2)}, {v(X1+2*k,2)}, {v(KT[1]+2*k,2)}")
        A(f"v_pk_add_f32 {v(X2+2*k,2)}, {v(X2+2*k,2)}, {v(KT[2]+2*k,2)}")
    D = [R.alloc(2, 2) for _ in range(3)]
    for rho in range(3):
        A(f"v_cvt_pk_bf16_f32 {v(D[rho])}, {v(X2+rho)}, {v(X2+rho)}")
        A(f"v_mov_b32 {v(D[rho]+1)}, {v(D[rho])}")
    A(f"ds_write2_b64 {v(a3)}, {v(D[0],2)}, {v(D[0],2)} offset0:32 offset1:33")
    A(f"ds_write2_b64 {v(a3)}, {v(D[1],2)}, {v(D[1],2)} offset0:0 offset1:1")
    A(f"v_mov_b32 {v(vT)}, s32")
    A("s_mov_b64 exec, 1")
    A(f"ds_write_b64 {v(vT)}, {v(D[2],2)} offset:{KR}")
    A("s_mov_b64 exec, -1")
    A(f"ds_write_b16 {v(a3f)}, {v(D[0])} offset:256")
    A(f"ds_write_b16 {v(a3f)}, {v(D[1])}")
    A(f"v_cvt_pk_bf16_f32 {v(D[0])}, {v(X1+3)}, {v(X1+3)}")
    A(f"v_cvt_pk_bf16_f32 {v(D[0]+1)}, {v(X1+3)}, {v(X1+2)}")
    A(f"v_cvt_pk_bf16_f32 {v(D[1])}, {v(X1+2)}, {v(X1+2)}")
    A(f"ds_write2_b32 {v(a2)}, {v(D[0])}, {v(D[0]+1)} offset0:0 offset1:1")
    A(f"ds_write2_b32 {v(a2)}, {v(D[1])}, {v(D[1])} offset0:2 offset1:3")
    A(f"v_cvt_pk_bf16_f32 {v(D[2])}, {v(X1+1)}, {v(X1+1)}")
    A(f"v_cvt_pk_bf16_f32 {v(D[2]+1)}, {v(X1)}, {v(X1)}")
    A(f"ds_write_b16 {v(a1)}, {v(D[2])}")
    A(f"ds_write_b32 {v(a1)}, {v(D[2]+1)} offset:2")
    A(f"ds_write_b16 {v(a1s)}, {v(D[2]+1)}")
    for k in range(3): R.rel(D[k], 2)
    for r in (a3, a3f, a2, a1, a1s): R.rel(r)
    A.label(lj)
    R.rel(X1, 4); R.rel(X2, 4)
    for k in range(3): R.rel(KT[k], 4)
    for k in range(2): R.rel(TS[k], 2); R.rel(HL[k], 2); R.rel(tmp[k], 2)
    R.rel(vSR)
    vK = R.alloc(); vU = [R.alloc() for _ in range(4)]
    A(f"v_lshlrev_b32 {v(vT)}, 5, {v(vI)}")
    A(f"v_lshlrev_b32 {v(vT2)}, 4, {v(vQ)}")
    A(f"v_sub_u32 {v(vK)}, {v(vT2)}, {v(vT)}")
    A(f"s_lshl_b32 s36, s30, 8")
    A(f"s_add_u32 s36, s36, s32")
    A(f"s_add_u32 s37, s36, {KR + 480}")
    A(f"v_add_u32 {v(vK)}, s37, {v(vK)}")
    A(f"v_lshlrev_b32 {v(vT)}, 1, {v(vI)}")
    A(f"v_add_u32 {v(vT)}, {v(vT)}, {v(vT2)}")
    A(f"v_and_b32 {v(vT2)}, 1, {v(vI)}")
    A(f"v_cmp_eq_u32 vcc, 0, {v(vT2)}")
    A(f"v_mov_b32 {v(vU[0])}, {C0 + 2}")
    A(f"v_mov_b32 {v(vU[1])}, {C1}")
    A(f"v_cndmask_b32 {v(vU[0])}, {v(vU[0])}, {v(vU[1])}, vcc")
    A(f"v_add3_u32 {v(vU[0])}, {v(vU[0])}, {v(vT)}, s36")
    for k in range(1, 4):
        A(f"v_add_u32 {v(vU[k])}, {1024*k}, {v(vU[0])}")
    A("s_waitcnt lgkmcnt(0)")
    A("s_barrier")
    stamp()
    if STAMP: A("s_waitcnt lgkmcnt(0)")
    ACC = [R.alloc(4, 4) for _ in range(8)]
    NKS = 9; NUS = 5
    KS = [R.alloc(4, 4) for _ in range(NKS)]
    US = [R.alloc(4, 4) for _ in range(NUS)]
    ops = []
    for rr in range(4):
        if rr % 2 == 0:
            for m in range(8):
                for phi in range(8 - m): ops.append((rr, m, phi))
        else:
            for m in range(7, -1, -1):
                for phi in range(8 - m): ops.append((rr, m, phi))
    n = len(ops)
    first = {}; last = {}
    for idx, (rr, m, phi) in enumerate(ops):
        for key in (("K", rr, phi), ("U", rr, m)):
            first.setdefault(key, idx); last[key] = idx
    LEAD = 10
    loads = []
    for kind, nslots in (("K", NKS), ("U", NUS)):
        keys = sorted([k for k in first if k[0] == kind], key=lambda k: first[k])
        freeat = [-1] * nslots
        for k in keys:
            s = min(range(nslots), key=lambda s: freeat[s])
            assert freeat[s] < first[k], (k, freeat, first[k])
            issue = max(freeat[s] + 1, first[k] - LEAD, 0)
            loads.append((issue, first[k], k, s))
            freeat[s] = last[k]
    loads.sort()
    slot = {k: s for (_, _, k, s) in loads}
    issued = []
    done_upto = [0]
    li = 0
    started = set()
    for idx, (rr, m, phi) in enumerate(ops):
        while li < len(loads) and loads[li][0] <= idx:
            _, _, k, s = loads[li]; li += 1
            if k[0] == "K":
                A(f"ds_read_b128 {v(KS[s],4)}, {v(vK)} offset:{64*k[1] + 512*(7-k[2])}")
                issued.append(k)
            else:
                o = 16 * k[1] + 128 * (k[2] & 1)
                A(f"ds_read2_b32 {v(US[s],2)}, {v(vU[k[2]>>1])} offset0:{o} offset1:{o+1}")
                A(f"ds_read2_b32 {v(US[s]+2,2)}, {v(vU[k[2]>>1])} offset0:{o+2} offset1:{o+3}")
                issued.append(k); issued.append(k)
        needpos = max(len(issued) - 1 - issued[::-1].index(k) for k in (("K", rr, phi), ("U", rr, m)))
        if needpos + 1 > done_upto[0]:
            N = len(issued) - (needpos + 1)
            N = min(N, 15)
            A(f"s_waitcnt lgkmcnt({N})")
            done_upto[0] = len(issued) - N
        c = m + phi
        cc = v(ACC[c], 4) if c in started else "0"
        started.add(c)
        A(f"v_mfma_f32_16x16x32_bf16 {v(ACC[c],4)}, {v(US[slot[('U',rr,m)]],4)}, {v(KS[slot[('K',rr,phi)]],4)}, {cc}")
    stamp()
    if STAMP: A("s_waitcnt lgkmcnt(0)")
    Xr = [KS[k] for k in range(4)]
    Ur = [US[k] for k in range(4)]
    A(f"v_lshlrev_b32 {v(vT)}, 5, {v(vI)}")
    A(f"v_lshl_add_u32 {v(vT)}, {v(vQ)}, 3, {v(vT)}")
    A(f"s_lshl_b32 s36, s30, 11")
    A(f"s_add_u32 s37, s36, s32")
    A(f"v_add_u32 {v(vT2)}, s37, {v(vT)}")
    A(f"s_lshl_b32 s37, s31, 12")
    A(f"s_add_u32 s37, s37, s36")
    A(f"v_add_u32 {v(vT)}, s37, {v(vT)}")
    for k in range(4):
        A(f"ds_read_b64 {v(Ur[k],2)}, {v(vT2)} offset:{C0 + 32 + 512*k}")
    lh1 = A.newlabel("L_s4_e1"); lj = A.newlabel("L_s4_ej")
    A("s_cmp_eq_u32 s30, 1")
    A.fence()
    A(f"s_cbranch_scc1 {lh1}")
    for k in range(4):
        A(f"ds_write_b128 {v(vX)}, {v(ACC[4+k],4)} offset:{1024*k}")
    A(f"s_branch {lj}")
    A.label(lh1)
    for k in range(4):
        A(f"ds_write_b128 {v(vX)}, {v(ACC[k],4)} offset:{1024*k}")
    A("s_waitcnt lgkmcnt(0)")
    for k in range(4):
        for j in range(2):
            A(f"v_pk_mov_b32 {v(ACC[k]+2*j,2)}, {v(ACC[4+k]+2*j,2)}, {v(ACC[4+k]+2*j,2)} op_sel:[0,1]")
    A.label(lj)
    A("s_waitcnt lgkmcnt(0)")
    A("s_barrier")
    for k in range(4):
        A(f"ds_read_b128 {v(Xr[k],4)}, {v(vXp)} offset:{1024*k}")
    DS2 = R.alloc(2, 2)
    A(f"v_mov_b32 {v(DS2)}, {v(Dsk)}")
    A(f"v_mov_b32 {v(DS2+1)}, {v(Dsk)}")
    T4 = [KS[4], KS[5]]
    for k in range(4):
        t = T4[k & 1]
        u = Ur[k]
        A(f"v_lshlrev_b32 {v(t)}, 16, {v(u)}")
        A(f"v_and_b32 {v(t+1)}, 0xffff0000, {v(u)}")
        A(f"v_lshlrev_b32 {v(t+2)}, 16, {v(u+1)}")
        A(f"v_and_b32 {v(t+3)}, 0xffff0000, {v(u+1)}")
        A(f"v_pk_mul_f32 {v(t,2)}, {v(t,2)}, {v(DS2,2)}")
        A(f"v_pk_mul_f32 {v(t+2,2)}, {v(t+2,2)}, {v(DS2,2)}")
        A(f"v_cvt_pk_bf16_f32 {v(u)}, {v(t)}, {v(t+1)}")
        A(f"v_cvt_pk_bf16_f32 {v(u+1)}, {v(t+2)}, {v(t+3)}")
        A(f"v_lshlrev_b32 {v(t)}, 16, {v(u)}")
        A(f"v_and_b32 {v(t+1)}, 0xffff0000, {v(u)}")
        A(f"v_lshlrev_b32 {v(t+2)}, 16, {v(u+1)}")
        A(f"v_and_b32 {v(t+3)}, 0xffff0000, {v(u+1)}")
        A(f"s_waitcnt lgkmcnt({3-k})")
        x = Xr[k]
        A(f"v_pk_add_f32 {v(x,2)}, {v(x,2)}, {v(ACC[k],2)}")
        A(f"v_pk_add_f32 {v(x+2,2)}, {v(x+2,2)}, {v(ACC[k]+2,2)}")
        A(f"v_cvt_pk_bf16_f32 {v(u)}, {v(x)}, {v(x+1)}")
        A(f"v_cvt_pk_bf16_f32 {v(u+1)}, {v(x+2)}, {v(x+3)}")
        A(f"v_lshlrev_b32 {v(x)}, 16, {v(u)}")
        A(f"v_and_b32 {v(x+1)}, 0xffff0000, {v(u)}")
        A(f"v_lshlrev_b32 {v(x+2)}, 16, {v(u+1)}")
        A(f"v_and_b32 {v(x+3)}, 0xffff0000, {v(u+1)}")
        A(f"v_pk_add_f32 {v(x,2)}, {v(x,2)}, {v(t,2)}")
        A(f"v_pk_add_f32 {v(x+2,2)}, {v(x+2,2)}, {v(t+2,2)}")
        A(f"v_cvt_pk_bf16_f32 {v(u)}, {v(x)}, {v(x+1)}")
        A(f"v_cvt_pk_bf16_f32 {v(u+1)}, {v(x+2)}, {v(x+3)}")
        A(f"global_store_dwordx2 {v(vT)}, {v(u,2)}, s[26:27] offset:{512*k}")
    if STAMP:
        A("s_waitcnt vmcnt(0)")
        stamp()
        A("s_waitcnt lgkmcnt(0)")
        A(f"s_lshl_b32 s36, {wg_sreg}, 3")
        A(f"s_add_u32 s36, s36, s28")
        A(f"s_lshl_b32 s36, s36, 6")
        A(f"s_add_u32 s36, s36, 0x1000000")
        A(f"v_mov_b32 {v(vT)}, s36")
        for k in stamps:
            A(f"v_mov_b32 {v(vT2)}, s{64+2*k}")
            A(f"global_store_dword {v(vT)}, {v(vT2)}, s[26:27] offset:{4*k}")
        A(f"s_getreg_b32 s36, hwreg(HW_REG_HW_ID)")
        A(f"v_mov_b32 {v(vT2)}, s36")
        A(f"global_store_dword {v(vT)}, {v(vT2)}, s[26:27] offset:{4*14}")
        A(f"s_getreg_b32 s36, hwreg(HW_REG_XCC_ID)")
        A(f"v_mov_b32 {v(vT2)}, s36")
        A(f"global_store_dword {v(vT)}, {v(vT2)}, s[26:27] offset:{4*15}")
    return R.hi, G * CH_STRIDE + 2 * G * ST_SIZE

if __name__ == "__main__":
    import sys
    G = int(sys.argv[1]) if len(sys.argv) > 1 else 4
    STAMP = len(sys.argv) > 3
    A = Asm()
    name = "gated_mix__ssm_conv_s4__linear_attn_block__prompt_kernel"
    A(f"s_cmp_ge_u32 s2, {640//G}")
    A("s_cbranch_scc1 L_end")
    A("s_and_b32 s3, s2, 7")
    A(f"s_mul_i32 s3, s3, {80//G}")
    A("s_lshr_b32 s4, s2, 3")
    A("s_add_u32 s3, s3, s4")
    TWICE = len(sys.argv) > 4
    if TWICE:
        A("s_mov_b32 s5, 0")
        A("v_mov_b32 v255, v0")
        A.label("L_again")
        A("s_barrier")
    nv, lds = gen_s4(A, G, wg_sreg="s3")
    if TWICE:
        nv = 256
        A("s_waitcnt vmcnt(0) lgkmcnt(0)")
        A("s_add_u32 s5, s5, 1")
        A("s_cmp_lt_u32 s5, 2")
        A("s_cbranch_scc1 L_again")
    A.label("L_end")
    A("s_endpgm")
    out = f"; @launch grid=({640//G},1,1) block=({128*G},1,1) lds={lds}\n"
    out += '.amdgcn_target "amdgcn-amd-amdhsa--gfx950"\n.text\n' + kernel_header(name) + A.text()
    out += '.section .rodata,"a"\n' + kernel_desc(name, nv, 96)
    open(sys.argv[2] if len(sys.argv) > 2 else "s4test.s", "w").write(out)
    print("vgprs", nv, "lds", lds, "lines", len(A.lines))
```

```python
import numpy as np
from asmlib import *
from s4 import Regs, v, f2u

WS_AT = 0
WS_UT = 0x280000
WS_PQ = 0x500000
WS_G  = 0x790000
WS_KV = 0x7A0000
WS_STAMP = 0x1000000
WS_FLAG = 0x7C0000
STAMP = False
C0 = 0
C1 = 4164
KR = 8288
CH_END = 12864
ST_ROW = 288
ST_SIZE = 16 * ST_ROW
XB = CH_END
XCH_SIZE = 6144
S4_LDS = XB + 4 * XCH_SIZE
TP_ROW = 80

def gen_s4(A, task="s3"):
    stamps = []
    def stamp():
        if not STAMP: return
        k = len(stamps); stamps.append(k)
        A(f"s_memtime s[{64+2*k}:{65+2*k}]")
    R = Regs(1, 256)
    L2E = f2u(1.4426950408889634)
    L2E_LO = f2u(1.4426950408889634 - float(np.float32(1.4426950408889634)))
    LN2 = f2u(0.6931471805599453)
    INV2PI = f2u(0.15915494309189535)
    A(f"""
    s_load_dwordx16 s[8:23], s[0:1], 0
    s_load_dwordx2 s[24:25], s[0:1], 64
    s_load_dwordx4 s[48:51], s[0:1], 112
    """)
    stamp()
    vLane = R.alloc(); vT = R.alloc(); vT2 = R.alloc()
    A(f"v_and_b32 {v(vLane)}, 63, v0")
    A(f"v_lshrrev_b32 {v(vT)}, 6, v0")
    A(f"v_readfirstlane_b32 s28, {v(vT)}")
    A(f"s_mul_hi_u32 s29, {task}, {(1<<32)//20 + 1}")
    A(f"s_mul_i32 s30, s29, 20")
    A(f"s_sub_u32 s30, {task}, s30")
    A(f"s_mul_i32 s31, s29, {64*1280}")
    A(f"s_lshl_b32 s32, s30, 6")
    A(f"s_add_u32 s31, s31, s32")
    A(f"v_lshrrev_b32 {v(vT)}, 2, v0")
    A(f"v_and_b32 {v(vT2)}, 3, v0")
    vTW = R.alloc()
    A(f"v_mul_u32_u24 {v(vTW)}, {TP_ROW}, {v(vT)}")
    A(f"v_lshl_add_u32 {v(vTW)}, {v(vT2)}, 4, {v(vTW)}")
    A(f"v_mul_u32_u24 {v(vT)}, 1280, {v(vT)}")
    A(f"v_lshl_add_u32 {v(vT)}, {v(vT2)}, 4, {v(vT)}")
    A(f"v_add_u32 {v(vT)}, s31, {v(vT)}")
    TL = R.alloc(4, 4)
    A("s_waitcnt lgkmcnt(0)")
    A(f"global_load_dwordx4 {v(TL,4)}, {v(vT)}, s[8:9]")
    lnn = A.newlabel("L_s4_nn")
    A(f"s_or_b32 s36, {task}, s28")
    A("s_cmp_lg_u32 s36, 0")
    A(f"s_cbranch_scc1 {lnn}")
    A("s_memrealtime s[36:37]")
    A("s_waitcnt lgkmcnt(0)")
    A("s_or_b32 s36, s36, 1")
    A(f"v_mov_b32 {v(vT)}, 0")
    A(f"v_mov_b32 {v(vT2)}, s36")
    A("s_mov_b64 exec, 1")
    A(f"global_store_dword {v(vT)}, {v(vT2)}, s[48:49] sc0 sc1")
    A("s_mov_b64 exec, -1")
    A("s_waitcnt vmcnt(0)")
    A.label(lnn)
    vM = R.alloc(); vH = R.alloc()
    A(f"v_and_b32 {v(vM)}, 31, {v(vLane)}")
    A(f"v_lshrrev_b32 {v(vH)}, 5, {v(vLane)}")
    A(f"s_lshl_b32 s35, {task}, 8")
    A(f"s_lshl_b32 s36, s28, 6")
    A(f"s_add_u32 s35, s35, s36")
    A(f"v_lshl_add_u32 {v(vT)}, {v(vM)}, 1, s35")
    A(f"s_lshl_b32 s36, {task}, 1")
    A(f"v_mov_b32 {v(vT2)}, s36")
    P = [R.alloc() for _ in range(8)]
    for k in range(6):
        A(f"global_load_ushort {v(P[k])}, {v(vT)}, s[{10+2*k}:{11+2*k}]")
    A(f"global_load_ushort {v(P[6])}, {v(vT2)}, s[22:23]")
    A(f"global_load_ushort {v(P[7])}, {v(vT2)}, s[24:25]")
    A(f"s_mul_i32 s33, s28, {XCH_SIZE}")
    A(f"s_add_u32 s33, s33, {XB}")
    vI = R.alloc(); vQ = R.alloc()
    A(f"v_and_b32 {v(vI)}, 15, {v(vLane)}")
    A(f"v_lshrrev_b32 {v(vQ)}, 4, {v(vLane)}")
    vZ = R.alloc(2, 2)
    A(f"v_mov_b32 {v(vZ)}, 0")
    A(f"v_mov_b32 {v(vZ+1)}, 0")
    A(f"v_min_u32 {v(vT)}, 59, {v(vLane)}")
    A(f"v_lshlrev_b32 {v(vT)}, 3, {v(vT)}")
    A(f"ds_write_b64 {v(vT)}, {v(vZ,2)} offset:{KR+4096}")
    A(f"v_min_u32 {v(vT)}, 7, {v(vLane)}")
    A(f"v_lshlrev_b32 {v(vT)}, 2, {v(vT)}")
    A(f"ds_write_b32 {v(vT)}, {v(vZ)} offset:{C0}")
    A(f"v_min_u32 {v(vT)}, 6, {v(vLane)}")
    A(f"v_lshlrev_b32 {v(vT)}, 2, {v(vT)}")
    A(f"ds_write_b32 {v(vT)}, {v(vZ)} offset:{C1}")
    R.rel(vZ, 2)
    vTR = R.alloc(); vTS = R.alloc()
    A(f"s_lshr_b32 s36, s28, 1")
    A(f"s_and_b32 s37, s28, 1")
    A(f"s_mul_i32 s38, s36, {32*TP_ROW}")
    A(f"s_lshl_b32 s39, s37, 5")
    A(f"s_add_u32 s38, s38, s39")
    A(f"v_lshrrev_b32 {v(vT)}, 2, {v(vI)}")
    A(f"v_lshl_add_u32 {v(vT)}, {v(vQ)}, 3, {v(vT)}")
    A(f"v_mul_u32_u24 {v(vTR)}, {TP_ROW}, {v(vT)}")
    A(f"v_and_b32 {v(vT)}, 3, {v(vI)}")
    A(f"v_lshl_add_u32 {v(vTR)}, {v(vT)}, 3, {v(vTR)}")
    A(f"v_add_u32 {v(vTR)}, s38, {v(vTR)}")
    A(f"s_lshl_b32 s38, s30, 17")
    A(f"s_lshl_b32 s39, s37, 16")
    A(f"s_add_u32 s38, s38, s39")
    A(f"s_lshl_b32 s39, s29, 7")
    A(f"s_add_u32 s38, s38, s39")
    A(f"s_lshl_b32 s39, s36, 6")
    A(f"s_add_u32 s38, s38, s39")
    A(f"s_add_u32 s38, s38, {WS_UT}")
    A(f"v_lshlrev_b32 {v(vTS)}, 12, {v(vI)}")
    A(f"v_lshl_add_u32 {v(vTS)}, {v(vQ)}, 4, {v(vTS)}")
    A(f"v_add_u32 {v(vTS)}, s38, {v(vTS)}")
    A("s_waitcnt vmcnt(8)")
    A(f"ds_write_b128 {v(vTW)}, {v(TL,4)} offset:{XB}")
    A("s_waitcnt lgkmcnt(0)")
    A("s_barrier")
    A(f"ds_read_b64_tr_b16 {v(TL,2)}, {v(vTR)} offset:{XB}")
    A(f"ds_read_b64_tr_b16 {v(TL+2,2)}, {v(vTR)} offset:{XB + 4*TP_ROW}")
    A("s_waitcnt lgkmcnt(0)")
    A(f"global_store_dwordx4 {v(vTS)}, {v(TL,4)}, s[50:51] sc0 sc1")
    A("s_barrier")
    R.rel(vTW); R.rel(vTR); R.rel(vTS)
    SW = [R.alloc() for _ in range(2)]
    A(f"v_mul_u32_u24 {v(vT)}, {8*ST_ROW}, {v(vH)}")
    A(f"v_lshl_add_u32 {v(vT)}, {v(vM)}, 2, {v(vT)}")
    A(f"v_add_u32 {v(SW[0])}, s33, {v(vT)}")
    A(f"v_add_u32 {v(SW[1])}, {4*ST_ROW}, {v(SW[0])}")
    vSR = R.alloc()
    A(f"v_mul_u32_u24 {v(vSR)}, {ST_ROW}, {v(vI)}")
    A(f"v_lshl_add_u32 {v(vSR)}, {v(vQ)}, 4, {v(vSR)}")
    A(f"v_add_u32 {v(vSR)}, s33, {v(vSR)}")
    vHf = R.alloc()
    A(f"v_cvt_f32_u32 {v(vHf)}, {v(vH)}")
    A(f"s_waitcnt vmcnt(1)")
    stamp()
    for k in range(8):
        A(f"v_lshlrev_b32 {v(P[k])}, 16, {v(P[k])}")
    Are, Aim, Bre, Bim, Cre, Cim, Ldt, Dsk = P
    A(f"s_mov_b32 s44, {L2E}")
    A(f"s_mov_b32 s45, {L2E_LO}")
    A(f"s_mov_b32 s46, {LN2}")
    A(f"s_mov_b32 s47, {INV2PI}")
    A(f"v_mul_f32 {v(vT)}, s44, {v(Ldt)}")
    A(f"v_fma_f32 {v(vT2)}, {v(Ldt)}, s44, -{v(vT)}")
    A(f"v_fma_f32 {v(vT2)}, {v(Ldt)}, s45, {v(vT2)}")
    A(f"v_exp_f32 {v(vT)}, {v(vT)}")
    A(f"v_mul_f32 {v(vT2)}, s46, {v(vT2)}")
    A(f"v_fma_f32 {v(vT)}, {v(vT)}, {v(vT2)}, {v(vT)}")
    A(f"v_cvt_pk_bf16_f32 {v(vT)}, {v(vT)}, {v(vT)}")
    A(f"v_lshlrev_b32 {v(Ldt)}, 16, {v(vT)}")
    dt = Ldt
    A(f"v_mul_f32 {v(Are)}, {v(dt)}, {v(Are)}")
    A(f"v_mul_f32 {v(Aim)}, {v(dt)}, {v(Aim)}")
    A(f"v_mul_f32 {v(Are)}, s44, {v(Are)}")
    A(f"v_mul_f32 {v(Aim)}, s47, {v(Aim)}")
    A(f"v_mul_f32 {v(Bre)}, {v(dt)}, {v(Bre)}")
    A(f"v_mul_f32 {v(Bim)}, {v(dt)}, {v(Bim)}")
    W = R.alloc(2, 2)
    A(f"v_mul_f32 {v(W)}, {v(Cre)}, {v(Bre)}")
    A(f"v_fma_f32 {v(W)}, -{v(Cim)}, {v(Bim)}, {v(W)}")
    A(f"v_mul_f32 {v(W+1)}, {v(Cre)}, {v(Bim)}")
    A(f"v_fma_f32 {v(W+1)}, {v(Cim)}, {v(Bre)}, {v(W+1)}")
    for r in (Bre, Bim, Cre, Cim, Ldt): R.rel(r)
    vX3 = R.alloc()
    def cexp(x, conj=False, byhalf=False):
        z = R.alloc(2, 2)
        xs = f2u(float(x))
        if byhalf:
            A(f"v_mul_f32 {v(vX3)}, {xs}, {v(vHf)}")
            A(f"v_mul_f32 {v(vT)}, {v(vX3)}, {v(Are)}")
            A(f"v_mul_f32 {v(vT2)}, {v(vX3)}, {v(Aim)}")
            A(f"v_exp_f32 {v(vT)}, {v(vT)}")
            A(f"v_fract_f32 {v(vT2)}, {v(vT2)}")
        elif x == 1:
            A(f"v_exp_f32 {v(vT)}, {v(Are)}")
            A(f"v_fract_f32 {v(vT2)}, {v(Aim)}")
        else:
            A(f"v_mul_f32 {v(vT)}, {xs}, {v(Are)}")
            A(f"v_mul_f32 {v(vT2)}, {xs}, {v(Aim)}")
            A(f"v_exp_f32 {v(vT)}, {v(vT)}")
            A(f"v_fract_f32 {v(vT2)}, {v(vT2)}")
        A(f"v_cos_f32 {v(z)}, {v(vT2)}")
        A(f"v_sin_f32 {v(z+1)}, {v(vT2)}")
        A(f"v_mul_f32 {v(z)}, {v(vT)}, {v(z)}")
        A(f"v_mul_f32 {v(z+1)}, {'-' if conj else ''}{v(vT)}, {v(z+1)}")
        return z
    def cmul(x, y, z=None):
        if z is None: z = R.alloc(2, 2)
        assert z != x and z != y
        A(f"v_pk_mul_f32 {v(z,2)}, {v(x,2)}, {v(y,2)} op_sel:[0,0] op_sel_hi:[1,0]")
        A(f"v_pk_fma_f32 {v(z,2)}, {v(x,2)}, {v(y,2)}, {v(z,2)} op_sel:[1,1,0] op_sel_hi:[0,1,1] neg_lo:[1,0,0]")
        return z
    TS = [R.alloc(2, 2) for _ in range(2)]
    HL = [R.alloc(2, 2) for _ in range(2)]
    cnt = [0]
    pending = []
    def drain(n=1):
        for _ in range(n):
            if pending: A(pending.pop(0))
    def swrite(x, row):
        k = cnt[0] & 1; cnt[0] += 1
        t = TS[k]; h = HL[k]; l = HL[k] + 1
        A(f"v_cvt_pk_bf16_f32 {v(h)}, {v(x)}, {v(x+1)}")
        A(f"v_lshlrev_b32 {v(t)}, 16, {v(h)}")
        A(f"v_and_b32 {v(t+1)}, 0xffff0000, {v(h)}")
        A(f"v_pk_add_f32 {v(t,2)}, {v(x,2)}, {v(t,2)} neg_lo:[0,1] neg_hi:[0,1]")
        A(f"v_cvt_pk_bf16_f32 {v(l)}, {v(t)}, {v(t+1)}")
        o = 72 * (row & 3)
        A(f"ds_write2_b32 {v(SW[row>>2])}, {v(h)}, {v(l)} offset0:{o} offset1:{o+32}")
        drain(1)
    tmp = [R.alloc(2, 2) for _ in range(2)]
    def chain(base, step, rows):
        cur = base
        for k, row in enumerate(rows):
            if k > 0:
                cur = cmul(cur, step, tmp[k & 1])
            swrite(cur, row)
    Y1 = cexp(8, conj=True)
    S = cexp(64, conj=True, byhalf=True)
    chain(S, Y1, range(8))
    R.rel(Y1, 2); R.rel(S, 2)
    Bh = [R.alloc(4, 4) for _ in range(2)]
    Bl = [R.alloc(4, 4) for _ in range(2)]
    for k in range(2):
        A(f"ds_read_b128 {v(Bh[k],4)}, {v(vSR)} offset:{64*k}")
        A(f"ds_read_b128 {v(Bl[k],4)}, {v(vSR)} offset:{64*k+128}")
    Ah = [R.alloc(4, 4) for _ in range(2)]
    Al = [R.alloc(4, 4) for _ in range(2)]
    KT = [R.alloc(4, 4) for _ in range(3)]
    def tile_reads():
        for k in range(2):
            A(f"ds_read_b128 {v(Ah[k],4)}, {v(vSR)} offset:{64*k}")
            A(f"ds_read_b128 {v(Al[k],4)}, {v(vSR)} offset:{64*k+128}")
    def tile_mfmas(T):
        out = []
        for k in range(2):
            c = "0" if k == 0 else v(KT[T], 4)
            out.append(f"v_mfma_f32_16x16x32_bf16 {v(KT[T],4)}, {v(Ah[k],4)}, {v(Bh[k],4)}, {c}")
            out.append(f"v_mfma_f32_16x16x32_bf16 {v(KT[T],4)}, {v(Al[k],4)}, {v(Bh[k],4)}, {v(KT[T],4)}")
            out.append(f"v_mfma_f32_16x16x32_bf16 {v(KT[T],4)}, {v(Ah[k],4)}, {v(Bl[k],4)}, {v(KT[T],4)}")
        return out
    E128 = cexp(128)
    H = cexp(128, byhalf=True)
    E256 = cmul(E128, E128); E512 = cmul(E256, E256); E1024 = cmul(E512, E512)
    H2 = cmul(H, H); H4 = cmul(H2, H2)
    t0 = cmul(W, E1024); B3 = cmul(t0, H4)
    R.rel(E1024, 2); R.rel(H4, 2); R.rel(t0, 2)
    A("s_waitcnt vmcnt(0)")
    A("s_barrier")
    lsk = A.newlabel("L_s4_sig"); lpn = A.newlabel("L_s4_pn"); lgo = A.newlabel("L_s4_go")
    A("s_cmp_lg_u32 s28, 3")
    A(f"s_cbranch_scc1 {lsk}")
    A(f"v_mov_b32 {v(vT)}, 0")
    A.label(lpn)
    A(f"global_load_dword {v(vT2)}, {v(vT)}, s[48:49] sc1")
    A("s_waitcnt vmcnt(0)")
    A(f"v_readfirstlane_b32 s52, {v(vT2)}")
    A("s_cmp_lg_u32 s52, 0")
    A(f"s_cbranch_scc1 {lgo}")
    A("s_sleep 2")
    A(f"s_branch {lpn}")
    A.label(lgo)
    A(f"s_lshl_b32 s36, s30, 7")
    A(f"s_lshl_b32 s37, s29, 2")
    A(f"s_add_u32 s36, s36, s37")
    A(f"s_add_u32 s36, s36, {WS_FLAG}")
    A(f"v_mov_b32 {v(vT)}, s36")
    A("s_mov_b64 exec, 1")
    A(f"global_store_dword {v(vT)}, {v(vT2)}, s[50:51] sc0 sc1")
    A("s_mov_b64 exec, -1")
    A.label(lsk)
    chain(B3, E128, (0, 1, 4, 5, 2))
    R.rel(B3, 2)
    tile_reads()
    E1 = cexp(1)
    E2 = cmul(E1, E1); E4 = cmul(E2, E2)
    B0 = cmul(W, H); B1 = cmul(B0, E256)
    t0 = cmul(W, E512); B2 = cmul(t0, H2)
    B2b = cmul(B2, E128)
    R.rel(t0, 2); R.rel(E512, 2); R.rel(H2, 2); R.rel(H, 2); R.rel(E256, 2); R.rel(E128, 2); R.rel(W, 2)
    A("s_waitcnt lgkmcnt(0)")
    pending += tile_mfmas(2)
    chain(B1, E2, (0, 1, 4, 5))
    chain(B2, E4, (2, 3))
    chain(B2b, E4, (6, 7))
    drain(100)
    for r in (B1, B2, B2b, E2, E4): R.rel(r, 2)
    tile_reads()
    z1 = cmul(B0, E1); z2 = cmul(z1, E1)
    A("s_waitcnt lgkmcnt(0)")
    pending += tile_mfmas(1)
    swrite(B0, 0); swrite(z1, 1)
    chain(z2, E1, range(2, 8))
    drain(100)
    for r in (B0, z1, z2, E1): R.rel(r, 2)
    tile_reads()
    vX = R.alloc()
    A(f"v_lshl_add_u32 {v(vX)}, {v(vLane)}, 4, s33")
    A("s_waitcnt lgkmcnt(0)")
    for s in tile_mfmas(0): A(s)
    A(f"ds_write_b128 {v(vX)}, {v(KT[2],4)} offset:2048")
    A(f"ds_write_b128 {v(vX)}, {v(KT[1],4)} offset:1024")
    A(f"ds_write_b128 {v(vX)}, {v(KT[0],4)}")
    for k in range(2):
        R.rel(Ah[k], 4); R.rel(Al[k], 4); R.rel(Bh[k], 4); R.rel(Bl[k], 4)
    for k in range(2): R.rel(SW[k])
    for k in range(2): R.rel(TS[k], 2); R.rel(HL[k], 2); R.rel(tmp[k], 2)
    R.rel(vSR); R.rel(vX3); R.rel(vHf); R.rel(vM); R.rel(vH)
    for k in range(3): R.rel(KT[k], 4)
    stamp()
    lnp = A.newlabel("L_s4_np"); lpl = A.newlabel("L_s4_pl")
    A(f"s_lshr_b32 s36, {task}, 5")
    A(f"s_lshl_b32 s36, s36, 7")
    A(f"s_add_u32 s36, s36, {WS_FLAG}")
    A(f"v_and_b32 {v(vT)}, 31, {v(vLane)}")
    A(f"v_lshl_add_u32 {v(vT)}, {v(vT)}, 2, s36")
    A("s_cmp_lg_u32 s28, 3")
    A(f"s_cbranch_scc1 {lnp}")
    A.label(lpl)
    A(f"global_load_dword {v(vT2)}, {v(vT)}, s[50:51] sc1")
    A("s_waitcnt vmcnt(0)")
    A(f"v_cmp_ne_u32 vcc, s52, {v(vT2)}")
    A(f"s_cbranch_vccz {lnp}")
    A("s_sleep 2")
    A(f"s_branch {lpl}")
    A.label(lnp)
    A("s_waitcnt lgkmcnt(0)")
    A("s_barrier")
    stamp()
    UD = R.alloc(4, 4); UP = R.alloc()
    A(f"s_lshl_b32 s36, {task}, 12")
    A(f"s_add_u32 s36, s36, {WS_UT}")
    A(f"v_lshl_add_u32 {v(vT)}, v0, 4, s36")
    A(f"global_load_dwordx4 {v(UD,4)}, {v(vT)}, s[50:51] sc1")
    A(f"global_load_dword {v(UP)}, {v(vT)}, s[50:51] offset:-4 sc1")
    vXa = R.alloc()
    A(f"v_lshlrev_b32 {v(vXa)}, 4, {v(vLane)}")
    X1 = [R.alloc(4, 4) for _ in range(4)]
    X2 = [R.alloc(4, 4) for _ in range(4)]
    lw1 = A.newlabel("L_s4_w1"); lj = A.newlabel("L_s4_j")
    A("s_cmp_eq_u32 s28, 1")
    A(f"s_cbranch_scc1 {lw1}")
    A("s_cmp_lg_u32 s28, 0")
    A(f"s_cbranch_scc1 {lj}")
    for w in range(4):
        A(f"ds_read_b128 {v(X1[w],4)}, {v(vXa)} offset:{XB + w*XCH_SIZE}")
    A(f"v_lshrrev_b32 {v(vT)}, 1, {v(vQ)}")
    A(f"v_lshlrev_b32 {v(vT)}, 8, {v(vT)}")
    A(f"v_and_b32 {v(vT2)}, 1, {v(vQ)}")
    A(f"v_lshl_add_u32 {v(vT)}, {v(vT2)}, 3, {v(vT)}")
    A(f"v_lshl_add_u32 {v(vT)}, {v(vI)}, 4, {v(vT)}")
    A(f"v_sub_u32 {v(vT)}, {KR + 4088}, {v(vT)}")
    A("s_waitcnt lgkmcnt(0)")
    def sum4(X):
        for k in range(2):
            A(f"v_pk_add_f32 {v(X[0]+2*k,2)}, {v(X[0]+2*k,2)}, {v(X[1]+2*k,2)}")
            A(f"v_pk_add_f32 {v(X[2]+2*k,2)}, {v(X[2]+2*k,2)}, {v(X[3]+2*k,2)}")
        for k in range(2):
            A(f"v_pk_add_f32 {v(X[0]+2*k,2)}, {v(X[0]+2*k,2)}, {v(X[2]+2*k,2)}")
    sum4(X1)
    A(f"v_cvt_pk_bf16_f32 {v(X2[0])}, {v(X1[0]+3)}, {v(X1[0]+2)}")
    A(f"v_cvt_pk_bf16_f32 {v(X2[0]+1)}, {v(X1[0]+1)}, {v(X1[0])}")
    A(f"ds_write_b64 {v(vT)}, {v(X2[0],2)}")
    A(f"s_branch {lj}")
    A.label(lw1)
    for w in range(4):
        A(f"ds_read_b128 {v(X2[w],4)}, {v(vXa)} offset:{XB + w*XCH_SIZE + 2048}")
    for w in range(4):
        A(f"ds_read_b128 {v(X1[w],4)}, {v(vXa)} offset:{XB + w*XCH_SIZE + 1024}")
    a3 = R.alloc(); a3f = R.alloc(); a2 = R.alloc(); a1 = R.alloc(); a1s = R.alloc()
    A(f"v_lshlrev_b32 {v(vT)}, 9, {v(vQ)}")
    A(f"v_lshl_add_u32 {v(vT)}, {v(vI)}, 4, {v(vT)}")
    A(f"v_sub_u32 {v(a3)}, {KR + 2040 - 256}, {v(vT)}")
    A(f"v_and_b32 {v(vT2)}, 1, {v(vI)}")
    A(f"v_lshl_add_u32 {v(a3f)}, {v(vT2)}, 1, {v(a3)}")
    A(f"v_subrev_u32 {v(a3f)}, 2, {v(a3f)}")
    A(f"v_lshlrev_b32 {v(vT)}, 8, {v(vQ)}")
    A(f"v_lshl_add_u32 {v(vT)}, {v(vI)}, 4, {v(vT)}")
    A(f"v_sub_u32 {v(a2)}, {KR + 3060}, {v(vT)}")
    A(f"v_lshrrev_b32 {v(vT)}, 1, {v(vQ)}")
    A(f"v_lshlrev_b32 {v(vT)}, 8, {v(vT)}")
    A(f"v_and_b32 {v(vT2)}, 1, {v(vQ)}")
    A(f"v_lshl_add_u32 {v(vT)}, {v(vT2)}, 3, {v(vT)}")
    A(f"v_lshl_add_u32 {v(vT)}, {v(vI)}, 4, {v(vT)}")
    A(f"v_sub_u32 {v(a1)}, {KR + 2*(2045-256)}, {v(vT)}")
    A(f"v_cmp_eq_u32 vcc, 0, {v(vLane)}")
    A(f"v_add_u32 {v(a1s)}, 6, {v(a1)}")
    A(f"v_add_u32 {v(vT)}, 2, {v(a1)}")
    A(f"v_cndmask_b32 {v(a1s)}, {v(a1s)}, {v(vT)}, vcc")
    A("s_waitcnt lgkmcnt(4)")
    sum4(X2)
    Xb = X2[0]
    D = [X2[1], X2[1] + 2, X2[2]]
    for rho in range(3):
        A(f"v_cvt_pk_bf16_f32 {v(D[rho])}, {v(Xb+rho)}, {v(Xb+rho)}")
        A(f"v_mov_b32 {v(D[rho]+1)}, {v(D[rho])}")
    A(f"ds_write2_b64 {v(a3)}, {v(D[0],2)}, {v(D[0],2)} offset0:32 offset1:33")
    A(f"ds_write2_b64 {v(a3)}, {v(D[1],2)}, {v(D[1],2)} offset0:0 offset1:1")
    A(f"v_mov_b32 {v(vT)}, 0")
    A("s_mov_b32 exec_lo, 0")
    A("s_mov_b32 exec_hi, 1")
    A(f"ds_write_b64 {v(vT)}, {v(D[2],2)} offset:{KR}")
    A("s_mov_b64 exec, -1")
    A(f"ds_write_b16 {v(a3f)}, {v(D[0])} offset:256")
    A(f"ds_write_b16 {v(a3f)}, {v(D[1])}")
    A("s_waitcnt lgkmcnt(5)")
    sum4(X1)
    Xa = X1[0]
    D = [X1[1], X1[1] + 2, X1[2]]
    A(f"v_cvt_pk_bf16_f32 {v(D[0])}, {v(Xa+3)}, {v(Xa+3)}")
    A(f"v_cvt_pk_bf16_f32 {v(D[0]+1)}, {v(Xa+3)}, {v(Xa+2)}")
    A(f"v_cvt_pk_bf16_f32 {v(D[1])}, {v(Xa+2)}, {v(Xa+2)}")
    A(f"ds_write2_b32 {v(a2)}, {v(D[0])}, {v(D[0]+1)} offset0:0 offset1:1")
    A(f"ds_write2_b32 {v(a2)}, {v(D[1])}, {v(D[1])} offset0:2 offset1:3")
    A(f"v_cvt_pk_bf16_f32 {v(D[2])}, {v(Xa+1)}, {v(Xa+1)}")
    A(f"v_cvt_pk_bf16_f32 {v(D[2]+1)}, {v(Xa)}, {v(Xa)}")
    A(f"ds_write_b16 {v(a1)}, {v(D[2])}")
    A(f"ds_write_b32 {v(a1)}, {v(D[2]+1)} offset:2")
    A(f"ds_write_b16 {v(a1s)}, {v(D[2]+1)}")
    for r in (a3, a3f, a2, a1, a1s): R.rel(r)
    A.label(lj)
    for w in range(4): R.rel(X1[w], 4); R.rel(X2[w], 4)
    vK = R.alloc(); vU = [R.alloc() for _ in range(4)]
    A(f"v_lshlrev_b32 {v(vT)}, 5, {v(vI)}")
    A(f"v_lshlrev_b32 {v(vT2)}, 4, {v(vQ)}")
    A(f"v_sub_u32 {v(vK)}, {v(vT2)}, {v(vT)}")
    A(f"s_lshl_b32 s36, s28, 7")
    A(f"s_add_u32 s37, s36, {KR + 480}")
    A(f"v_add_u32 {v(vK)}, s37, {v(vK)}")
    A(f"v_lshlrev_b32 {v(vT)}, 1, {v(vI)}")
    A(f"v_add_u32 {v(vT)}, {v(vT)}, {v(vT2)}")
    A(f"v_and_b32 {v(vT2)}, 1, {v(vI)}")
    A(f"v_cmp_eq_u32 vcc, 0, {v(vT2)}")
    A(f"v_mov_b32 {v(vU[0])}, {C0 + 2}")
    A(f"v_mov_b32 {v(vU[1])}, {C1}")
    A(f"v_cndmask_b32 {v(vU[0])}, {v(vU[0])}, {v(vU[1])}, vcc")
    A(f"v_add3_u32 {v(vU[0])}, {v(vU[0])}, {v(vT)}, s36")
    for k in range(1, 4):
        A(f"v_add_u32 {v(vU[k])}, {1024*k}, {v(vU[0])}")
    UO = R.alloc(4, 4)
    A(f"v_cmp_eq_u32 vcc, 0, v0")
    A(f"v_lshlrev_b32 {v(vT)}, 4, v0")
    A("s_waitcnt vmcnt(0)")
    A(f"v_cndmask_b32 {v(UP)}, {v(UP)}, 0, vcc")
    A(f"ds_write_b128 {v(vT)}, {v(UD,4)} offset:{C0 + 32}")
    A(f"v_alignbit_b32 {v(UO)}, {v(UD)}, {v(UP)}, 16")
    for k in range(1, 4):
        A(f"v_alignbit_b32 {v(UO+k)}, {v(UD+k)}, {v(UD+k-1)}, 16")
    A(f"ds_write_b128 {v(vT)}, {v(UO,4)} offset:{C1 + 28}")
    A("s_waitcnt lgkmcnt(0)")
    A("s_barrier")
    R.rel(UO, 4); R.rel(UD, 4); R.rel(UP)
    stamp()
    if STAMP: A("s_waitcnt lgkmcnt(0)")
    ACC = [R.alloc(4, 4) for _ in range(8)]
    NKS = 9; NUS = 5
    KS = [R.alloc(4, 4) for _ in range(NKS)]
    US = [R.alloc(4, 4) for _ in range(NUS)]
    ops = []
    for rr in range(2):
        if rr % 2 == 1:
            for m in range(8):
                for phi in range(8 - m): ops.append((rr, m, phi))
        else:
            for m in range(7, -1, -1):
                for phi in range(8 - m): ops.append((rr, m, phi))
    first = {}; last = {}
    for idx, (rr, m, phi) in enumerate(ops):
        for key in (("K", rr, phi), ("U", rr, m)):
            first.setdefault(key, idx); last[key] = idx
    LEAD = 10
    loads = []
    for kind, nslots in (("K", NKS), ("U", NUS)):
        keys = sorted([k for k in first if k[0] == kind], key=lambda k: first[k])
        freeat = [-1] * nslots
        for k in keys:
            s = min(range(nslots), key=lambda s: freeat[s])
            assert freeat[s] < first[k], (k, freeat, first[k])
            issue = max(freeat[s] + 1, first[k] - LEAD, 0)
            loads.append((issue, first[k], k, s))
            freeat[s] = last[k]
    loads.sort()
    slot = {k: s for (_, _, k, s) in loads}
    issued = []
    done_upto = [0]
    li = 0
    started = set()
    for idx, (rr, m, phi) in enumerate(ops):
        while li < len(loads) and loads[li][0] <= idx:
            _, _, k, s = loads[li]; li += 1
            if k[0] == "K":
                A(f"ds_read_b128 {v(KS[s],4)}, {v(vK)} offset:{64*k[1] + 512*(7-k[2])}")
                issued.append(k)
            else:
                o = 16 * k[1] + 128 * (k[2] & 1)
                A(f"ds_read2_b32 {v(US[s],2)}, {v(vU[k[2]>>1])} offset0:{o} offset1:{o+1}")
                A(f"ds_read2_b32 {v(US[s]+2,2)}, {v(vU[k[2]>>1])} offset0:{o+2} offset1:{o+3}")
                issued.append(k); issued.append(k)
        needpos = max(len(issued) - 1 - issued[::-1].index(k) for k in (("K", rr, phi), ("U", rr, m)))
        if needpos + 1 > done_upto[0]:
            N = min(len(issued) - (needpos + 1), 15)
            A(f"s_waitcnt lgkmcnt({N})")
            done_upto[0] = len(issued) - N
        c = m + phi
        cc = v(ACC[c], 4) if c in started else "0"
        started.add(c)
        A(f"v_mfma_f32_16x16x32_bf16 {v(ACC[c],4)}, {v(US[slot[('U',rr,m)]],4)}, {v(KS[slot[('K',rr,phi)]],4)}, {cc}")
    stamp()
    if STAMP: A("s_waitcnt lgkmcnt(0)")
    Ur = [US[0], US[1]]
    A(f"v_lshlrev_b32 {v(vT)}, 5, {v(vI)}")
    A(f"v_lshl_add_u32 {v(vT)}, {v(vQ)}, 3, {v(vT)}")
    A(f"s_lshl_b32 s36, s28, 10")
    A(f"v_add_u32 {v(vT2)}, s36, {v(vT)}")
    A(f"s_lshl_b32 s37, {task}, 12")
    A(f"s_add_u32 s37, s37, s36")
    A(f"v_add_u32 {v(vT)}, s37, {v(vT)}")
    for k in range(2):
        A(f"ds_read_b64 {v(Ur[k],2)}, {v(vT2)} offset:{C0 + 32 + 512*k}")
    OWN = [KS[0], KS[1]]
    labels = [A.newlabel("L_s4_e") for _ in range(4)]
    lj = A.newlabel("L_s4_ej")
    A.fence()
    for w in range(1, 4):
        A(f"s_cmp_eq_u32 s28, {w}")
        A(f"s_cbranch_scc1 {labels[w]}")
    for w in range(4):
        if w: A.label(labels[w])
        for b in range(6):
            c = (2 * w + 2 + b) % 8
            A(f"ds_write_b128 {v(vX)}, {v(ACC[c],4)} offset:{1024*b}")
        for k in range(2):
            for j in range(2):
                A(f"v_pk_mov_b32 {v(OWN[k]+2*j,2)}, {v(ACC[2*w+k]+2*j,2)}, {v(ACC[2*w+k]+2*j,2)} op_sel:[0,1]")
        if w < 3: A(f"s_branch {lj}")
    A.label(lj)
    va = [KS[2], KS[2] + 1, KS[2] + 2]
    for o in range(1, 4):
        A(f"s_add_u32 s36, s28, {o}")
        A(f"s_and_b32 s36, s36, 3")
        A(f"s_mul_i32 s36, s36, {XCH_SIZE}")
        A(f"v_add_u32 {v(va[o-1])}, s36, {v(vXa)}")
    A("s_waitcnt lgkmcnt(0)")
    A("s_barrier")
    Xr = [[KS[3], KS[4], KS[5]], [KS[6], KS[7], KS[8]]]
    for k in range(2):
        for o in range(1, 4):
            b = (k - 2 * o - 2) % 8
            A(f"ds_read_b128 {v(Xr[k][o-1],4)}, {v(va[o-1])} offset:{XB + 1024*b}")
    DS2 = R.alloc(2, 2)
    A(f"v_mov_b32 {v(DS2)}, {v(Dsk)}")
    A(f"v_mov_b32 {v(DS2+1)}, {v(Dsk)}")
    T4 = [US[2], US[3]]
    for k in range(2):
        t = T4[k]; u = Ur[k]
        A(f"v_lshlrev_b32 {v(t)}, 16, {v(u)}")
        A(f"v_and_b32 {v(t+1)}, 0xffff0000, {v(u)}")
        A(f"v_lshlrev_b32 {v(t+2)}, 16, {v(u+1)}")
        A(f"v_and_b32 {v(t+3)}, 0xffff0000, {v(u+1)}")
        A(f"v_pk_mul_f32 {v(t,2)}, {v(t,2)}, {v(DS2,2)}")
        A(f"v_pk_mul_f32 {v(t+2,2)}, {v(t+2,2)}, {v(DS2,2)}")
        A(f"v_cvt_pk_bf16_f32 {v(u)}, {v(t)}, {v(t+1)}")
        A(f"v_cvt_pk_bf16_f32 {v(u+1)}, {v(t+2)}, {v(t+3)}")
        A(f"v_lshlrev_b32 {v(t)}, 16, {v(u)}")
        A(f"v_and_b32 {v(t+1)}, 0xffff0000, {v(u)}")
        A(f"v_lshlrev_b32 {v(t+2)}, 16, {v(u+1)}")
        A(f"v_and_b32 {v(t+3)}, 0xffff0000, {v(u+1)}")
    for k in range(2):
        t = T4[k]; u = Ur[k]; x = OWN[k]
        A(f"s_waitcnt lgkmcnt({3*(1-k)})")
        for j in range(2):
            A(f"v_pk_add_f32 {v(x+2*j,2)}, {v(x+2*j,2)}, {v(Xr[k][0]+2*j,2)}")
            A(f"v_pk_add_f32 {v(Xr[k][1]+2*j,2)}, {v(Xr[k][1]+2*j,2)}, {v(Xr[k][2]+2*j,2)}")
        for j in range(2):
            A(f"v_pk_add_f32 {v(x+2*j,2)}, {v(x+2*j,2)}, {v(Xr[k][1]+2*j,2)}")
        A(f"v_cvt_pk_bf16_f32 {v(u)}, {v(x)}, {v(x+1)}")
        A(f"v_cvt_pk_bf16_f32 {v(u+1)}, {v(x+2)}, {v(x+3)}")
        A(f"v_lshlrev_b32 {v(x)}, 16, {v(u)}")
        A(f"v_and_b32 {v(x+1)}, 0xffff0000, {v(u)}")
        A(f"v_lshlrev_b32 {v(x+2)}, 16, {v(u+1)}")
        A(f"v_and_b32 {v(x+3)}, 0xffff0000, {v(u+1)}")
        A(f"v_pk_add_f32 {v(x,2)}, {v(x,2)}, {v(t,2)}")
        A(f"v_pk_add_f32 {v(x+2,2)}, {v(x+2,2)}, {v(t+2,2)}")
        A(f"v_cvt_pk_bf16_f32 {v(u)}, {v(x)}, {v(x+1)}")
        A(f"v_cvt_pk_bf16_f32 {v(u+1)}, {v(x+2)}, {v(x+3)}")
        A(f"global_store_dwordx2 {v(vT)}, {v(u,2)}, s[50:51] offset:{WS_AT + 512*k}")
    if STAMP:
        A("s_waitcnt vmcnt(0)")
        stamp()
        A("s_waitcnt lgkmcnt(0)")
        A(f"s_lshl_b32 s36, {task}, 3")
        A(f"s_add_u32 s36, s36, s28")
        A(f"s_lshl_b32 s36, s36, 6")
        A(f"s_add_u32 s36, s36, {WS_STAMP}")
        A(f"v_mov_b32 {v(vT)}, s36")
        for k in stamps:
            A(f"v_mov_b32 {v(vT2)}, s{64+2*k}")
            A(f"global_store_dword {v(vT)}, {v(vT2)}, s[50:51] offset:{4*k}")
        A(f"s_getreg_b32 s36, hwreg(HW_REG_HW_ID)")
        A(f"v_mov_b32 {v(vT2)}, s36")
        A(f"global_store_dword {v(vT)}, {v(vT2)}, s[50:51] offset:{4*14}")
        A(f"s_getreg_b32 s36, hwreg(HW_REG_XCC_ID)")
        A(f"v_mov_b32 {v(vT2)}, s36")
        A(f"global_store_dword {v(vT)}, {v(vT2)}, s[50:51] offset:{4*15}")
    return R.hi, S4_LDS

if __name__ == "__main__":
    import sys
    STAMP = len(sys.argv) > 2
    A = Asm()
    name = "gated_mix__ssm_conv_s4__linear_attn_block__prompt_kernel"
    A(f"s_cmp_ge_u32 s2, 640")
    A("s_cbranch_scc1 L_end")
    A("s_mov_b32 s3, s2")
    nv, lds = gen_s4(A, "s3")
    A.label("L_end")
    A("s_endpgm")
    out = f"; @launch grid=(640,1,1) block=(256,1,1) lds={lds}\n"
    out += '.amdgcn_target "amdgcn-amd-amdhsa--gfx950"\n.text\n' + kernel_header(name) + A.text()
    out += '.section .rodata,"a"\n' + kernel_desc(name, nv, 96)
    open(sys.argv[1], "w").write(out)
    print("vgprs", nv, "lds", lds, "lines", len(A.lines))
```

```python
import numpy as np
from asmlib import *
from s4 import Regs, v, f2u
from s4b import WS_AT, WS_UT, WS_FLAG, WS_STAMP

STAMP = False
KRS = 4576
KX = 9152
XB = 17344
C0 = 0
C1 = 4164
UCS = 8288
CX = XB + 2 * UCS
ST_ROW = 544
ST_SIZE = 16 * ST_ROW
S4_LDS = XB + 4 * ST_SIZE
TP_ROW = 144

def gen_s4(A, task="s3", sc="", done=None):
    stamps = []
    def stamp():
        if not STAMP: return
        k = len(stamps); stamps.append(k)
        A(f"s_memtime s[{64+2*k}:{65+2*k}]")
    R = Regs(1, 256)
    L2E = f2u(1.4426950408889634)
    L2E_LO = f2u(1.4426950408889634 - float(np.float32(1.4426950408889634)))
    LN2 = f2u(0.6931471805599453)
    INV2PI = f2u(0.15915494309189535)
    A(f"""
    s_load_dwordx16 s[8:23], s[0:1], 0
    s_load_dwordx2 s[24:25], s[0:1], 64
    s_load_dwordx4 s[48:51], s[0:1], 112
    """)
    stamp()
    vLane = R.alloc(); vT = R.alloc(); vT2 = R.alloc()
    A(f"v_and_b32 {v(vLane)}, 63, v0")
    A(f"v_lshrrev_b32 {v(vT)}, 6, v0")
    A(f"v_readfirstlane_b32 s28, {v(vT)}")
    A(f"s_lshr_b32 s53, s28, 1")
    A(f"s_and_b32 s54, s28, 1")
    A(f"s_lshl_b32 s55, {task}, 1")
    A(f"s_add_u32 s55, s55, s53")
    A(f"s_mul_hi_u32 s29, {task}, {(1<<32)//10 + 1}")
    A(f"s_mul_i32 s30, s29, 10")
    A(f"s_sub_u32 s30, {task}, s30")
    A(f"s_mul_i32 s31, s29, {64*1280}")
    A(f"s_lshl_b32 s32, s30, 7")
    A(f"s_add_u32 s31, s31, s32")
    A(f"v_lshrrev_b32 {v(vT)}, 3, v0")
    A(f"v_and_b32 {v(vT2)}, 7, v0")
    vTW = R.alloc()
    A(f"v_mul_u32_u24 {v(vTW)}, {TP_ROW}, {v(vT)}")
    A(f"v_lshl_add_u32 {v(vTW)}, {v(vT2)}, 4, {v(vTW)}")
    A(f"v_mul_u32_u24 {v(vT)}, 1280, {v(vT)}")
    A(f"v_lshl_add_u32 {v(vT)}, {v(vT2)}, 4, {v(vT)}")
    A(f"v_add_u32 {v(vT)}, s31, {v(vT)}")
    A(f"v_add_u32 {v(vT2)}, {32*1280}, {v(vT)}")
    TL = [R.alloc(4, 4) for _ in range(2)]
    A("s_waitcnt lgkmcnt(0)")
    A(f"global_load_dwordx4 {v(TL[0],4)}, {v(vT)}, s[8:9]")
    A(f"global_load_dwordx4 {v(TL[1],4)}, {v(vT2)}, s[8:9]")
    A(f"s_lshl_b32 s35, s55, 8")
    A(f"s_lshl_b32 s36, s54, 7")
    A(f"s_add_u32 s35, s35, s36")
    A(f"v_lshl_add_u32 {v(vT)}, {v(vLane)}, 1, s35")
    A(f"s_lshl_b32 s36, s55, 1")
    A(f"v_mov_b32 {v(vT2)}, s36")
    P = [R.alloc() for _ in range(8)]
    for k in range(6):
        A(f"global_load_ushort {v(P[k])}, {v(vT)}, s[{10+2*k}:{11+2*k}]")
    A(f"global_load_ushort {v(P[6])}, {v(vT2)}, s[22:23]")
    A(f"global_load_ushort {v(P[7])}, {v(vT2)}, s[24:25]")
    A(f"s_mul_i32 s33, s28, {ST_SIZE}")
    A(f"s_add_u32 s33, s33, {XB}")
    A(f"s_mul_i32 s32, s53, {KRS}")
    A(f"s_mul_i32 s34, s53, {UCS}")
    A(f"s_add_u32 s34, s34, {XB}")
    vI = R.alloc(); vQ = R.alloc()
    A(f"v_and_b32 {v(vI)}, 15, {v(vLane)}")
    A(f"v_lshrrev_b32 {v(vQ)}, 4, {v(vLane)}")
    vZ = R.alloc(2, 2)
    A(f"v_mov_b32 {v(vZ)}, 0")
    A(f"v_mov_b32 {v(vZ+1)}, 0")
    A(f"v_min_u32 {v(vT)}, 59, {v(vLane)}")
    A(f"v_lshl_add_u32 {v(vT)}, {v(vT)}, 3, s32")
    A(f"ds_write_b64 {v(vT)}, {v(vZ,2)} offset:4096")
    R.rel(vZ, 2)
    vTR = R.alloc(); vTS = R.alloc()
    A(f"s_lshl_b32 s38, s28, 5")
    A(f"v_lshrrev_b32 {v(vT)}, 2, {v(vI)}")
    A(f"v_lshl_add_u32 {v(vT)}, {v(vQ)}, 3, {v(vT)}")
    A(f"v_mul_u32_u24 {v(vTR)}, {TP_ROW}, {v(vT)}")
    A(f"v_and_b32 {v(vT)}, 3, {v(vI)}")
    A(f"v_lshl_add_u32 {v(vTR)}, {v(vT)}, 3, {v(vTR)}")
    A(f"v_add_u32 {v(vTR)}, s38, {v(vTR)}")
    A(f"s_lshl_b32 s38, s30, 18")
    A(f"s_lshl_b32 s39, s28, 16")
    A(f"s_add_u32 s38, s38, s39")
    A(f"s_lshl_b32 s39, s29, 7")
    A(f"s_add_u32 s38, s38, s39")
    A(f"s_add_u32 s38, s38, {WS_UT}")
    A(f"v_lshlrev_b32 {v(vTS)}, 12, {v(vI)}")
    A(f"v_lshl_add_u32 {v(vTS)}, {v(vQ)}, 4, {v(vTS)}")
    A(f"v_add_u32 {v(vTS)}, s38, {v(vTS)}")
    A("s_waitcnt vmcnt(9)")
    A(f"ds_write_b128 {v(vTW)}, {v(TL[0],4)} offset:{XB}")
    A("s_waitcnt vmcnt(8)")
    A(f"ds_write_b128 {v(vTW)}, {v(TL[1],4)} offset:{XB + 32*TP_ROW}")
    A("s_waitcnt lgkmcnt(0)")
    A("s_barrier")
    for k in range(2):
        A(f"ds_read_b64_tr_b16 {v(TL[k],2)}, {v(vTR)} offset:{XB + 32*TP_ROW*k}")
        A(f"ds_read_b64_tr_b16 {v(TL[k]+2,2)}, {v(vTR)} offset:{XB + 32*TP_ROW*k + 4*TP_ROW}")
    A("s_waitcnt lgkmcnt(2)")
    A(f"global_store_dwordx4 {v(vTS)}, {v(TL[0],4)}, s[50:51] sc0 sc1")
    A("s_waitcnt lgkmcnt(0)")
    A(f"global_store_dwordx4 {v(vTS)}, {v(TL[1],4)}, s[50:51] offset:64 sc0 sc1")
    A("s_barrier")
    R.rel(vTW); R.rel(vTR); R.rel(vTS)
    SW = [R.alloc() for _ in range(8)]
    A(f"v_lshl_add_u32 {v(SW[0])}, {v(vLane)}, 2, s33")
    for k in range(1, 8):
        A(f"v_add_u32 {v(SW[k])}, {2*ST_ROW*k}, {v(SW[0])}")
    vSR = R.alloc()
    A(f"v_mul_u32_u24 {v(vSR)}, {ST_ROW}, {v(vI)}")
    A(f"v_lshl_add_u32 {v(vSR)}, {v(vQ)}, 4, {v(vSR)}")
    A(f"v_add_u32 {v(vSR)}, s33, {v(vSR)}")
    A(f"s_waitcnt vmcnt(2)")
    stamp()
    for k in range(8):
        A(f"v_lshlrev_b32 {v(P[k])}, 16, {v(P[k])}")
    Are, Aim, Bre, Bim, Cre, Cim, Ldt, Dsk = P
    A(f"s_mov_b32 s44, {L2E}")
    A(f"s_mov_b32 s45, {L2E_LO}")
    A(f"s_mov_b32 s46, {LN2}")
    A(f"s_mov_b32 s47, {INV2PI}")
    A(f"v_mul_f32 {v(vT)}, s44, {v(Ldt)}")
    A(f"v_fma_f32 {v(vT2)}, {v(Ldt)}, s44, -{v(vT)}")
    A(f"v_fma_f32 {v(vT2)}, {v(Ldt)}, s45, {v(vT2)}")
    A(f"v_exp_f32 {v(vT)}, {v(vT)}")
    A(f"v_mul_f32 {v(vT2)}, s46, {v(vT2)}")
    A(f"v_fma_f32 {v(vT)}, {v(vT)}, {v(vT2)}, {v(vT)}")
    A(f"v_cvt_pk_bf16_f32 {v(vT)}, {v(vT)}, {v(vT)}")
    A(f"v_lshlrev_b32 {v(Ldt)}, 16, {v(vT)}")
    dt = Ldt
    A(f"v_mul_f32 {v(Are)}, {v(dt)}, {v(Are)}")
    A(f"v_mul_f32 {v(Aim)}, {v(dt)}, {v(Aim)}")
    A(f"v_mul_f32 {v(Are)}, s44, {v(Are)}")
    A(f"v_mul_f32 {v(Aim)}, s47, {v(Aim)}")
    A(f"v_mul_f32 {v(Bre)}, {v(dt)}, {v(Bre)}")
    A(f"v_mul_f32 {v(Bim)}, {v(dt)}, {v(Bim)}")
    W = R.alloc(2, 2)
    A(f"v_mul_f32 {v(W)}, {v(Cre)}, {v(Bre)}")
    A(f"v_fma_f32 {v(W)}, -{v(Cim)}, {v(Bim)}, {v(W)}")
    A(f"v_mul_f32 {v(W+1)}, {v(Cre)}, {v(Bim)}")
    A(f"v_fma_f32 {v(W+1)}, {v(Cim)}, {v(Bre)}, {v(W+1)}")
    for r in (Bre, Bim, Cre, Cim, Ldt): R.rel(r)
    def cexp(x, conj=False):
        z = R.alloc(2, 2)
        xs = f2u(float(x))
        if x == 1:
            A(f"v_exp_f32 {v(vT)}, {v(Are)}")
            A(f"v_fract_f32 {v(vT2)}, {v(Aim)}")
        else:
            A(f"v_mul_f32 {v(vT)}, {xs}, {v(Are)}")
            A(f"v_mul_f32 {v(vT2)}, {xs}, {v(Aim)}")
            A(f"v_exp_f32 {v(vT)}, {v(vT)}")
            A(f"v_fract_f32 {v(vT2)}, {v(vT2)}")
        A(f"v_cos_f32 {v(z)}, {v(vT2)}")
        A(f"v_sin_f32 {v(z+1)}, {v(vT2)}")
        A(f"v_mul_f32 {v(z)}, {v(vT)}, {v(z)}")
        A(f"v_mul_f32 {v(z+1)}, {'-' if conj else ''}{v(vT)}, {v(z+1)}")
        return z
    def cmul(x, y, z=None):
        if z is None: z = R.alloc(2, 2)
        assert z != x and z != y
        A(f"v_pk_mul_f32 {v(z,2)}, {v(x,2)}, {v(y,2)} op_sel:[0,0] op_sel_hi:[1,0]")
        A(f"v_pk_fma_f32 {v(z,2)}, {v(x,2)}, {v(y,2)}, {v(z,2)} op_sel:[1,1,0] op_sel_hi:[0,1,1] neg_lo:[1,0,0]")
        return z
    TS = [R.alloc(2, 2) for _ in range(2)]
    HL = [R.alloc(2, 2) for _ in range(2)]
    cnt = [0]
    pending = []
    def drain(n=1):
        for _ in range(n):
            if pending: A(pending.pop(0))
    def swrite(x, row):
        k = cnt[0] & 1; cnt[0] += 1
        t = TS[k]; h = HL[k]; l = HL[k] + 1
        A(f"v_cvt_pk_bf16_f32 {v(h)}, {v(x)}, {v(x+1)}")
        A(f"v_lshlrev_b32 {v(t)}, 16, {v(h)}")
        A(f"v_and_b32 {v(t+1)}, 0xffff0000, {v(h)}")
        A(f"v_pk_add_f32 {v(t,2)}, {v(x,2)}, {v(t,2)} neg_lo:[0,1] neg_hi:[0,1]")
        A(f"v_cvt_pk_bf16_f32 {v(l)}, {v(t)}, {v(t+1)}")
        o = 136 * (row & 1)
        A(f"ds_write2_b32 {v(SW[row>>1])}, {v(h)}, {v(l)} offset0:{o} offset1:{o+64}")
        drain(1)
    Y = [None] * 16
    Y[1] = cexp(8, conj=True)
    one = R.alloc(2, 2)
    A(f"v_mov_b32 {v(one)}, 1.0")
    A(f"v_mov_b32 {v(one+1)}, 0")
    swrite(one, 0)
    R.rel(one, 2)
    swrite(Y[1], 1)
    Y[2] = cmul(Y[1], Y[1]); swrite(Y[2], 2)
    Y[3] = cmul(Y[2], Y[1]); swrite(Y[3], 3)
    Y[4] = cmul(Y[2], Y[2]); swrite(Y[4], 4)
    for j in (5, 6, 7):
        Y[j] = cmul(Y[4], Y[j-4]); swrite(Y[j], j)
    Y[8] = cmul(Y[4], Y[4]); swrite(Y[8], 8)
    tmp = [R.alloc(2, 2) for _ in range(2)]
    for j in range(9, 16):
        z = cmul(Y[8], Y[j-8], tmp[j & 1]); swrite(z, j)
    for j in range(1, 9): R.rel(Y[j], 2)
    for k in range(2): R.rel(TL[k], 4)
    Bh = [R.alloc(4, 4) for _ in range(4)]
    Bl = [R.alloc(4, 4) for _ in range(4)]
    for k in range(4):
        A(f"ds_read_b128 {v(Bh[k],4)}, {v(vSR)} offset:{64*k}")
        A(f"ds_read_b128 {v(Bl[k],4)}, {v(vSR)} offset:{64*k+256}")
    Ah = [R.alloc(4, 4) for _ in range(4)]
    Al = [R.alloc(4, 4) for _ in range(4)]
    KT = [R.alloc(4, 4) for _ in range(3)]
    def tile_reads():
        for k in range(4):
            A(f"ds_read_b128 {v(Ah[k],4)}, {v(vSR)} offset:{64*k}")
            A(f"ds_read_b128 {v(Al[k],4)}, {v(vSR)} offset:{64*k+256}")
    def tile_mfmas(T):
        out = []
        for k in range(4):
            c = "0" if k == 0 else v(KT[T], 4)
            out.append(f"v_mfma_f32_16x16x32_bf16 {v(KT[T],4)}, {v(Ah[k],4)}, {v(Bh[k],4)}, {c}")
            out.append(f"v_mfma_f32_16x16x32_bf16 {v(KT[T],4)}, {v(Al[k],4)}, {v(Bh[k],4)}, {v(KT[T],4)}")
            out.append(f"v_mfma_f32_16x16x32_bf16 {v(KT[T],4)}, {v(Ah[k],4)}, {v(Bl[k],4)}, {v(KT[T],4)}")
        return out
    A("s_waitcnt vmcnt(0)")
    A("s_barrier")
    lsk = A.newlabel("L_s4_sig"); lpn = A.newlabel("L_s4_pn"); lgo = A.newlabel("L_s4_go")
    A("s_cmp_lg_u32 s28, 0")
    A(f"s_cbranch_scc1 {lsk}")
    A(f"v_mov_b32 {v(vT)}, 0")
    A.label(lpn)
    A(f"global_load_dword {v(vT2)}, {v(vT)}, s[48:49] sc1")
    A("s_waitcnt vmcnt(0)")
    A(f"v_readfirstlane_b32 s52, {v(vT2)}")
    A("s_cmp_lg_u32 s52, 0")
    A(f"s_cbranch_scc1 {lgo}")
    A("s_sleep 2")
    A(f"s_branch {lpn}")
    A.label(lgo)
    A(f"s_lshl_b32 s36, s30, 7")
    A(f"s_lshl_b32 s37, s29, 2")
    A(f"s_add_u32 s36, s36, s37")
    A(f"s_add_u32 s36, s36, {WS_FLAG}")
    A(f"v_mov_b32 {v(vT)}, s36")
    A("s_mov_b64 exec, 1")
    A(f"global_store_dword {v(vT)}, {v(vT2)}, s[50:51] sc0 sc1")
    A("s_mov_b64 exec, -1")
    A.label(lsk)
    Pw = cexp(128)
    P2 = cmul(Pw, Pw); P4 = cmul(P2, P2); P8 = cmul(P4, P4)
    V = [None] * 8
    V[0] = W
    V[1] = cmul(V[0], Pw); V[2] = cmul(V[0], P2); V[3] = cmul(V[1], P2)
    for i in range(4, 8): V[i] = cmul(V[i-4], P4)
    R.rel(Pw, 2); R.rel(P2, 2); R.rel(P4, 2)
    for q in range(4):
        for rho in range(2):
            i = 2 * q + rho
            z = cmul(V[i], P8, tmp[rho]); swrite(z, 4 * q + rho)
            if i == 0:
                z2 = R.alloc(2, 2); cmul(z, P8, z2); swrite(z2, 2); R.rel(z2, 2)
    R.rel(P8, 2)
    tile_reads()
    E = [None] * 8
    E[1] = cexp(1)
    E[2] = cmul(E[1], E[1]); E[3] = cmul(E[2], E[1]); E[4] = cmul(E[2], E[2])
    E[5] = cmul(E[4], E[1]); E[6] = cmul(E[4], E[2]); E[7] = cmul(E[4], E[3])
    A("s_waitcnt lgkmcnt(0)")
    pending += tile_mfmas(2)
    for q in range(4):
        base = V[2 + (q >> 1)]
        for rho in range(2):
            off = 4 * (q & 1) + 2 * rho
            if off == 0: swrite(base, 4 * q + rho)
            else:
                z = cmul(base, E[off], tmp[rho]); swrite(z, 4 * q + rho)
        swrite(V[4 + q], 4 * q + 2)
        z = cmul(V[4 + q], E[4], tmp[0]); swrite(z, 4 * q + 3)
    drain(100)
    for i in range(2, 8): R.rel(V[i], 2)
    tile_reads()
    pr = [R.alloc(2, 2) for _ in range(4)]
    for k, off in enumerate((1, 2, 3, 4)):
        cmul(V[0], E[off], pr[k])
    A("s_waitcnt lgkmcnt(0)")
    pending += tile_mfmas(1)
    swrite(V[0], 0)
    for k, off in enumerate((1, 2, 3, 4)): swrite(pr[k], off)
    for off in (5, 6, 7):
        z = cmul(V[0], E[off], tmp[off & 1]); swrite(z, off)
    swrite(V[1], 8)
    for off in range(1, 8):
        z = cmul(V[1], E[off], tmp[off & 1]); swrite(z, 8 + off)
    drain(100)
    for k in range(4): R.rel(pr[k], 2)
    for i in range(1, 8): R.rel(E[i], 2)
    R.rel(V[0], 2); R.rel(V[1], 2)
    tile_reads()
    vX = R.alloc(); vXp = R.alloc()
    A(f"s_lshl_b32 s36, s28, 11")
    A(f"v_lshl_add_u32 {v(vX)}, {v(vLane)}, 4, s36")
    A(f"v_xor_b32 {v(vXp)}, 2048, {v(vX)}")
    A("s_waitcnt lgkmcnt(0)")
    for s in tile_mfmas(0): A(s)
    for k in range(4):
        R.rel(Ah[k], 4); R.rel(Al[k], 4); R.rel(Bh[k], 4); R.rel(Bl[k], 4)
    for k in range(8): R.rel(SW[k])
    for k in range(2): R.rel(TS[k], 2); R.rel(HL[k], 2); R.rel(tmp[k], 2)
    R.rel(vSR)
    lh = A.newlabel("L_s4_x1"); lhj = A.newlabel("L_s4_xj")
    A("s_cmp_eq_u32 s54, 1")
    A.fence()
    A(f"s_cbranch_scc1 {lh}")
    A(f"ds_write_b128 {v(vX)}, {v(KT[1],4)} offset:{KX}")
    A(f"ds_write_b128 {v(vX)}, {v(KT[2],4)} offset:{KX+1024}")
    A(f"s_branch {lhj}")
    A.label(lh)
    A(f"ds_write_b128 {v(vX)}, {v(KT[0],4)} offset:{KX}")
    A.label(lhj)
    stamp()
    lnp = A.newlabel("L_s4_np"); lpl = A.newlabel("L_s4_pl")
    A(f"s_lshr_b32 s36, {task}, 5")
    A(f"s_lshl_b32 s36, s36, 7")
    A(f"s_add_u32 s36, s36, {WS_FLAG}")
    A(f"v_and_b32 {v(vT)}, 31, {v(vLane)}")
    A(f"v_lshl_add_u32 {v(vT)}, {v(vT)}, 2, s36")
    A("s_cmp_lg_u32 s28, 0")
    A(f"s_cbranch_scc1 {lnp}")
    A.label(lpl)
    A(f"global_load_dword {v(vT2)}, {v(vT)}, s[50:51] sc1")
    A("s_waitcnt vmcnt(0)")
    A(f"v_cmp_ne_u32 vcc, s52, {v(vT2)}")
    A(f"s_cbranch_vccz {lnp}")
    A("s_sleep 2")
    A(f"s_branch {lpl}")
    A.label(lnp)
    A("s_waitcnt lgkmcnt(0)")
    A("s_barrier")
    stamp()
    UD = [R.alloc(4, 4) for _ in range(2)]; UP = R.alloc()
    vTau = R.alloc()
    A(f"v_and_b32 {v(vTau)}, 127, v0")
    A(f"s_lshl_b32 s36, s55, 12")
    A(f"s_add_u32 s36, s36, {WS_UT}")
    A(f"v_lshl_add_u32 {v(vT)}, {v(vTau)}, 5, s36")
    A(f"global_load_dwordx4 {v(UD[0],4)}, {v(vT)}, s[50:51] sc1")
    A(f"global_load_dwordx4 {v(UD[1],4)}, {v(vT)}, s[50:51] offset:16 sc1")
    A(f"global_load_dword {v(UP)}, {v(vT)}, s[50:51] offset:-4 sc1")
    vZ = R.alloc()
    A(f"v_mov_b32 {v(vZ)}, 0")
    A(f"v_min_u32 {v(vT)}, 7, {v(vLane)}")
    A(f"v_lshl_add_u32 {v(vT)}, {v(vT)}, 2, s34")
    A(f"ds_write_b32 {v(vT)}, {v(vZ)} offset:{C0}")
    A(f"v_min_u32 {v(vT)}, 6, {v(vLane)}")
    A(f"v_lshl_add_u32 {v(vT)}, {v(vT)}, 2, s34")
    A(f"ds_write_b32 {v(vT)}, {v(vZ)} offset:{C1}")
    R.rel(vZ)
    X1 = R.alloc(4, 4); X2 = R.alloc(4, 4)
    lh1 = A.newlabel("L_s4_h1"); lj = A.newlabel("L_s4_j")
    A("s_cmp_eq_u32 s54, 1")
    A(f"s_cbranch_scc1 {lh1}")
    A(f"ds_read_b128 {v(X1,4)}, {v(vXp)} offset:{KX}")
    A(f"v_lshrrev_b32 {v(vT)}, 1, {v(vQ)}")
    A(f"v_lshlrev_b32 {v(vT)}, 8, {v(vT)}")
    A(f"v_and_b32 {v(vT2)}, 1, {v(vQ)}")
    A(f"v_lshl_add_u32 {v(vT)}, {v(vT2)}, 3, {v(vT)}")
    A(f"v_lshl_add_u32 {v(vT)}, {v(vI)}, 4, {v(vT)}")
    A(f"v_sub_u32 {v(vT)}, s32, {v(vT)}")
    A(f"v_add_u32 {v(vT)}, 4088, {v(vT)}")
    A("s_waitcnt lgkmcnt(0)")
    A(f"v_pk_add_f32 {v(X1,2)}, {v(X1,2)}, {v(KT[0],2)}")
    A(f"v_pk_add_f32 {v(X1+2,2)}, {v(X1+2,2)}, {v(KT[0]+2,2)}")
    A(f"v_cvt_pk_bf16_f32 {v(X2)}, {v(X1+3)}, {v(X1+2)}")
    A(f"v_cvt_pk_bf16_f32 {v(X2+1)}, {v(X1+1)}, {v(X1)}")
    A(f"ds_write_b64 {v(vT)}, {v(X2,2)}")
    A(f"s_branch {lj}")
    A.label(lh1)
    A(f"ds_read_b128 {v(X1,4)}, {v(vXp)} offset:{KX}")
    A(f"ds_read_b128 {v(X2,4)}, {v(vXp)} offset:{KX+1024}")
    a3 = R.alloc(); a3f = R.alloc(); a2 = R.alloc(); a1 = R.alloc(); a1s = R.alloc()
    A(f"v_lshlrev_b32 {v(vT)}, 9, {v(vQ)}")
    A(f"v_lshl_add_u32 {v(vT)}, {v(vI)}, 4, {v(vT)}")
    A(f"v_sub_u32 {v(a3)}, s32, {v(vT)}")
    A(f"v_add_u32 {v(a3)}, {2040 - 256}, {v(a3)}")
    A(f"v_and_b32 {v(vT2)}, 1, {v(vI)}")
    A(f"v_lshl_add_u32 {v(a3f)}, {v(vT2)}, 1, {v(a3)}")
    A(f"v_add_u32 {v(a3f)}, 254, {v(a3f)}")
    A(f"v_lshlrev_b32 {v(vT)}, 8, {v(vQ)}")
    A(f"v_lshl_add_u32 {v(vT)}, {v(vI)}, 4, {v(vT)}")
    A(f"v_sub_u32 {v(a2)}, s32, {v(vT)}")
    A(f"v_add_u32 {v(a2)}, 3060, {v(a2)}")
    A(f"v_lshrrev_b32 {v(vT)}, 1, {v(vQ)}")
    A(f"v_lshlrev_b32 {v(vT)}, 8, {v(vT)}")
    A(f"v_and_b32 {v(vT2)}, 1, {v(vQ)}")
    A(f"v_lshl_add_u32 {v(vT)}, {v(vT2)}, 3, {v(vT)}")
    A(f"v_lshl_add_u32 {v(vT)}, {v(vI)}, 4, {v(vT)}")
    A(f"v_sub_u32 {v(a1)}, s32, {v(vT)}")
    A(f"v_add_u32 {v(a1)}, {2*(2045-256)}, {v(a1)}")
    A(f"v_cmp_eq_u32 vcc, 0, {v(vLane)}")
    A(f"v_add_u32 {v(a1s)}, 6, {v(a1)}")
    A(f"v_add_u32 {v(vT)}, 2, {v(a1)}")
    A(f"v_cndmask_b32 {v(a1s)}, {v(a1s)}, {v(vT)}, vcc")
    A(f"v_subrev_u32 {v(vT2)}, 256, {v(a3f)}")
    A("s_waitcnt lgkmcnt(0)")
    for k in range(2):
        A(f"v_pk_add_f32 {v(X1+2*k,2)}, {v(X1+2*k,2)}, {v(KT[1]+2*k,2)}")
        A(f"v_pk_add_f32 {v(X2+2*k,2)}, {v(X2+2*k,2)}, {v(KT[2]+2*k,2)}")
    D = [R.alloc(2, 2) for _ in range(3)]
    for rho in range(3):
        A(f"v_cvt_pk_bf16_f32 {v(D[rho])}, {v(X2+rho)}, {v(X2+rho)}")
        A(f"v_mov_b32 {v(D[rho]+1)}, {v(D[rho])}")
    A(f"ds_write2_b64 {v(a3)}, {v(D[0],2)}, {v(D[0],2)} offset0:32 offset1:33")
    A(f"ds_write2_b64 {v(a3)}, {v(D[1],2)}, {v(D[1],2)} offset0:0 offset1:1")
    A(f"v_mov_b32 {v(vT)}, s32")
    A("s_mov_b64 exec, 1")
    A(f"ds_write_b64 {v(vT)}, {v(D[2],2)}")
    A("s_mov_b64 exec, -1")
    A(f"ds_write_b16 {v(a3f)}, {v(D[0])}")
    A(f"ds_write_b16 {v(vT2)}, {v(D[1])}")
    A(f"v_cvt_pk_bf16_f32 {v(D[0])}, {v(X1+3)}, {v(X1+3)}")
    A(f"v_cvt_pk_bf16_f32 {v(D[0]+1)}, {v(X1+3)}, {v(X1+2)}")
    A(f"v_cvt_pk_bf16_f32 {v(D[1])}, {v(X1+2)}, {v(X1+2)}")
    A(f"ds_write2_b32 {v(a2)}, {v(D[0])}, {v(D[0]+1)} offset0:0 offset1:1")
    A(f"ds_write2_b32 {v(a2)}, {v(D[1])}, {v(D[1])} offset0:2 offset1:3")
    A(f"v_cvt_pk_bf16_f32 {v(D[2])}, {v(X1+1)}, {v(X1+1)}")
    A(f"v_cvt_pk_bf16_f32 {v(D[2]+1)}, {v(X1)}, {v(X1)}")
    A(f"ds_write_b16 {v(a1)}, {v(D[2])}")
    A(f"ds_write_b32 {v(a1)}, {v(D[2]+1)} offset:2")
    A(f"ds_write_b16 {v(a1s)}, {v(D[2]+1)}")
    for k in range(3): R.rel(D[k], 2)
    for r in (a3, a3f, a2, a1, a1s): R.rel(r)
    A.label(lj)
    R.rel(X1, 4); R.rel(X2, 4)
    for k in range(3): R.rel(KT[k], 4)
    vK = R.alloc(); vU = [R.alloc() for _ in range(4)]
    A(f"v_lshlrev_b32 {v(vT)}, 5, {v(vI)}")
    A(f"v_lshlrev_b32 {v(vT2)}, 4, {v(vQ)}")
    A(f"v_sub_u32 {v(vK)}, {v(vT2)}, {v(vT)}")
    A(f"s_lshl_b32 s36, s54, 8")
    A(f"s_add_u32 s37, s36, s32")
    A(f"s_add_u32 s37, s37, 480")
    A(f"v_add_u32 {v(vK)}, s37, {v(vK)}")
    A(f"s_add_u32 s36, s36, s34")
    A(f"v_lshlrev_b32 {v(vT)}, 1, {v(vI)}")
    A(f"v_add_u32 {v(vT)}, {v(vT)}, {v(vT2)}")
    A(f"v_and_b32 {v(vT2)}, 1, {v(vI)}")
    A(f"v_cmp_eq_u32 vcc, 0, {v(vT2)}")
    A(f"v_mov_b32 {v(vU[0])}, {C0 + 2}")
    A(f"v_mov_b32 {v(vU[1])}, {C1}")
    A(f"v_cndmask_b32 {v(vU[0])}, {v(vU[0])}, {v(vU[1])}, vcc")
    A(f"v_add3_u32 {v(vU[0])}, {v(vU[0])}, {v(vT)}, s36")
    for k in range(1, 4):
        A(f"v_add_u32 {v(vU[k])}, {1024*k}, {v(vU[0])}")
    UO = [R.alloc(4, 4) for _ in range(2)]
    A(f"v_cmp_eq_u32 vcc, 0, {v(vTau)}")
    A(f"v_lshl_add_u32 {v(vT)}, {v(vTau)}, 5, s34")
    A("s_waitcnt vmcnt(0)")
    A(f"v_cndmask_b32 {v(UP)}, {v(UP)}, 0, vcc")
    A(f"ds_write_b128 {v(vT)}, {v(UD[0],4)} offset:{C0 + 32}")
    A(f"ds_write_b128 {v(vT)}, {v(UD[1],4)} offset:{C0 + 48}")
    seq = [UP] + [UD[0] + k for k in range(4)] + [UD[1] + k for k in range(4)]
    for k in range(8):
        A(f"v_alignbit_b32 {v(UO[k//4] + k%4)}, {v(seq[k+1])}, {v(seq[k])}, 16")
    A(f"ds_write_b128 {v(vT)}, {v(UO[0],4)} offset:{C1 + 28}")
    A(f"ds_write_b128 {v(vT)}, {v(UO[1],4)} offset:{C1 + 44}")
    A("s_waitcnt lgkmcnt(0)")
    A("s_barrier")
    for k in range(2): R.rel(UO[k], 4); R.rel(UD[k], 4)
    R.rel(UP); R.rel(vTau)
    stamp()
    if STAMP: A("s_waitcnt lgkmcnt(0)")
    ACC = [R.alloc(4, 4) for _ in range(8)]
    NKS = 9; NUS = 5
    KS = [R.alloc(4, 4) for _ in range(NKS)]
    US = [R.alloc(4, 4) for _ in range(NUS)]
    ops = []
    for rr in range(4):
        if rr % 2 == 1:
            for m in range(8):
                for phi in range(8 - m): ops.append((rr, m, phi))
        else:
            for m in range(7, -1, -1):
                for phi in range(8 - m): ops.append((rr, m, phi))
    first = {}; last = {}
    for idx, (rr, m, phi) in enumerate(ops):
        for key in (("K", rr, phi), ("U", rr, m)):
            first.setdefault(key, idx); last[key] = idx
    LEAD = 10
    loads = []
    for kind, nslots in (("K", NKS), ("U", NUS)):
        keys = sorted([k for k in first if k[0] == kind], key=lambda k: first[k])
        freeat = [-1] * nslots
        for k in keys:
            s = min(range(nslots), key=lambda s: freeat[s])
            assert freeat[s] < first[k], (k, freeat, first[k])
            issue = max(freeat[s] + 1, first[k] - LEAD, 0)
            loads.append((issue, first[k], k, s))
            freeat[s] = last[k]
    loads.sort()
    slot = {k: s for (_, _, k, s) in loads}
    issued = []
    done_upto = [0]
    li = 0
    started = set()
    for idx, (rr, m, phi) in enumerate(ops):
        while li < len(loads) and loads[li][0] <= idx:
            _, _, k, s = loads[li]; li += 1
            if k[0] == "K":
                A(f"ds_read_b128 {v(KS[s],4)}, {v(vK)} offset:{64*k[1] + 512*(7-k[2])}")
                issued.append(k)
            else:
                o = 16 * k[1] + 128 * (k[2] & 1)
                A(f"ds_read2_b32 {v(US[s],2)}, {v(vU[k[2]>>1])} offset0:{o} offset1:{o+1}")
                A(f"ds_read2_b32 {v(US[s]+2,2)}, {v(vU[k[2]>>1])} offset0:{o+2} offset1:{o+3}")
                issued.append(k); issued.append(k)
        needpos = max(len(issued) - 1 - issued[::-1].index(k) for k in (("K", rr, phi), ("U", rr, m)))
        if needpos + 1 > done_upto[0]:
            N = min(len(issued) - (needpos + 1), 15)
            A(f"s_waitcnt lgkmcnt({N})")
            done_upto[0] = len(issued) - N
        c = m + phi
        cc = v(ACC[c], 4) if c in started else "0"
        started.add(c)
        A(f"v_mfma_f32_16x16x32_bf16 {v(ACC[c],4)}, {v(US[slot[('U',rr,m)]],4)}, {v(KS[slot[('K',rr,phi)]],4)}, {cc}")
    stamp()
    if STAMP: A("s_waitcnt lgkmcnt(0)")
    Xr = [KS[k] for k in range(4)]
    Ur = [US[k] for k in range(4)]
    A(f"s_lshl_b32 s36, s28, 12")
    A(f"v_lshl_add_u32 {v(vX)}, {v(vLane)}, 4, s36")
    A(f"v_xor_b32 {v(vXp)}, 4096, {v(vX)}")
    A(f"v_lshlrev_b32 {v(vT)}, 5, {v(vI)}")
    A(f"v_lshl_add_u32 {v(vT)}, {v(vQ)}, 3, {v(vT)}")
    A(f"s_lshl_b32 s36, s54, 11")
    A(f"s_add_u32 s37, s36, s34")
    A(f"v_add_u32 {v(vT2)}, s37, {v(vT)}")
    A(f"s_lshl_b32 s37, s55, 12")
    A(f"s_add_u32 s37, s37, s36")
    A(f"v_add_u32 {v(vT)}, s37, {v(vT)}")
    for k in range(4):
        A(f"ds_read_b64 {v(Ur[k],2)}, {v(vT2)} offset:{C0 + 32 + 512*k}")
    lh1 = A.newlabel("L_s4_e1"); lj = A.newlabel("L_s4_ej")
    A("s_cmp_eq_u32 s54, 1")
    A.fence()
    A(f"s_cbranch_scc1 {lh1}")
    for k in range(4):
        A(f"ds_write_b128 {v(vX)}, {v(ACC[4+k],4)} offset:{CX + 1024*k}")
    A(f"s_branch {lj}")
    A.label(lh1)
    for k in range(4):
        A(f"ds_write_b128 {v(vX)}, {v(ACC[k],4)} offset:{CX + 1024*k}")
    A("s_waitcnt lgkmcnt(0)")
    for k in range(4):
        for j in range(2):
            A(f"v_pk_mov_b32 {v(ACC[k]+2*j,2)}, {v(ACC[4+k]+2*j,2)}, {v(ACC[4+k]+2*j,2)} op_sel:[0,1]")
    A.label(lj)
    A("s_waitcnt lgkmcnt(0)")
    A("s_barrier")
    for k in range(4):
        A(f"ds_read_b128 {v(Xr[k],4)}, {v(vXp)} offset:{CX + 1024*k}")
    DS2 = R.alloc(2, 2)
    A(f"v_mov_b32 {v(DS2)}, {v(Dsk)}")
    A(f"v_mov_b32 {v(DS2+1)}, {v(Dsk)}")
    T4 = [KS[4], KS[5]]
    for k in range(4):
        t = T4[k & 1]; u = Ur[k]
        A(f"v_lshlrev_b32 {v(t)}, 16, {v(u)}")
        A(f"v_and_b32 {v(t+1)}, 0xffff0000, {v(u)}")
        A(f"v_lshlrev_b32 {v(t+2)}, 16, {v(u+1)}")
        A(f"v_and_b32 {v(t+3)}, 0xffff0000, {v(u+1)}")
        A(f"v_pk_mul_f32 {v(t,2)}, {v(t,2)}, {v(DS2,2)}")
        A(f"v_pk_mul_f32 {v(t+2,2)}, {v(t+2,2)}, {v(DS2,2)}")
        A(f"v_cvt_pk_bf16_f32 {v(u)}, {v(t)}, {v(t+1)}")
        A(f"v_cvt_pk_bf16_f32 {v(u+1)}, {v(t+2)}, {v(t+3)}")
        A(f"v_lshlrev_b32 {v(t)}, 16, {v(u)}")
        A(f"v_and_b32 {v(t+1)}, 0xffff0000, {v(u)}")
        A(f"v_lshlrev_b32 {v(t+2)}, 16, {v(u+1)}")
        A(f"v_and_b32 {v(t+3)}, 0xffff0000, {v(u+1)}")
        A(f"s_waitcnt lgkmcnt({3-k})")
        x = Xr[k]
        A(f"v_pk_add_f32 {v(x,2)}, {v(x,2)}, {v(ACC[k],2)}")
        A(f"v_pk_add_f32 {v(x+2,2)}, {v(x+2,2)}, {v(ACC[k]+2,2)}")
        A(f"v_cvt_pk_bf16_f32 {v(u)}, {v(x)}, {v(x+1)}")
        A(f"v_cvt_pk_bf16_f32 {v(u+1)}, {v(x+2)}, {v(x+3)}")
        A(f"v_lshlrev_b32 {v(x)}, 16, {v(u)}")
        A(f"v_and_b32 {v(x+1)}, 0xffff0000, {v(u)}")
        A(f"v_lshlrev_b32 {v(x+2)}, 16, {v(u+1)}")
        A(f"v_and_b32 {v(x+3)}, 0xffff0000, {v(u+1)}")
        A(f"v_pk_add_f32 {v(x,2)}, {v(x,2)}, {v(t,2)}")
        A(f"v_pk_add_f32 {v(x+2,2)}, {v(x+2,2)}, {v(t+2,2)}")
        A(f"v_cvt_pk_bf16_f32 {v(u)}, {v(x)}, {v(x+1)}")
        A(f"v_cvt_pk_bf16_f32 {v(u+1)}, {v(x+2)}, {v(x+3)}")
        A(f"global_store_dwordx2 {v(vT)}, {v(u,2)}, s[50:51] offset:{WS_AT + 512*k} {sc}")
    if done is not None: done(vT, vT2)
    if STAMP:
        A("s_waitcnt vmcnt(0)")
        stamp()
        A("s_waitcnt lgkmcnt(0)")
        A(f"s_lshl_b32 s36, {task}, 3")
        A(f"s_add_u32 s36, s36, s28")
        A(f"s_lshl_b32 s36, s36, 6")
        A(f"s_add_u32 s36, s36, {WS_STAMP + 0x200000}")
        A(f"v_mov_b32 {v(vT)}, s36")
        for k in stamps:
            A(f"v_mov_b32 {v(vT2)}, s{64+2*k}")
            A(f"global_store_dword {v(vT)}, {v(vT2)}, s[50:51] offset:{4*k}")
    return R.hi, S4_LDS

def gen_nonce(A):
    l = A.newlabel("L_nonce")
    A("s_memrealtime s[36:37]")
    A("v_mov_b32 v110, 0")
    A("v_cmp_eq_u32 vcc, 0, v0")
    A("s_waitcnt lgkmcnt(0)")
    A("s_or_b32 s36, s36, 1")
    A("v_mov_b32 v111, s36")
    A("s_and_saveexec_b64 s[34:35], vcc")
    A(f"s_cbranch_execz {l}")
    A("global_store_dword v110, v111, s[48:49] sc0 sc1")
    A.label(l)
    A("s_mov_b64 exec, s[34:35]")
```

```python
import sys
from asmlib import *
import s4c, gemm2, final
from gemm import gen_zero

def build(stamp=False):
    s4c.STAMP = stamp
    A = Asm()
    A.raw(kernel_header("l1_kernel"))
    A("s_cmp_ge_u32 s2, 576")
    A("s_cbranch_scc1 L1_end")
    A("s_and_b32 s5, s2, 7")
    A("s_lshr_b32 s6, s2, 3")
    A("s_cmp_ge_u32 s6, 32")
    A("s_cbranch_scc1 L1_s4")
    A("s_cmp_ge_u32 s6, 24")
    A("s_cbranch_scc1 L1_help")
    A("s_mul_i32 s7, s6, 43")
    A("s_lshr_b32 s7, s7, 8")
    A("s_mul_i32 s4, s7, 6")
    A("s_sub_u32 s4, s6, s4")
    A("s_lshr_b32 s3, s5, 1")
    A("s_lshl_b32 s3, s3, 2")
    A("s_add_u32 s3, s3, s7")
    A("s_and_b32 s5, s5, 1")
    A("s_mul_i32 s5, s5, 6")
    A("s_mov_b32 s6, s4")
    A("s_add_u32 s4, s4, s5")
    nv1, lds1 = gemm2.gen_gemm(A, "s3", "s4", stamp_task="s2" if stamp else None, pre=("s6", "s7"))
    A("s_branch L1_end")
    A.label("L1_help")
    A("s_sub_u32 s3, s6, 24")
    A("s_lshl_b32 s3, s3, 3")
    A("s_add_u32 s3, s3, s5")
    A("s_cmp_lg_u32 s3, 0")
    A("s_cbranch_scc1 L1_gate")
    A("s_load_dwordx4 s[48:51], s[0:1], 112")
    A("s_waitcnt lgkmcnt(0)")
    s4c.gen_nonce(A)
    gen_zero(A)
    A.label("L1_gate")
    nv2 = final.gen_gate(A, "s3")
    A("s_branch L1_end")
    A.label("L1_s4")
    A("s_sub_u32 s3, s6, 32")
    A("s_lshl_b32 s3, s3, 3")
    A("s_add_u32 s3, s3, s5")
    nv3, lds3 = s4c.gen_s4(A, "s3")
    A.label("L1_end")
    A("s_endpgm")
    A.raw(kernel_header("l2_kernel"))
    A.hist = []
    A("s_cmp_ge_u32 s2, 256")
    A("s_cbranch_scc1 L2_end")
    A("s_and_b32 s5, s2, 7")
    A("s_lshr_b32 s6, s2, 3")
    A("s_lshr_b32 s3, s6, 3")
    A("s_lshl_b32 s5, s5, 2")
    A("s_add_u32 s3, s3, s5")
    A("s_and_b32 s4, s6, 7")
    nv4, lds4 = final.gen_final(A, "s3", "s4", stamp_task="s2" if stamp else None)
    A.label("L2_end")
    A("s_endpgm")
    nvA = max(nv1, nv2, nv3, 112); ldsA = max(lds1, lds3)
    hdr = open("gated_mix__ssm_conv_s4__linear_attn_block__prompt.s.ref").read().split("; Override launch geometry")[0]
    out = hdr
    out += f"; @launch kernel=l1_kernel grid=(576,1,1) block=(256,1,1) lds={ldsA}\n"
    out += f"; @launch kernel=l2_kernel grid=(256,1,1) block=(256,1,1) lds={lds4}\n"
    out += '.amdgcn_target "amdgcn-amd-amdhsa--gfx950"\n.text\n' + A.text()
    out += '.section .rodata,"a"\n' + kernel_desc("l1_kernel", nvA, 96) + kernel_desc("l2_kernel", nv4, 96)
    print("L1 vgpr", nv1, nv2, nv3, "lds", lds1, lds3, "L2 vgpr", nv4, "lds", lds4, "lines", len(A.lines))
    return out

if __name__ == "__main__":
    open(sys.argv[1], "w").write(build(len(sys.argv) > 2))
```

```python
import numpy as np
from asmlib import *
import os
TIMER = os.environ.get('TIMER', 's_memtime')
from s4 import Regs, v, f2u
from s4b import WS_AT, WS_G, WS_KV, WS_STAMP

WS_PQF = 0x800000
KVZ = 0
FAST = True
WO = 26896
FINAL_LDS = WO + 25600

PAIR = [(0, 0), (0, 1), (0, 3), (0, 4), (0, 2), (1, 2), (1, 0), (1, 1), (1, 3), (1, 4)]

def gen_final(A, rb="s3", cb="s4", sc="", wait=None, stamp_task=None, tid_ready=True):
    stamps = []
    def stamp():
        if stamp_task is None: return
        k = len(stamps); stamps.append(k)
        A(f"{TIMER} s[{64+2*k}:{65+2*k}]")
    R = Regs(1, 256)
    A(f"""
    s_load_dwordx2 s[12:13], s[0:1], 88
    s_load_dwordx2 s[16:17], s[0:1], 104
    s_load_dwordx4 s[48:51], s[0:1], 112
    """)
    stamp()
    lane = R.alloc(); vi = R.alloc(); vq = R.alloc(); t1 = R.alloc(); t2 = R.alloc(); t3 = R.alloc()
    A(f"v_and_b32 {v(lane)}, 63, v0")
    A(f"v_lshrrev_b32 {v(t1)}, 6, v0")
    A(f"v_readfirstlane_b32 s28, {v(t1)}")
    A(f"v_and_b32 {v(vi)}, 15, {v(lane)}")
    A(f"v_lshrrev_b32 {v(vq)}, 4, {v(lane)}")
    vDW = R.alloc()
    A(f"v_mul_u32_u24 {v(t1)}, 6554, {v(lane)}")
    A(f"v_lshrrev_b32 {v(t1)}, 16, {v(t1)}")
    A(f"v_mul_u32_u24 {v(t2)}, 10, {v(t1)}")
    A(f"v_sub_u32 {v(t2)}, {v(lane)}, {v(t2)}")
    A(f"s_mul_i32 s29, s28, 5")
    A(f"v_add_u32 {v(t1)}, s29, {v(t1)}")
    A(f"v_mul_u32_u24 {v(t1)}, 1280, {v(t1)}")
    A(f"v_lshl_add_u32 {v(t1)}, {v(t2)}, 4, {v(t1)}")
    A(f"s_mul_i32 s29, {cb}, 160")
    A(f"v_add_u32 {v(vDW)}, s29, {v(t1)}")
    A(f"s_mul_i32 s35, s28, 800")
    A(f"s_add_u32 s35, s35, {WO}")
    A("s_mov_b32 s60, -1")
    A("s_mov_b32 s61, 0x3ffff")
    A("s_mov_b32 s62, -1")
    A("s_mov_b32 s63, 0xffff")
    A("s_mov_b32 s38, 0")
    A("s_waitcnt lgkmcnt(0)")
    A("s_mov_b32 s14, 819200")
    A("s_mov_b32 s15, 0x20000")
    def issueW(h0):
        A("s_mov_b64 exec, s[60:61]")
        for h in range(h0, h0 + 4):
            A(f"s_add_u32 m0, s35, {3200*h}")
            A(f"buffer_load_dwordx4 {v(vDW)}, s[12:15], s38 offen lds")
            A(f"s_add_u32 s38, s38, 25600")
        A("s_mov_b64 exec, -1")
    issueW(0); issueW(4)
    VW = [[R.alloc() for _ in range(2)] for _ in range(5)]
    vr = R.alloc(); vc8 = R.alloc()
    A(f"v_lshrrev_b32 {v(vr)}, 2, {v(vi)}")
    A(f"v_and_b32 {v(vc8)}, 3, {v(vi)}")
    A(f"v_lshlrev_b32 {v(vc8)}, 3, {v(vc8)}")
    A(f"v_add_u32 {v(vc8)}, {WO}, {v(vc8)}")
    A(f"v_lshlrev_b32 {v(t3)}, 3, {v(vr)}")
    for f in range(5):
        for hf in range(2):
            bases = 0; mults = 0
            for rp in range(4):
                idx = 8 * f + 4 * hf + rp
                ho, r = PAIR[idx % 10]
                head = 2 * (idx // 10) + ho
                base = 20 * head + (r if r < 3 else 12 + r - 3)
                mult = 3 if r < 3 else 2
                bases |= base << (8 * rp); mults |= mult << (8 * rp)
            A(f"s_mov_b32 s29, {bases}")
            A(f"s_mov_b32 s30, {mults}")
            A(f"v_bfe_u32 {v(t1)}, s29, {v(t3)}, 8")
            A(f"v_bfe_u32 {v(t2)}, s30, {v(t3)}, 8")
            A(f"v_mad_u32_u24 {v(t1)}, {v(t2)}, {v(vq)}, {v(t1)}")
            A(f"v_mul_u32_u24 {v(t1)}, 160, {v(t1)}")
            A(f"v_add_u32 {v(VW[f][hf])}, {v(t1)}, {v(vc8)}")
    R.rel(vr); R.rel(vc8)
    vK0 = R.alloc(); vK1 = R.alloc()
    A(f"v_lshrrev_b32 {v(t1)}, 2, {v(vi)}")
    A(f"v_and_b32 {v(t2)}, 3, {v(vi)}")
    A(f"v_min_u32 {v(t3)}, 2, {v(vq)}")
    A(f"v_lshlrev_b32 {v(t3)}, 4, {v(t3)}")
    A(f"v_mad_u32_u24 {v(vK0)}, {v(t1)}, 3, {v(t2)}")
    A(f"v_cmp_eq_u32 vcc, 3, {v(t2)}")
    A(f"v_cndmask_b32 {v(vK0)}, {v(vK0)}, 20, vcc")
    A(f"v_mad_u32_u24 {v(vK0)}, {v(vK0)}, 40, {v(t3)}")
    A(f"v_lshl_add_u32 {v(vK1)}, {v(t1)}, 1, {v(t2)}")
    A(f"v_add_u32 {v(vK1)}, 12, {v(vK1)}")
    A(f"v_cmp_lt_u32 vcc, 1, {v(t2)}")
    A(f"v_cndmask_b32 {v(vK1)}, {v(vK1)}, 20, vcc")
    A(f"v_mad_u32_u24 {v(vK1)}, {v(vK1)}, 40, {v(t3)}")
    vPQ = R.alloc(); vMask = R.alloc()
    A(f"s_lshl_b32 s29, {rb}, 2")
    A(f"s_add_u32 s29, s29, s28")
    A(f"s_mul_i32 s29, s29, {32*768}")
    A(f"s_add_u32 s29, s29, {WS_PQF}")
    A(f"v_lshl_add_u32 {v(vPQ)}, {v(lane)}, 4, s29")
    A(f"v_cmp_gt_u32 vcc, 2, {v(vq)}")
    A(f"v_cndmask_b32 {v(vMask)}, 0, -1, vcc")
    NPQ = 8
    PQ = [R.alloc(4, 4) for _ in range(NPQ)]
    for p in PQ:
        for k in range(4): A(f"v_mov_b32 {v(p+k)}, 0")
    ACC = [R.alloc(4, 4) for _ in range(5)]
    for a in ACC:
        for k in range(4): A(f"v_mov_b32 {v(a+k)}, 0")
    if wait is not None:
        wtmp = [R.alloc() for _ in range(6)]
        wait("kvpq", wtmp)
        for r in wtmp: R.rel(r)
    stamp()
    KL = [R.alloc(4, 4) for _ in range(14)]
    A(f"s_add_u32 s44, s50, {WS_KV}")
    A(f"s_addc_u32 s45, s51, 0")
    A(f"s_mov_b32 s46, {32*21*20*4}")
    A(f"s_mov_b32 s47, 0x20000")
    A(f"v_lshlrev_b32 {v(t1)}, 4, v0")
    for m in range(14):
        A(f"s_mov_b32 s29, {4096*m}")
        A(f"buffer_load_dwordx4 {v(KL[m],4)}, {v(t1)}, s[44:47], s29 offen {sc}")
    def ldpq(slot, hloc):
        A(f"global_load_dwordx4 {v(PQ[slot],4)}, {v(vPQ)}, s[50:51] offset:{768*hloc} {sc}")
    A("s_mov_b64 exec, s[62:63]")
    for k in range(4): ldpq(k, k)
    A(f"v_add_u32 {v(vPQ)}, 3072, {v(vPQ)}")
    for k in range(4): ldpq(4 + k, k)
    A(f"v_add_u32 {v(vPQ)}, 3072, {v(vPQ)}")
    A("s_mov_b64 exec, -1")
    A(f"v_lshlrev_b32 {v(t1)}, 3, v0")
    for m in range(14):
        A(f"s_waitcnt vmcnt({8 + 13 - m})")
        A(f"v_cvt_pk_bf16_f32 {v(KL[m])}, {v(KL[m])}, {v(KL[m]+1)}")
        A(f"v_cvt_pk_bf16_f32 {v(KL[m]+1)}, {v(KL[m]+2)}, {v(KL[m]+3)}")
        if m == 13:
            A(f"v_cmp_gt_u32 vcc, 34, v0")
            A("s_and_saveexec_b64 s[30:31], vcc")
        A(f"ds_write_b64 {v(t1)}, {v(KL[m],2)} offset:{KVZ + 2048*m}")
        if m == 13:
            A("s_mov_b64 exec, -1")
    for k in KL: R.rel(k, 4)
    A(f"s_mov_b32 s58, {f2u(1e-6)}")
    A("s_waitcnt vmcnt(0) lgkmcnt(0)")
    A("s_barrier")
    stamp()
    KF = [[R.alloc(4, 4) for _ in range(2)] for _ in range(2)]
    D = [[R.alloc(4, 4) for _ in range(2)] for _ in range(2)]
    OF = [R.alloc(4, 4) for _ in range(5)]
    WF = [R.alloc(4, 4) for _ in range(5)]
    TP = [R.alloc() for _ in range(4)]
    RC = [R.alloc(2, 2) for _ in range(2)]
    ATR = [D[0][0], D[0][1], D[1][0]]
    vATW = R.alloc()
    def rdk(par, hodd):
        o = 105 * hodd
        A(f"ds_read2_b64 {v(KF[par][0],4)}, {v(vK0)} offset0:{o} offset1:{o+1}")
        A(f"ds_read2_b64 {v(KF[par][1],4)}, {v(vK1)} offset0:{o} offset1:{o+1}")
    A("s_mov_b32 s41, 0")
    loop = A.newlabel("L_f_loop")
    rdk(0, 0); rdk(1, 1)
    A(f"v_add_u32 {v(vK0)}, 1680, {v(vK0)}")
    A(f"v_add_u32 {v(vK1)}, 1680, {v(vK1)}")
    A.label(loop)
    for hp in range(4):
        A("s_waitcnt vmcnt(14)")
        for ho in range(2):
            p = PQ[2 * hp + ho]
            A(f"v_and_b32 {v(p+2)}, {v(vMask)}, {v(p+2)}")
            A(f"v_and_b32 {v(p+3)}, {v(vMask)}, {v(p+3)}")
        A("s_waitcnt lgkmcnt(0)")
        for ho in range(2):
            p = PQ[2 * hp + ho]
            A(f"v_mfma_f32_16x16x32_bf16 {v(D[ho][0],4)}, {v(KF[ho][0],4)}, {v(p,4)}, 0")
            A(f"v_mfma_f32_16x16x32_bf16 {v(D[ho][1],4)}, {v(KF[ho][1],4)}, {v(p,4)}, 0")
        rdk(0, 0); rdk(1, 1)
        A(f"v_add_u32 {v(vK0)}, 1680, {v(vK0)}")
        A(f"v_add_u32 {v(vK1)}, 1680, {v(vK1)}")
        A("s_mov_b64 exec, s[62:63]")
        ldpq(2 * hp, 2 * (hp & 1)); ldpq(2 * hp + 1, 2 * (hp & 1) + 1)
        A("s_mov_b64 exec, -1")
        if hp & 1: A(f"v_add_u32 {v(vPQ)}, 3072, {v(vPQ)}")
        for ho in range(2):
            d0 = D[ho][0]; d1 = D[ho][1]; rc = RC[ho]
            if FAST:
                A(f"v_add_f32 {v(rc)}, s58, {v(d0+3)}")
                A(f"v_rcp_f32 {v(rc)}, {v(rc)}")
            else:
                A(f"v_cvt_pk_bf16_f32 {v(TP[0])}, {v(d0)}, {v(d0+1)}")
                A(f"v_cvt_pk_bf16_f32 {v(TP[1])}, {v(d0+2)}, {v(d0+3)}")
                A(f"v_cvt_pk_bf16_f32 {v(TP[2])}, {v(d1)}, {v(d1+1)}")
                A(f"v_and_b32 {v(rc)}, 0xffff0000, {v(TP[1])}")
                A(f"v_add_f32 {v(rc)}, s58, {v(rc)}")
                A(f"v_cvt_pk_bf16_f32 {v(rc)}, {v(rc)}, {v(rc)}")
                A(f"v_lshlrev_b32 {v(rc)}, 16, {v(rc)}")
                A(f"v_rcp_f32 {v(rc)}, {v(rc)}")
                A(f"v_lshlrev_b32 {v(d0)}, 16, {v(TP[0])}")
                A(f"v_and_b32 {v(d0+1)}, 0xffff0000, {v(TP[0])}")
                A(f"v_lshlrev_b32 {v(d0+2)}, 16, {v(TP[1])}")
                A(f"v_lshlrev_b32 {v(d1)}, 16, {v(TP[2])}")
                A(f"v_and_b32 {v(d1+1)}, 0xffff0000, {v(TP[2])}")
            A(f"v_pk_mul_f32 {v(d0,2)}, {v(d0,2)}, {v(rc,2)} op_sel:[0,0] op_sel_hi:[1,0]")
            A(f"v_mul_f32 {v(d0+2)}, {v(d0+2)}, {v(rc)}")
            A(f"v_pk_mul_f32 {v(d1,2)}, {v(d1,2)}, {v(rc,2)} op_sel:[0,0] op_sel_hi:[1,0]")
        dw = lambda k: OF[(5 * hp + k) // 4] + (5 * hp + k) % 4
        A(f"v_cvt_pk_bf16_f32 {v(dw(0))}, {v(D[0][0])}, {v(D[0][0]+1)}")
        A(f"v_cvt_pk_bf16_f32 {v(dw(1))}, {v(D[0][1])}, {v(D[0][1]+1)}")
        A(f"v_cvt_pk_bf16_f32 {v(dw(2))}, {v(D[0][0]+2)}, {v(D[1][0]+2)}")
        A(f"v_cvt_pk_bf16_f32 {v(dw(3))}, {v(D[1][0])}, {v(D[1][0]+1)}")
        A(f"v_cvt_pk_bf16_f32 {v(dw(4))}, {v(D[1][1])}, {v(D[1][1]+1)}")
    A("s_waitcnt vmcnt(8)")
    A("s_barrier")
    def rdw(f, nt):
        A(f"ds_read_b64_tr_b16 {v(WF[nt],2)}, {v(VW[f][0])} offset:{32*nt}")
        A(f"ds_read_b64_tr_b16 {v(WF[nt]+2,2)}, {v(VW[f][1])} offset:{32*nt}")
    for nt in range(5): rdw(0, nt)
    lskip = A.newlabel("L_f_sk"); lskip2 = A.newlabel("L_f_sk2"); lat = A.newlabel("L_f_at")
    for f in range(5):
        for nt in range(5):
            n = 8 if f < 4 else 2 * (4 - nt)
            A(f"s_waitcnt lgkmcnt({n})")
            A(f"v_mfma_f32_16x16x32_bf16 {v(ACC[nt],4)}, {v(WF[nt],4)}, {v(OF[f],4)}, {v(ACC[nt],4)}")
            if f < 4: rdw(f + 1, nt)
        if f == 2:
            A("s_barrier")
            A("s_cmp_eq_u32 s41, 3")
            A(f"s_cbranch_scc1 {lat}")
            issueW(0)
            A(f"s_branch {lskip}")
            A.label(lat)
            if wait is not None: wait("at", [D[1][1], D[1][1]+1, D[1][1]+2, D[1][1]+3, TP[0], TP[1]])
            A(f"s_mul_i32 s29, s28, 160")
            A(f"v_add_u32 {v(t1)}, s29, {v(lane)}")
            A(f"v_lshrrev_b32 {v(t2)}, 3, {v(t1)}")
            A(f"v_and_b32 {v(t1)}, 7, {v(t1)}")
            A(f"v_lshlrev_b32 {v(t2)}, 12, {v(t2)}")
            A(f"v_lshl_add_u32 {v(t1)}, {v(t1)}, 4, {v(t2)}")
            A(f"s_mul_i32 s29, {cb}, {80*4096}")
            A(f"s_lshl_b32 s30, {rb}, 7")
            A(f"s_add_u32 s29, s29, s30")
            A(f"s_add_u32 s44, s50, {WS_AT}")
            A(f"s_addc_u32 s45, s51, 0")
            A(f"s_mov_b32 s46, {640*4096}")
            A(f"s_mul_i32 s30, s28, 2560")
            A(f"s_add_u32 s30, s30, {WO}")
            for j in range(3):
                if j == 2: A("s_mov_b64 exec, 0xffffffff")
                A(f"buffer_load_dwordx4 {v(ATR[j],4)}, {v(t1)}, s[44:47], s29 offen {sc}")
                A(f"s_add_u32 s29, s29, {8*4096}")
            A("s_mov_b64 exec, -1")
            A(f"v_lshl_add_u32 {v(vATW)}, {v(lane)}, 4, s30")
            A(f"s_lshl_b32 s29, {rb}, 8")
            A(f"s_lshl_b32 s30, s28, 6")
            A(f"s_add_u32 s29, s29, s30")
            A(f"s_add_u32 s29, s29, {WS_G}")
            A(f"v_lshl_add_u32 {v(t2)}, {v(vi)}, 2, s29")
            A(f"global_load_dword {v(t3)}, {v(t2)}, s[50:51] {sc}")
            A.label(lskip)
    A("s_cmp_eq_u32 s41, 3")
    A(f"s_cbranch_scc1 {lskip2}")
    A("s_barrier")
    issueW(4)
    A("s_add_u32 s41, s41, 1")
    A(f"s_branch {loop}")
    A.label(lskip2)
    stamp()
    A(f"v_lshrrev_b32 {v(t1)}, 2, {v(vi)}")
    A(f"v_lshl_add_u32 {v(t1)}, {v(vq)}, 2, {v(t1)}")
    A(f"v_lshlrev_b32 {v(t1)}, 7, {v(t1)}")
    A(f"v_and_b32 {v(t2)}, 3, {v(vi)}")
    A(f"v_lshl_add_u32 {v(t1)}, {v(t2)}, 3, {v(t1)}")
    A(f"s_lshl_b32 s29, s28, 5")
    A(f"s_add_u32 s29, s29, {WO}")
    A(f"v_add_u32 {v(t1)}, s29, {v(t1)}")
    A(f"s_lshl_b32 s29, {rb}, 6")
    A(f"s_lshl_b32 s30, s28, 4")
    A(f"s_add_u32 s29, s29, s30")
    A(f"v_add_u32 {v(t2)}, s29, {v(vi)}")
    A(f"v_mul_u32_u24 {v(t2)}, 1280, {v(t2)}")
    A(f"s_mul_i32 s29, {cb}, 160")
    vO8 = TP[3]; vO16 = lane
    A(f"v_lshl_add_u32 {v(vO8)}, {v(vq)}, 3, {v(t2)}")
    A(f"v_add_u32 {v(vO8)}, s29, {v(vO8)}")
    A(f"v_and_b32 {v(TP[0])}, 1, {v(vq)}")
    A(f"v_lshl_add_u32 {v(t2)}, {v(TP[0])}, 5, {v(t2)}")
    A(f"v_lshrrev_b32 {v(TP[0])}, 1, {v(vq)}")
    A(f"v_lshl_add_u32 {v(t2)}, {v(TP[0])}, 4, {v(t2)}")
    A(f"v_add_u32 {v(vO16)}, s29, {v(t2)}")
    A("s_waitcnt vmcnt(0)")
    for j in range(3):
        if j == 2: A("s_mov_b64 exec, 0xffffffff")
        A(f"ds_write_b128 {v(vATW)}, {v(ATR[j],4)} offset:{1024*j}")
    A("s_mov_b64 exec, -1")
    A("s_waitcnt lgkmcnt(0)")
    A("s_barrier")
    AT = [WF[k] for k in range(5)]
    for nt in range(5):
        A(f"ds_read_b64_tr_b16 {v(AT[nt],2)}, {v(t1)} offset:{2048*nt}")
    G2 = RC[0]; M2 = RC[1]
    A(f"v_mov_b32 {v(G2)}, {v(t3)}")
    A(f"v_sub_f32 {v(M2)}, 1.0, {v(t3)}")
    A(f"v_cvt_pk_bf16_f32 {v(M2)}, {v(M2)}, {v(M2)}")
    A(f"v_lshlrev_b32 {v(M2)}, 16, {v(M2)}")
    OUT = [OF[0], OF[1], OF[2]]
    X = D[0][0]; Y = D[0][1]
    for nt in range(5):
        a = ACC[nt]; at = AT[nt]
        o = OUT[nt // 2] + 2 * (nt % 2)
        if FAST:
            A(f"v_pk_mul_f32 {v(a,2)}, {v(a,2)}, {v(M2,2)} op_sel:[0,0] op_sel_hi:[1,0]")
            A(f"v_pk_mul_f32 {v(a+2,2)}, {v(a+2,2)}, {v(M2,2)} op_sel:[0,0] op_sel_hi:[1,0]")
            A(f"s_waitcnt lgkmcnt({4-nt})")
            A(f"v_lshlrev_b32 {v(X)}, 16, {v(at)}")
            A(f"v_and_b32 {v(X+1)}, 0xffff0000, {v(at)}")
            A(f"v_lshlrev_b32 {v(X+2)}, 16, {v(at+1)}")
            A(f"v_and_b32 {v(X+3)}, 0xffff0000, {v(at+1)}")
            A(f"v_pk_fma_f32 {v(a,2)}, {v(X,2)}, {v(G2,2)}, {v(a,2)} op_sel:[0,0,0] op_sel_hi:[1,0,1]")
            A(f"v_pk_fma_f32 {v(a+2,2)}, {v(X+2,2)}, {v(G2,2)}, {v(a+2,2)} op_sel:[0,0,0] op_sel_hi:[1,0,1]")
            A(f"v_cvt_pk_bf16_f32 {v(o)}, {v(a)}, {v(a+1)}")
            A(f"v_cvt_pk_bf16_f32 {v(o+1)}, {v(a+2)}, {v(a+3)}")
        else:
            A(f"v_cvt_pk_bf16_f32 {v(o)}, {v(a)}, {v(a+1)}")
            A(f"v_cvt_pk_bf16_f32 {v(o+1)}, {v(a+2)}, {v(a+3)}")
            A(f"v_lshlrev_b32 {v(a)}, 16, {v(o)}")
            A(f"v_and_b32 {v(a+1)}, 0xffff0000, {v(o)}")
            A(f"v_lshlrev_b32 {v(a+2)}, 16, {v(o+1)}")
            A(f"v_and_b32 {v(a+3)}, 0xffff0000, {v(o+1)}")
            A(f"v_pk_mul_f32 {v(a,2)}, {v(a,2)}, {v(M2,2)} op_sel:[0,0] op_sel_hi:[1,0]")
            A(f"v_pk_mul_f32 {v(a+2,2)}, {v(a+2,2)}, {v(M2,2)} op_sel:[0,0] op_sel_hi:[1,0]")
            A(f"v_cvt_pk_bf16_f32 {v(o)}, {v(a)}, {v(a+1)}")
            A(f"v_cvt_pk_bf16_f32 {v(o+1)}, {v(a+2)}, {v(a+3)}")
            A(f"v_lshlrev_b32 {v(a)}, 16, {v(o)}")
            A(f"v_and_b32 {v(a+1)}, 0xffff0000, {v(o)}")
            A(f"v_lshlrev_b32 {v(a+2)}, 16, {v(o+1)}")
            A(f"v_and_b32 {v(a+3)}, 0xffff0000, {v(o+1)}")
            A(f"s_waitcnt lgkmcnt({4-nt})")
            A(f"v_lshlrev_b32 {v(X)}, 16, {v(at)}")
            A(f"v_and_b32 {v(X+1)}, 0xffff0000, {v(at)}")
            A(f"v_lshlrev_b32 {v(X+2)}, 16, {v(at+1)}")
            A(f"v_and_b32 {v(X+3)}, 0xffff0000, {v(at+1)}")
            A(f"v_pk_mul_f32 {v(X,2)}, {v(X,2)}, {v(G2,2)} op_sel:[0,0] op_sel_hi:[1,0]")
            A(f"v_pk_mul_f32 {v(X+2,2)}, {v(X+2,2)}, {v(G2,2)} op_sel:[0,0] op_sel_hi:[1,0]")
            A(f"v_cvt_pk_bf16_f32 {v(o)}, {v(X)}, {v(X+1)}")
            A(f"v_cvt_pk_bf16_f32 {v(o+1)}, {v(X+2)}, {v(X+3)}")
            A(f"v_lshlrev_b32 {v(X)}, 16, {v(o)}")
            A(f"v_and_b32 {v(X+1)}, 0xffff0000, {v(o)}")
            A(f"v_lshlrev_b32 {v(X+2)}, 16, {v(o+1)}")
            A(f"v_and_b32 {v(X+3)}, 0xffff0000, {v(o+1)}")
            A(f"v_pk_add_f32 {v(a,2)}, {v(a,2)}, {v(X,2)}")
            A(f"v_pk_add_f32 {v(a+2,2)}, {v(a+2,2)}, {v(X+2,2)}")
            A(f"v_cvt_pk_bf16_f32 {v(o)}, {v(a)}, {v(a+1)}")
            A(f"v_cvt_pk_bf16_f32 {v(o+1)}, {v(a+2)}, {v(a+3)}")
        if nt % 2 == 1:
            ob = OUT[nt // 2]
            A(f"v_permlane16_swap_b32 {v(ob)}, {v(ob+2)}")
            A(f"v_permlane16_swap_b32 {v(ob+1)}, {v(ob+3)}")
            A(f"global_store_dwordx4 {v(vO16)}, {v(ob,4)}, s[16:17] offset:{64*(nt//2)}")
        elif nt == 4:
            A(f"global_store_dwordx2 {v(vO8)}, {v(o,2)}, s[16:17] offset:128")
    if stamp_task is not None:
        stamp()
        A("s_waitcnt vmcnt(0)")
        stamp()
        A("s_waitcnt lgkmcnt(0)")
        A(f"s_lshl_b32 s36, {stamp_task}, 3")
        A(f"s_add_u32 s36, s36, s28")
        A(f"s_lshl_b32 s36, s36, 6")
        A(f"s_add_u32 s36, s36, {WS_STAMP + 0x100000}")
        A(f"v_mov_b32 v1, s36")
        for k in stamps:
            A(f"v_mov_b32 v2, s{64+2*k}")
            A(f"global_store_dword v1, v2, s[50:51] offset:{4*k}")
    return R.hi, FINAL_LDS

def gen_gate(A, task="s3", sc=""):
    A(f"""
    s_load_dwordx2 s[8:9], s[0:1], 0
    s_load_dwordx2 s[12:13], s[0:1], 96
    s_load_dwordx4 s[48:51], s[0:1], 112
    v_and_b32 v1, 63, v0
    v_lshrrev_b32 v2, 6, v0
    """)
    A("v_readfirstlane_b32 s28, v2")
    A(f"s_lshl_b32 s29, {task}, 5")
    A("s_lshl_b32 s30, s28, 3")
    A("s_add_u32 s29, s29, s30")
    A("s_mul_i32 s30, s29, 1280")
    A("v_lshlrev_b32 v3, 4, v1")
    A("v_and_b32 v4, 15, v1")
    A("v_lshrrev_b32 v5, 4, v1")
    A("v_lshlrev_b32 v4, 4, v4")
    A("v_add_u32 v4, 1024, v4")
    A("v_mul_u32_u24 v6, 1280, v5")
    A("v_add_u32 v6, v6, v4")
    A("v_add_u32 v7, s30, v3")
    A("v_add_u32 v6, s30, v6")
    A("s_waitcnt lgkmcnt(0)")
    A("global_load_dwordx4 v[8:11], v3, s[12:13]")
    A("global_load_dwordx4 v[12:15], v4, s[12:13]")
    for r in range(8):
        if r == 4: A("v_add_u32 v7, 5120, v7")
        A(f"global_load_dwordx4 v[{16+4*r}:{19+4*r}], v7, s[8:9] offset:{1280*(r%4) if r%4<4 else 0}")
    A("global_load_dwordx4 v[48:51], v6, s[8:9]")
    A("v_add_u32 v6, 5120, v6")
    A("global_load_dwordx4 v[52:55], v6, s[8:9]")
    A("s_waitcnt vmcnt(10)")
    for k in range(8):
        A(f"v_lshlrev_b32 v{64+2*k}, 16, v{8+k}")
        A(f"v_and_b32 v{65+2*k}, 0xffff0000, v{8+k}")
    A("s_mov_b32 s31, 0x3f803f80")
    def dot(src, wbase, acc):
        for k in range(4):
            A(f"v_lshlrev_b32 v90, 16, v{src+k}")
            A(f"v_and_b32 v91, 0xffff0000, v{src+k}")
            A(f"v_pk_mul_f32 v[90:91], v[90:91], v[{wbase+2*k}:{wbase+2*k+1}]")
            A(f"v_cvt_pk_bf16_f32 v90, v90, v91")
            A(f"v_lshlrev_b32 v92, 16, v90")
            A(f"v_and_b32 v93, 0xffff0000, v90")
            if k == 0: A(f"v_add_f32 v{acc}, v92, v93")
            else:
                A(f"v_add_f32 v{acc}, v{acc}, v92")
                A(f"v_add_f32 v{acc}, v{acc}, v93")
    for r in range(8):
        A(f"s_waitcnt vmcnt({9-r})")
        dot(16 + 4 * r, 64, 96 + r)
    A("s_waitcnt vmcnt(0)")
    dot(48, 72, 104); dot(52, 72, 105)
    for r in range(8):
        A(f"v_cmp_eq_u32 vcc, {r%4}, v5")
        A(f"v_cndmask_b32 v90, 0, v{104 + r//4}, vcc")
        A(f"v_add_f32 v{96+r}, v{96+r}, v90")
    for r in range(8):
        x = f"v{96+r}"
        A(f"v_add_f32_dpp {x}, {x}, {x} quad_perm:[1,0,3,2] row_mask:0xf bank_mask:0xf")
        A(f"v_add_f32_dpp {x}, {x}, {x} quad_perm:[2,3,0,1] row_mask:0xf bank_mask:0xf")
        A(f"v_add_f32_dpp {x}, {x}, {x} row_half_mirror row_mask:0xf bank_mask:0xf")
        A(f"v_add_f32_dpp {x}, {x}, {x} row_mirror row_mask:0xf bank_mask:0xf")
    for r in range(8):
        for l in range(4):
            A(f"v_readlane_b32 s{32+4*(r%4)+l}, v{96+r}, {16*l}")
        A(f"v_mov_b32 v90, s{32+4*(r%4)}")
        A(f"v_add_f32 v90, s{33+4*(r%4)}, v90")
        A(f"v_add_f32 v90, s{34+4*(r%4)}, v90")
        A(f"v_add_f32 v90, s{35+4*(r%4)}, v90")
        A(f"v_cmp_eq_u32 vcc, {r}, v1")
        if r == 0: A("v_mov_b32 v94, v90")
        else: A("v_cndmask_b32 v94, v94, v90, vcc")
    A("v_cvt_pk_bf16_f32 v94, v94, v94")
    A("v_lshlrev_b32 v94, 16, v94")
    A(f"v_mul_f32 v94, {f2u(-1.4426950408889634)}, v94")
    A("v_exp_f32 v94, v94")
    A("v_add_f32 v94, 1.0, v94")
    A("v_rcp_f32 v94, v94")
    A("v_cvt_pk_bf16_f32 v94, v94, v94")
    A("v_lshlrev_b32 v94, 16, v94")
    A("s_lshl_b32 s29, s29, 2")
    A(f"s_add_u32 s29, s29, {WS_G}")
    A("v_lshl_add_u32 v3, v1, 2, s29")
    A("s_mov_b64 exec, 0xff")
    A(f"global_store_dword v3, v94, s[50:51] {sc}")
    A("s_mov_b64 exec, -1")
    return 106
```

```python
import numpy as np
from asmlib import *
import os
TIMER = os.environ.get('TIMER', 's_memtime')
from s4 import Regs, v, f2u
from s4b import WS_PQ, WS_KV, WS_STAMP
from gemm import gen_zero, KV_BYTES
from final import WS_PQF

SLOT = 10240
ABASE = 0
BBASE = 16384
GEMM_LDS = 47104
ABL = set()

FAST = True
def phi_pair(A, x0, x1, t, c1, out):
    assert x1 == x0 + 1
    if FAST:
        A(f"v_pk_mul_f32 {v(t,2)}, {v(x0,2)}, {c1}")
        A(f"v_exp_f32 {v(t)}, {v(t)} clamp")
        A(f"v_exp_f32 {v(t+1)}, {v(t+1)} clamp")
        A(f"v_max_f32 {v(x0)}, 0, {v(x0)}")
        A(f"v_max_f32 {v(x1)}, 0, {v(x1)}")
        A(f"v_pk_add_f32 {v(t,2)}, {v(t,2)}, s[58:59]")
        A(f"v_pk_add_f32 {v(x0,2)}, {v(x0,2)}, {v(t,2)}")
        A(f"v_cvt_pk_bf16_f32 {v(out)}, {v(x0)}, {v(x1)}")
        return
    A(f"v_cvt_pk_bf16_f32 {v(out)}, {v(x0)}, {v(x1)}")
    A(f"v_lshlrev_b32 {v(x0)}, 16, {v(out)}")
    A(f"v_and_b32 {v(x1)}, 0xffff0000, {v(out)}")
    A(f"v_pk_mul_f32 {v(t,2)}, {v(x0,2)}, {c1}")
    A(f"v_exp_f32 {v(t)}, {v(t)} clamp")
    A(f"v_exp_f32 {v(t+1)}, {v(t+1)} clamp")
    A(f"v_max_f32 {v(x0)}, 0, {v(x0)}")
    A(f"v_max_f32 {v(x1)}, 0, {v(x1)}")
    A(f"v_pk_add_f32 {v(x0,2)}, {v(x0,2)}, {v(t,2)}")
    A(f"v_cvt_pk_bf16_f32 {v(out)}, {v(x0)}, {v(x1)}")
    A(f"v_lshlrev_b32 {v(x0)}, 16, {v(out)}")
    A(f"v_and_b32 {v(x1)}, 0xffff0000, {v(out)}")
    A(f"v_pk_add_f32 {v(x0,2)}, {v(x0,2)}, s[58:59]")
    A(f"v_cvt_pk_bf16_f32 {v(out)}, {v(x0)}, {v(x1)}")

def gen_gemm(A, rb="s3", ct="s4", sc="", done_label=None, stamp_task=None, pre=None):
    stamps = []
    def stamp():
        if stamp_task is None: return
        k = len(stamps); stamps.append(k)
        A(f"{TIMER} s[{64+2*k}:{65+2*k}]")
    A(f"""
    s_load_dwordx2 s[8:9], s[0:1], 0
    s_load_dwordx2 s[12:13], s[0:1], 80
    s_load_dwordx4 s[48:51], s[0:1], 112
    """)
    stamp()
    ACC = [[4 * (2 * nt + rt) for rt in range(2)] for nt in range(10)]
    BF = [80 + 4 * k for k in range(10)]
    AF = [[120 + 8 * k, 124 + 8 * k] for k in range(3)]
    vDA, vDB, vBe, vBo, vAr = 144, 145, 146, 147, 148
    NV = 149
    tid = 10; lane = 11; t1 = 12; t2 = 13; t3 = 14; vi = 15; vq = 16
    A(f"v_mov_b32 {v(tid)}, v0")
    A(f"v_and_b32 {v(lane)}, 63, v0")
    A(f"v_lshrrev_b32 {v(t1)}, 6, v0")
    A(f"v_readfirstlane_b32 s28, {v(t1)}")
    A(f"v_and_b32 {v(vi)}, 15, {v(lane)}")
    A(f"v_lshrrev_b32 {v(vq)}, 4, {v(lane)}")
    A(f"s_mul_i32 s30, {ct}, 160")
    A(f"s_add_u32 s31, s30, {2560 - 160}")
    A(f"s_add_u32 s30, s30, 1280")
    A(f"s_sub_u32 s32, {ct}, 8")
    A(f"s_mul_i32 s32, s32, 320")
    A(f"s_cmp_ge_u32 {ct}, 8")
    A(f"s_cselect_b32 s30, s32, s30")
    A(f"s_cselect_b32 s31, s32, s31")
    A(f"s_lshl_b32 s33, {rb}, 7")
    A(f"s_lshl_b32 s34, s28, 5")
    A(f"s_add_u32 s33, s33, s34")
    A("s_mov_b32 s45, 0x78")
    A(f"v_lshrrev_b32 {v(t1)}, 2, {v(lane)}")
    A(f"v_lshrrev_b32 {v(t2)}, 4, {v(lane)}")
    A(f"v_lshlrev_b32 {v(t2)}, 1, {v(t2)}")
    A(f"v_lshrrev_b32 {v(t2)}, {v(t2)}, s45")
    A(f"v_xor_b32 {v(t2)}, {v(t2)}, {v(lane)}")
    A(f"v_and_b32 {v(t2)}, 3, {v(t2)}")
    A(f"v_add_u32 {v(t1)}, s33, {v(t1)}")
    A(f"v_mul_u32_u24 {v(t1)}, 1280, {v(t1)}")
    A(f"v_lshl_add_u32 {v(vDA)}, {v(t2)}, 4, {v(t1)}")
    A(f"v_lshrrev_b32 {v(t2)}, 2, {v(vi)}")
    A(f"v_lshlrev_b32 {v(t2)}, 1, {v(t2)}")
    A(f"v_lshrrev_b32 {v(t2)}, {v(t2)}, s45")
    A(f"v_xor_b32 {v(t2)}, {v(t2)}, {v(vq)}")
    A(f"v_and_b32 {v(t2)}, 3, {v(t2)}")
    A(f"v_lshlrev_b32 {v(t1)}, 6, {v(vi)}")
    A(f"v_lshl_add_u32 {v(t1)}, {v(t2)}, 4, {v(t1)}")
    A(f"s_lshl_b32 s42, s28, 12")
    A(f"s_add_u32 s42, s42, {ABASE}")
    A(f"v_add_u32 {v(vAr)}, s42, {v(t1)}")
    A(f"v_mul_u32_u24 {v(t1)}, 3277, {v(lane)}")
    A(f"v_lshrrev_b32 {v(t1)}, 16, {v(t1)}")
    A(f"v_mul_u32_u24 {v(t2)}, 20, {v(t1)}")
    A(f"v_sub_u32 {v(t2)}, {v(lane)}, {v(t2)}")
    A(f"s_and_b32 s34, s28, 1")
    A(f"s_lshl_b32 s34, s34, 1")
    A(f"v_xor_b32 {v(t2)}, s34, {v(t2)}")
    A(f"v_cmp_gt_u32 vcc, 10, {v(t2)}")
    A(f"v_mov_b32 {v(t3)}, s31")
    A(f"v_mov_b32 {v(vDB)}, s30")
    A(f"v_cndmask_b32 {v(t3)}, {v(t3)}, {v(vDB)}, vcc")
    A(f"v_lshl_add_u32 {v(t3)}, {v(t2)}, 4, {v(t3)}")
    A(f"s_lshl_b32 s34, s28, 3")
    A(f"v_add_u32 {v(t1)}, s34, {v(t1)}")
    A(f"v_mul_u32_u24 {v(t1)}, 3840, {v(t1)}")
    A(f"v_add_u32 {v(vDB)}, {v(t1)}, {v(t3)}")
    A(f"v_lshrrev_b32 {v(t1)}, 2, {v(vi)}")
    A(f"v_lshl_add_u32 {v(t1)}, {v(vq)}, 3, {v(t1)}")
    A(f"v_mul_u32_u24 {v(t1)}, 320, {v(t1)}")
    A(f"v_and_b32 {v(t2)}, 3, {v(vi)}")
    A(f"v_lshl_add_u32 {v(t1)}, {v(t2)}, 3, {v(t1)}")
    A(f"v_and_b32 {v(t2)}, 1, {v(vq)}")
    A(f"v_lshlrev_b32 {v(t2)}, 5, {v(t2)}")
    A(f"v_add_u32 {v(vBe)}, {v(t1)}, {v(t2)}")
    A(f"v_sub_u32 {v(vBo)}, {v(t1)}, {v(t2)}")
    A(f"s_mul_i32 s35, s28, 2560")
    A(f"s_add_u32 s35, s35, {BBASE}")
    A("s_mov_b32 s60, -1")
    A("s_mov_b32 s61, 0x0fffffff")
    A("s_mov_b32 s62, -1")
    A("s_mov_b32 s63, 0xff")
    A("s_waitcnt lgkmcnt(0)")
    A(f"""
    s_mov_b32 s10, 2621440
    s_mov_b32 s11, 0x20000
    s_mov_b32 s14, 2457600
    s_mov_b32 s15, 0x20000
    """)
    if pre is not None:
        pa, pb = pre
        A(f"s_mul_i32 s34, {rb}, 163840")
        A(f"s_mul_i32 s39, {pa}, {214*128}")
        A(f"s_add_u32 s34, s34, s39")
        A(f"v_min_u32 {v(t1)}, 213, {v(tid)}")
        A(f"v_lshl_add_u32 {v(t1)}, {v(t1)}, 7, s34")
        A(f"buffer_load_dword {v(80)}, {v(t1)}, s[8:11], 0 offen")
        for it in range(3):
            A(f"v_add_u32 {v(t1)}, {256*it}, {v(tid)}")
            A(f"v_min_u32 {v(t1)}, 639, {v(t1)}")
            A(f"v_lshrrev_b32 {v(t2)}, 2, {v(t1)}")
            A(f"s_mul_i32 s34, {pb}, 160")
            A(f"v_add_u32 {v(t2)}, s34, {v(t2)}")
            A(f"v_mul_u32_u24 {v(t2)}, 3840, {v(t2)}")
            A(f"v_and_b32 {v(t3)}, 1, {v(t1)}")
            A(f"v_mul_u32_u24 {v(t3)}, 156, {v(t3)}")
            A(f"v_add_u32 {v(t2)}, {v(t2)}, {v(t3)}")
            A(f"v_and_b32 {v(t1)}, 2, {v(t1)}")
            A(f"v_cmp_eq_u32 vcc, 0, {v(t1)}")
            A(f"s_add_u32 s34, s31, 160")
            A(f"v_mov_b32 {v(t1)}, s34")
            A(f"v_mov_b32 {v(t3)}, s30")
            A(f"v_cndmask_b32 {v(t1)}, {v(t1)}, {v(t3)}, vcc")
            A(f"v_add_u32 {v(t2)}, {v(t2)}, {v(t1)}")
            A(f"buffer_load_dword {v(81+it)}, {v(t2)}, s[12:15], 0 offen")
    A("s_mov_b32 s36, 0")
    A("s_mov_b32 s37, 20480")
    A("s_mov_b32 s38, 0")
    A("s_mov_b32 s43, s42")
    A("s_add_u32 s44, s42, 1024")
    def issueA(rt):
        if "A" in ABL: return
        so, sd = ("s36", "s43") if rt == 0 else ("s37", "s44")
        A(f"s_mov_b32 m0, {sd}")
        A(f"s_xor_b32 {sd}, {sd}, 2048")
        A(f"buffer_load_dwordx4 {v(vDA)}, s[8:11], {so} offen lds")
        A(f"s_add_u32 {so}, {so}, 64")
    def issueBp(slot, j):
        if "B" in ABL: return
        A(f"s_add_u32 m0, s35, {slot*SLOT + 960*j}")
        A("s_mov_b64 exec, s[%s]" % ("62:63" if j == 2 else "60:61"))
        A(f"buffer_load_dwordx4 {v(vDB)}, s[12:15], s38 offen lds")
        A("s_mov_b64 exec, -1")
        A(f"s_add_u32 s38, s38, {11520 if j < 2 else 32*3840 - 23040}")
    def issueB(slot):
        for j in range(3): issueBp(slot, j)
    def rdB(nt, slot):
        if "rd" in ABL: return
        base = vBe if nt % 2 == 0 else vBo
        o = BBASE + slot * SLOT + nt * 32
        A(f"ds_read_b64_tr_b16 {v(BF[nt],2)}, {v(base)} offset:{o}")
        A(f"ds_read_b64_tr_b16 {v(BF[nt]+2,2)}, {v(base)} offset:{o+1280}")
    VM = 5 - (2 if "A" in ABL else 0) - (3 if "B" in ABL else 0)
    issueB(0); issueA(0); issueA(1); issueB(1); issueA(0); issueA(1); issueB(2)
    for r in range(80):
        A(f"v_mov_b32 {v(r)}, 0")
    A("s_mov_b32 s41, 0")
    A(f"s_waitcnt vmcnt({VM + (0 if 'B' in ABL else 3)})")
    A("s_barrier")
    A(f"ds_read_b128 {v(AF[0][0],4)}, {v(vAr)}")
    A(f"ds_read_b128 {v(AF[0][1],4)}, {v(vAr)} offset:1024")
    for nt in range(10): rdB(nt, 0)
    A(f"v_xor_b32 {v(vAr)}, 2048, {v(vAr)}")
    A("s_waitcnt lgkmcnt(0)")
    issueA(0); issueA(1)
    stamp()
    lq = A.newlabel("L_g_q")
    A(f"s_cmp_ge_u32 {ct}, 8")
    A(f"s_cbranch_scc1 {lq}")
    ends = {}
    ns0 = len(stamps)
    for variant in ("kv", "q"):
        del stamps[ns0:]
        if variant == "q": A.label(lq)
        loop = A.newlabel("L_g_loop"); ex = A.newlabel("L_g_exit")
        A.label(loop)
        def mf(nt, rt, st):
            if "mfma" in ABL: return
            a = v(AF[st][rt], 4); b = v(BF[nt], 4); c = v(ACC[nt][rt], 4)
            if variant == "kv": A(f"v_mfma_f32_16x16x32_bf16 {c}, {a}, {b}, {c}")
            else: A(f"v_mfma_f32_16x16x32_bf16 {c}, {b}, {a}, {c}")
        for st in range(3):
            nx = (st + 1) % 3
            A("s_waitcnt lgkmcnt(14)")
            for nt in range(2):
                mf(nt, 0, st); mf(nt, 1, st)
            A(f"s_waitcnt vmcnt({VM}) lgkmcnt(0)")
            A("s_barrier")
            A(f"ds_read_b128 {v(AF[nx][0],4)}, {v(vAr)}")
            A(f"ds_read_b128 {v(AF[nx][1],4)}, {v(vAr)} offset:1024")
            for nt in range(2, 10):
                mf(nt, 0, st)
                if nt == 2: rdB(0, nx)
                if nt == 3: rdB(1, nx)
                if nt == 2: issueBp(st, 0)
                if nt == 4: issueBp(st, 1)
                if nt == 5:
                    A("s_waitcnt lgkmcnt(10)")
                    issueA(0)
                if nt == 6: issueBp(st, 2)
                if nt == 8: issueA(1)
                mf(nt, 1, st)
                rdB(nt, nx)
            A(f"v_xor_b32 {v(vAr)}, 2048, {v(vAr)}")
            if st == 1:
                A("s_cmp_eq_u32 s41, 6")
                A(f"s_cbranch_scc1 {ex}")
        A("s_add_u32 s41, s41, 1")
        A(f"s_branch {loop}")
        A.label(ex)
        A.fence()
        if "again" in ABL:
            l2 = A.newlabel("L_g_2")
            A("s_waitcnt vmcnt(0) lgkmcnt(0)")
            A("s_barrier")
            A("s_cmp_eq_u32 s90, 1")
            A(f"s_cbranch_scc1 {l2}")
            A("s_mov_b32 s90, 1")
            A("v_mbcnt_lo_u32_b32 v0, -1, 0")
            A("v_mbcnt_hi_u32_b32 v0, -1, v0")
            A("s_lshl_b32 s91, s28, 6")
            A("v_add_u32 v0, s91, v0")
            A("s_branch L_again")
            A.label(l2)
        stamp()
        A(f"s_mov_b32 s56, {f2u(1.4426950408889634)}")
        A(f"s_mov_b32 s57, {f2u(1.4426950408889634)}")
        A(f"s_mov_b32 s58, {f2u(1e-6)}")
        A(f"s_mov_b32 s59, {f2u(1e-6)}")
        A("s_waitcnt lgkmcnt(0)")
        lane = 144; vi = 145; vq = 146; vO = 147; vO2 = 148
        A(f"v_mbcnt_lo_u32_b32 {v(lane)}, -1, 0")
        A(f"v_mbcnt_hi_u32_b32 {v(lane)}, -1, {v(lane)}")
        A(f"v_and_b32 {v(vi)}, 15, {v(lane)}")
        A(f"v_lshrrev_b32 {v(vq)}, 4, {v(lane)}")
        if variant == "q":
            T = 120
            VO = [124 + k for k in range(5)]
            A(f"s_lshr_b32 s34, s33, 4")
            A(f"s_lshl_b32 s34, s34, 5")
            A(f"s_sub_u32 s36, {ct}, 8")
            A(f"s_lshl_b32 s36, s36, 3")
            A(f"s_add_u32 s34, s34, s36")
            A(f"s_mul_i32 s34, s34, 768")
            A(f"s_add_u32 s34, s34, {WS_PQF}")
            A(f"s_add_u32 s44, s50, {32*768}")
            A(f"s_addc_u32 s45, s51, 0")
            A(f"v_lshl_add_u32 {v(vO)}, {v(vi)}, 4, s34")
            for k in range(5):
                A(f"v_add_u32 {v(T)}, {4*k}, {v(vq)}")
                A(f"v_mul_u32_u24 {v(T+1)}, 13108, {v(T)}")
                A(f"v_lshrrev_b32 {v(T+1)}, 16, {v(T+1)}")
                A(f"v_mul_u32_u24 {v(T+2)}, 5, {v(T+1)}")
                A(f"v_sub_u32 {v(T)}, {v(T)}, {v(T+2)}")
                A(f"v_mul_u32_u24 {v(T+1)}, 768, {v(T+1)}")
                A(f"v_lshrrev_b32 {v(T+2)}, 1, {v(T)}")
                A(f"v_lshl_add_u32 {v(T+1)}, {v(T+2)}, 8, {v(T+1)}")
                A(f"v_and_b32 {v(T)}, 1, {v(T)}")
                A(f"v_lshl_add_u32 {v(T+1)}, {v(T)}, 3, {v(T+1)}")
                A(f"v_add_u32 {v(VO[k])}, {v(T+1)}, {v(vO)}")
            k = 0
            for rt in range(2):
                for nt in range(10):
                    o = 80 + 2 * (k % 8); tt = 100 + 2 * (k % 4); k += 1
                    a0 = ACC[nt][rt]
                    phi_pair(A, a0, a0 + 1, tt, "s[56:57]", o)
                    phi_pair(A, a0 + 2, a0 + 3, tt, "s[56:57]", o + 1)
                    A(f"global_store_dwordx2 {v(VO[nt%5])}, {v(o,2)}, s[{'50:51' if rt == 0 else '44:45'}] offset:{3072*(nt//5)} {sc}")
            if done_label is None:
                ends["fin"] = A.newlabel("L_g_fin")
            A(f"s_branch {done_label or ends['fin']}")
        else:
            A("s_waitcnt vmcnt(0)")
            A("s_barrier")
            if stamp_task is not None: A(f"{TIMER} s[78:79]")
            A(f"s_mul_i32 s34, s28, 10240")
            A(f"v_lshl_add_u32 {v(vO)}, {v(lane)}, 4, s34")
            A(f"v_mov_b32 {v(120)}, 4")
            A(f"global_load_dword {v(121)}, {v(120)}, s[48:49] sc1")
            k = 0
            for nt in list(range(5, 10)) + list(range(5)):
                o = 80 + 4 * (k % 4); tt = 100 + 2 * (k % 4); k += 1
                for rt in range(2):
                    a = ACC[nt][rt]
                    if nt < 5:
                        phi_pair(A, a, a + 1, tt, "s[56:57]", o + 2 * rt)
                        phi_pair(A, a + 2, a + 3, tt, "s[56:57]", o + 2 * rt + 1)
                    else:
                        A(f"v_cvt_pk_bf16_f32 {v(o+2*rt)}, {v(a)}, {v(a+1)}")
                        A(f"v_cvt_pk_bf16_f32 {v(o+2*rt+1)}, {v(a+2)}, {v(a+3)}")
                A(f"ds_write_b128 {v(vO)}, {v(o,4)} offset:{1024*nt}")
            hd = [40, 41]; cp = [42, 43]
            he = [[44 + 4 * j + r for r in range(4)] for j in range(2)]
            rp = [[52 + 4 * j + r for r in range(4)] for j in range(2)]
            T = 60
            A(f"s_lshl_b32 s34, s28, 10")
            A(f"v_lshl_add_u32 {v(vO)}, {v(lane)}, 4, s34")
            A("s_waitcnt lgkmcnt(0)")
            A("s_barrier")
            P = [[0, 4], [8, 12]]; Z = [16, 20]
            F = lambda ks, t: 80 + 16 * (ks % 2) + 4 * t
            def rdf(ks):
                A(f"ds_read_b128 {v(F(ks,0),4)}, {v(vO)} offset:{10240*ks}")
                A(f"ds_read_b128 {v(F(ks,1),4)}, {v(vO)} offset:{10240*ks + 1024}")
                A(f"ds_read_b128 {v(F(ks,2),4)}, {v(vO)} offset:{10240*ks + 5120}")
                A(f"ds_read_b128 {v(F(ks,3),4)}, {v(vO)} offset:{10240*ks + 6144}")
            rdf(0); rdf(1)
            ones = 64
            for r in range(4): A(f"v_mov_b32 {v(ones+r)}, 0x3f803f80")
            for ks in range(4):
                A(f"s_waitcnt lgkmcnt({4 if ks < 3 else 0})")
                for a in range(2):
                    for b in range(2):
                        c = v(P[a][b], 4) if ks else "0"
                        A(f"v_mfma_f32_16x16x32_bf16 {v(P[a][b],4)}, {v(F(ks,2+a),4)}, {v(F(ks,b),4)}, {c}")
                for b in range(2):
                    c = v(Z[b], 4) if ks else "0"
                    A(f"v_mfma_f32_16x16x32_bf16 {v(Z[b],4)}, {v(ones,4)}, {v(F(ks,b),4)}, {c}")
                if ks + 2 < 4: rdf(ks + 2)
            A(f"s_lshl_b32 s34, s28, 4")
            for j in range(2):
                A(f"v_add_u32 {v(T)}, s34, {v(vi)}")
                if j: A(f"v_add_u32 {v(T)}, 16, {v(T)}")
                A(f"v_mul_u32_u24 {v(hd[j])}, 3277, {v(T)}")
                A(f"v_lshrrev_b32 {v(hd[j])}, 16, {v(hd[j])}")
                A(f"v_mul_u32_u24 {v(T+1)}, 20, {v(hd[j])}")
                A(f"v_sub_u32 {v(T)}, {v(T)}, {v(T+1)}")
                A(f"v_lshlrev_b32 {v(cp[j])}, 2, {v(T)}")
                for r in range(4):
                    A(f"v_lshl_add_u32 {v(T)}, {v(vq)}, 2, s34")
                    A(f"v_add_u32 {v(T)}, {16*j + r}, {v(T)}")
                    A(f"v_mul_u32_u24 {v(he[j][r])}, 3277, {v(T)}")
                    A(f"v_lshrrev_b32 {v(he[j][r])}, 16, {v(he[j][r])}")
                    A(f"v_add_u32 {v(T)}, {v(T)}, {v(he[j][r])}")
                    A(f"v_mul_u32_u24 {v(rp[j][r])}, 80, {v(T)}")
            A(f"s_mul_i32 s34, {ct}, {4*21*20*4}")
            A(f"s_add_u32 s34, s34, {WS_KV}")
            A(f"s_add_u32 s44, s50, s34")
            A(f"s_addc_u32 s45, s51, 0")
            A(f"s_mov_b32 s46, {4*21*20*4}")
            A(f"s_mov_b32 s47, 0x20000")
            lz = A.newlabel("L_g_z"); lzo = A.newlabel("L_g_zo")
            if stamp_task is not None: A(f"{TIMER} s[74:75]")
            A.label(lz)
            A("s_waitcnt vmcnt(0)")
            A(f"v_readfirstlane_b32 s34, {v(121)}")
            A("s_cmp_lg_u32 s34, 0")
            A(f"s_cbranch_scc1 {lzo}")
            A("s_sleep 2")
            A("s_add_u32 s93, s93, 1")
            A("s_cmp_gt_u32 s93, 300000")
            A(f"s_cbranch_scc1 {lzo}")
            A(f"global_load_dword {v(121)}, {v(120)}, s[48:49] sc1")
            A(f"s_branch {lz}")
            A.label(lzo)
            if stamp_task is not None: A(f"{TIMER} s[76:77]")
            A.fence()
            A(f"v_mov_b32 {v(T+2)}, 0x7ffffff0")
            lsk = A.newlabel("L_g_sk")
            def atom(a, b):
                for r in range(4):
                    tt = 68 + (r % 4)
                    A(f"v_cmp_eq_u32 vcc, {v(he[a][r])}, {v(hd[b])}")
                    A(f"v_add_u32 {v(tt)}, {v(rp[a][r])}, {v(cp[b])}")
                    A(f"v_cndmask_b32 {v(tt)}, {v(T+2)}, {v(tt)}, vcc")
                    A(f"buffer_atomic_add_f32 {v(P[a][b]+r)}, {v(tt)}, s[44:47], 0 offen")
            def atomz(b):
                tt = 72 + b
                A(f"v_mul_u32_u24 {v(tt)}, {21*80}, {v(hd[b])}")
                A(f"v_add3_u32 {v(tt)}, {v(tt)}, {v(cp[b])}, {v(T+3)}")
                A(f"v_cmp_eq_u32 vcc, 0, {v(vq)}")
                A(f"v_cndmask_b32 {v(tt)}, {v(T+2)}, {v(tt)}, vcc")
                A(f"buffer_atomic_add_f32 {v(Z[b])}, {v(tt)}, s[44:47], 0 offen")
            A(f"v_mov_b32 {v(T+3)}, 1600")
            atom(0, 1); atom(1, 0); atom(1, 1); atomz(1)
            A("s_cmp_lg_u32 s28, 0")
            A(f"s_cbranch_scc1 {lsk}")
            atom(0, 0); atomz(0)
            A.label(lsk)
            if done_label is None:
                ends["fin0"] = A.newlabel("L_g_fin0")
                A(f"s_branch {ends['fin0']}")
            else:
                A(f"s_branch {done_label}")
    if done_label is None:
        A.label(ends["fin"])
        A.label(ends["fin0"])
    if stamp_task is not None:
        stamp()
        A("s_waitcnt vmcnt(0)")
        stamp()
        A("s_waitcnt lgkmcnt(0)")
        A(f"s_lshl_b32 s36, {stamp_task}, 3")
        A(f"s_add_u32 s36, s36, s28")
        A(f"s_lshl_b32 s36, s36, 6")
        A(f"s_add_u32 s36, s36, {WS_STAMP}")
        A(f"v_mov_b32 v1, s36")
        for k in stamps + [5, 6, 7]:
            A(f"v_mov_b32 v2, s{64+2*k}")
            A(f"global_store_dword v1, v2, s[50:51] offset:{4*k}")
        A(f"s_getreg_b32 s36, hwreg(HW_REG_HW_ID)")
        A(f"v_mov_b32 v2, s36")
        A(f"global_store_dword v1, v2, s[50:51] offset:56")
        A(f"s_getreg_b32 s36, hwreg(HW_REG_XCC_ID)")
        A(f"v_mov_b32 v2, s36")
        A(f"global_store_dword v1, v2, s[50:51] offset:60")
    return NV, GEMM_LDS

if __name__ == "__main__":
    import sys
    st = len(sys.argv) > 2
    if len(sys.argv) > 3: ABL.update(sys.argv[3].split(","))
    A = Asm()
    name = "gated_mix__ssm_conv_s4__linear_attn_block__prompt_kernel"
    A(f"s_cmp_ge_u32 s2, 193")
    A("s_cbranch_scc1 L_end")
    A(f"s_cmp_eq_u32 s2, 192")
    A("s_cbranch_scc1 L_zero")
    A("s_and_b32 s5, s2, 7")
    A("s_lshr_b32 s6, s2, 3")
    A(f"s_mul_i32 s7, s6, 43")
    A("s_lshr_b32 s7, s7, 8")
    A("s_mul_i32 s4, s7, 6")
    A("s_sub_u32 s4, s6, s4")
    A("s_lshr_b32 s3, s5, 1")
    A("s_lshl_b32 s3, s3, 2")
    A("s_add_u32 s3, s3, s7")
    A("s_and_b32 s5, s5, 1")
    A("s_mul_i32 s5, s5, 6")
    A("s_mov_b32 s6, s4")
    A("s_add_u32 s4, s4, s5")
    A("s_mov_b32 s90, 0")
    A.label("L_again")
    nv, lds = gen_gemm(A, "s3", "s4", stamp_task="s2" if st else None, pre=None if "nopre" in ABL else ("s6", "s7"))
    A("s_branch L_end")
    A.label("L_zero")
    gen_zero(A)
    A.label("L_end")
    A("s_endpgm")
    out = f"; @launch grid=(193,1,1) block=(256,1,1) lds={lds}\n"
    out += '.amdgcn_target "amdgcn-amd-amdhsa--gfx950"\n.text\n' + kernel_header(name) + A.text()
    out += '.section .rodata,"a"\n' + kernel_desc(name, nv, 96)
    open(sys.argv[1], "w").write(out)
    print("vgprs", nv, "lds", lds, "lines", len(A.lines))
```

```python
import numpy as np
from asmlib import *
import os
TIMER = os.environ.get('TIMER', 's_memtime')
from s4 import Regs, v, f2u
from s4b import WS_AT, WS_UT, WS_FLAG, WS_STAMP

STAMP = False
SINGLE = True
FAST = True
KRS = 4576
KX = 9152
XB = 17344
C0 = 0
C1 = 4164
UCS = 8288
CX = XB + 2 * UCS
ST_ROW = 544
ST_SIZE = 16 * ST_ROW
S4_LDS = XB + 4 * ST_SIZE
TP_ROW = 144

def gen_s4(A, task="s3", sc="", done=None, tile=None, pf=None):
    stamps = []
    def stamp():
        if not STAMP: return
        k = len(stamps); stamps.append(k)
        A(f"{TIMER} s[{64+2*k}:{65+2*k}]")
    R = Regs(1, 256)
    L2E = f2u(1.4426950408889634)
    L2E_LO = f2u(1.4426950408889634 - float(np.float32(1.4426950408889634)))
    LN2 = f2u(0.6931471805599453)
    INV2PI = f2u(0.15915494309189535)
    A(f"""
    s_load_dwordx16 s[8:23], s[0:1], 0
    s_load_dwordx2 s[24:25], s[0:1], 64
    s_load_dwordx4 s[48:51], s[0:1], 112
    """)
    stamp()
    vLane = R.alloc(); vT = R.alloc(); vT2 = R.alloc()
    A(f"v_and_b32 {v(vLane)}, 63, v0")
    A(f"v_lshrrev_b32 {v(vT)}, 6, v0")
    A(f"v_readfirstlane_b32 s28, {v(vT)}")
    A(f"s_lshr_b32 s53, s28, 1")
    A(f"s_and_b32 s54, s28, 1")
    A(f"s_lshl_b32 s55, {task}, 1")
    A(f"s_add_u32 s55, s55, s53")
    if tile is None:
        A(f"s_mul_hi_u32 s29, {task}, {(1<<32)//10 + 1}")
        A(f"s_mul_i32 s30, s29, 10")
        A(f"s_sub_u32 s30, {task}, s30")
    else:
        A(f"s_mov_b32 s29, {tile[0]}")
        A(f"s_mov_b32 s30, {tile[1]}")
    A(f"s_mul_i32 s31, s29, {64*1280}")
    A(f"s_lshl_b32 s32, s30, 7")
    A(f"s_add_u32 s31, s31, s32")
    A(f"v_lshrrev_b32 {v(vT)}, 3, v0")
    A(f"v_and_b32 {v(vT2)}, 7, v0")
    vTW = R.alloc()
    A(f"v_mul_u32_u24 {v(vTW)}, {TP_ROW}, {v(vT)}")
    A(f"v_lshl_add_u32 {v(vTW)}, {v(vT2)}, 4, {v(vTW)}")
    A(f"v_mul_u32_u24 {v(vT)}, 1280, {v(vT)}")
    A(f"v_lshl_add_u32 {v(vT)}, {v(vT2)}, 4, {v(vT)}")
    A(f"v_add_u32 {v(vT)}, s31, {v(vT)}")
    A(f"v_add_u32 {v(vT2)}, {32*1280}, {v(vT)}")
    TL = [R.alloc(4, 4) for _ in range(2)]
    A("s_waitcnt lgkmcnt(0)")
    A(f"global_load_dwordx4 {v(TL[0],4)}, {v(vT)}, s[8:9]")
    A(f"global_load_dwordx4 {v(TL[1],4)}, {v(vT2)}, s[8:9]")
    A(f"s_lshl_b32 s35, s55, 8")
    A(f"s_lshl_b32 s36, s54, 7")
    A(f"s_add_u32 s35, s35, s36")
    A(f"v_lshl_add_u32 {v(vT)}, {v(vLane)}, 1, s35")
    A(f"s_lshl_b32 s36, s55, 1")
    A(f"v_mov_b32 {v(vT2)}, s36")
    P = [R.alloc() for _ in range(8)]
    for k in range(6):
        A(f"global_load_ushort {v(P[k])}, {v(vT)}, s[{10+2*k}:{11+2*k}]")
    A(f"global_load_ushort {v(P[6])}, {v(vT2)}, s[22:23]")
    A(f"global_load_ushort {v(P[7])}, {v(vT2)}, s[24:25]")
    NPF = 0
    if pf is not None:
        pft = [R.alloc() for _ in range(6)]
        NPF = pf(pft)
    A(f"s_mul_i32 s33, s28, {ST_SIZE}")
    A(f"s_add_u32 s33, s33, {XB}")
    A(f"s_mul_i32 s32, s53, {KRS}")
    A(f"s_mul_i32 s34, s53, {UCS}")
    A(f"s_add_u32 s34, s34, {XB}")
    vI = R.alloc(); vQ = R.alloc()
    A(f"v_and_b32 {v(vI)}, 15, {v(vLane)}")
    A(f"v_lshrrev_b32 {v(vQ)}, 4, {v(vLane)}")
    vZ = R.alloc(2, 2)
    A(f"v_mov_b32 {v(vZ)}, 0")
    A(f"v_mov_b32 {v(vZ+1)}, 0")
    A(f"v_min_u32 {v(vT)}, 59, {v(vLane)}")
    A(f"v_lshl_add_u32 {v(vT)}, {v(vT)}, 3, s32")
    A(f"ds_write_b64 {v(vT)}, {v(vZ,2)} offset:4096")
    R.rel(vZ, 2)
    vTR = R.alloc(); vTS = R.alloc()
    A(f"s_lshl_b32 s38, s28, 5")
    A(f"v_lshrrev_b32 {v(vT)}, 2, {v(vI)}")
    A(f"v_lshl_add_u32 {v(vT)}, {v(vQ)}, 3, {v(vT)}")
    A(f"v_mul_u32_u24 {v(vTR)}, {TP_ROW}, {v(vT)}")
    A(f"v_and_b32 {v(vT)}, 3, {v(vI)}")
    A(f"v_lshl_add_u32 {v(vTR)}, {v(vT)}, 3, {v(vTR)}")
    A(f"v_add_u32 {v(vTR)}, s38, {v(vTR)}")
    A(f"s_lshl_b32 s38, s30, 18")
    A(f"s_lshl_b32 s39, s28, 16")
    A(f"s_add_u32 s38, s38, s39")
    A(f"s_lshl_b32 s39, s29, 7")
    A(f"s_add_u32 s38, s38, s39")
    A(f"s_add_u32 s38, s38, {WS_UT}")
    A(f"v_lshlrev_b32 {v(vTS)}, 12, {v(vI)}")
    A(f"v_lshl_add_u32 {v(vTS)}, {v(vQ)}, 4, {v(vTS)}")
    A(f"v_add_u32 {v(vTS)}, s38, {v(vTS)}")
    A(f"s_waitcnt vmcnt({9+NPF})")
    A(f"ds_write_b128 {v(vTW)}, {v(TL[0],4)} offset:{XB}")
    A(f"s_waitcnt vmcnt({8+NPF})")
    A(f"ds_write_b128 {v(vTW)}, {v(TL[1],4)} offset:{XB + 32*TP_ROW}")
    A("s_waitcnt lgkmcnt(0)")
    A("s_barrier")
    for k in range(2):
        A(f"ds_read_b64_tr_b16 {v(TL[k],2)}, {v(vTR)} offset:{XB + 32*TP_ROW*k}")
        A(f"ds_read_b64_tr_b16 {v(TL[k]+2,2)}, {v(vTR)} offset:{XB + 32*TP_ROW*k + 4*TP_ROW}")
    A("s_waitcnt lgkmcnt(2)")
    A(f"global_store_dwordx4 {v(vTS)}, {v(TL[0],4)}, s[50:51] sc0 sc1")
    A("s_waitcnt lgkmcnt(0)")
    A(f"global_store_dwordx4 {v(vTS)}, {v(TL[1],4)}, s[50:51] offset:64 sc0 sc1")
    A("s_barrier")
    R.rel(vTW); R.rel(vTR); R.rel(vTS)
    SW = [R.alloc() for _ in range(8)]
    A(f"v_lshl_add_u32 {v(SW[0])}, {v(vLane)}, 2, s33")
    for k in range(1, 8):
        A(f"v_add_u32 {v(SW[k])}, {2*ST_ROW*k}, {v(SW[0])}")
    vSR = R.alloc()
    A(f"v_mul_u32_u24 {v(vSR)}, {ST_ROW}, {v(vI)}")
    A(f"v_lshl_add_u32 {v(vSR)}, {v(vQ)}, 4, {v(vSR)}")
    A(f"v_add_u32 {v(vSR)}, s33, {v(vSR)}")
    A(f"s_waitcnt vmcnt({2+NPF})")
    stamp()
    for k in range(8):
        A(f"v_lshlrev_b32 {v(P[k])}, 16, {v(P[k])}")
    Are, Aim, Bre, Bim, Cre, Cim, Ldt, Dsk = P
    A(f"s_mov_b32 s44, {L2E}")
    A(f"s_mov_b32 s45, {L2E_LO}")
    A(f"s_mov_b32 s46, {LN2}")
    A(f"s_mov_b32 s47, {INV2PI}")
    A(f"v_mul_f32 {v(vT)}, s44, {v(Ldt)}")
    A(f"v_fma_f32 {v(vT2)}, {v(Ldt)}, s44, -{v(vT)}")
    A(f"v_fma_f32 {v(vT2)}, {v(Ldt)}, s45, {v(vT2)}")
    A(f"v_exp_f32 {v(vT)}, {v(vT)}")
    A(f"v_mul_f32 {v(vT2)}, s46, {v(vT2)}")
    A(f"v_fma_f32 {v(vT)}, {v(vT)}, {v(vT2)}, {v(vT)}")
    A(f"v_cvt_pk_bf16_f32 {v(vT)}, {v(vT)}, {v(vT)}")
    A(f"v_lshlrev_b32 {v(Ldt)}, 16, {v(vT)}")
    dt = Ldt
    A(f"v_mul_f32 {v(Are)}, {v(dt)}, {v(Are)}")
    A(f"v_mul_f32 {v(Aim)}, {v(dt)}, {v(Aim)}")
    A(f"v_mul_f32 {v(Are)}, s44, {v(Are)}")
    A(f"v_mul_f32 {v(Aim)}, s47, {v(Aim)}")
    A(f"v_mul_f32 {v(Bre)}, {v(dt)}, {v(Bre)}")
    A(f"v_mul_f32 {v(Bim)}, {v(dt)}, {v(Bim)}")
    W = R.alloc(2, 2)
    A(f"v_mul_f32 {v(W)}, {v(Cre)}, {v(Bre)}")
    A(f"v_fma_f32 {v(W)}, -{v(Cim)}, {v(Bim)}, {v(W)}")
    A(f"v_mul_f32 {v(W+1)}, {v(Cre)}, {v(Bim)}")
    A(f"v_fma_f32 {v(W+1)}, {v(Cim)}, {v(Bre)}, {v(W+1)}")
    for r in (Bre, Bim, Cre, Cim, Ldt): R.rel(r)
    def cexp(x, conj=False):
        z = R.alloc(2, 2)
        xs = f2u(float(x))
        if x == 1:
            A(f"v_exp_f32 {v(vT)}, {v(Are)}")
            A(f"v_fract_f32 {v(vT2)}, {v(Aim)}")
        else:
            A(f"v_mul_f32 {v(vT)}, {xs}, {v(Are)}")
            A(f"v_mul_f32 {v(vT2)}, {xs}, {v(Aim)}")
            A(f"v_exp_f32 {v(vT)}, {v(vT)}")
            A(f"v_fract_f32 {v(vT2)}, {v(vT2)}")
        A(f"v_cos_f32 {v(z)}, {v(vT2)}")
        A(f"v_sin_f32 {v(z+1)}, {v(vT2)}")
        A(f"v_mul_f32 {v(z)}, {v(vT)}, {v(z)}")
        A(f"v_mul_f32 {v(z+1)}, {'-' if conj else ''}{v(vT)}, {v(z+1)}")
        return z
    def cmul(x, y, z=None):
        if z is None: z = R.alloc(2, 2)
        assert z != x and z != y
        A(f"v_pk_mul_f32 {v(z,2)}, {v(x,2)}, {v(y,2)} op_sel:[0,0] op_sel_hi:[1,0]")
        A(f"v_pk_fma_f32 {v(z,2)}, {v(x,2)}, {v(y,2)}, {v(z,2)} op_sel:[1,1,0] op_sel_hi:[0,1,1] neg_lo:[1,0,0]")
        return z
    TS = [R.alloc(2, 2) for _ in range(2)]
    HL = [R.alloc(2, 2) for _ in range(2)]
    cnt = [0]
    pending = []
    def drain(n=1):
        for _ in range(n):
            if pending: A(pending.pop(0))
    held = []
    def flush_held():
        if held:
            h, row = held.pop()
            A(f"ds_write_b32 {v(SW[row>>1])}, {v(h)} offset:{ST_ROW*(row&1)}")
    def swrite(x, row):
        k = cnt[0] & 1; cnt[0] += 1
        t = TS[k]; h = HL[k]; l = HL[k] + 1
        if SINGLE:
            hh = HL[(cnt[0] >> 1) & 1] + (cnt[0] & 1)
            A(f"v_cvt_pk_bf16_f32 {v(hh)}, {v(x)}, {v(x+1)}")
            if held and held[0][1] == row - 1 and row % 2 == 1:
                h0, _ = held.pop()
                A(f"ds_write2_b32 {v(SW[row>>1])}, {v(h0)}, {v(hh)} offset0:0 offset1:136")
            else:
                flush_held()
                held.append((hh, row))
            drain(1)
            return
        A(f"v_cvt_pk_bf16_f32 {v(h)}, {v(x)}, {v(x+1)}")
        A(f"v_lshlrev_b32 {v(t)}, 16, {v(h)}")
        A(f"v_and_b32 {v(t+1)}, 0xffff0000, {v(h)}")
        A(f"v_pk_add_f32 {v(t,2)}, {v(x,2)}, {v(t,2)} neg_lo:[0,1] neg_hi:[0,1]")
        A(f"v_cvt_pk_bf16_f32 {v(l)}, {v(t)}, {v(t+1)}")
        o = 136 * (row & 1)
        A(f"ds_write2_b32 {v(SW[row>>1])}, {v(h)}, {v(l)} offset0:{o} offset1:{o+64}")
        drain(1)
    Y = [None] * 16
    Y[1] = cexp(8, conj=True)
    one = R.alloc(2, 2)
    A(f"v_mov_b32 {v(one)}, 1.0")
    A(f"v_mov_b32 {v(one+1)}, 0")
    swrite(one, 0)
    R.rel(one, 2)
    swrite(Y[1], 1)
    Y[2] = cmul(Y[1], Y[1]); swrite(Y[2], 2)
    Y[3] = cmul(Y[2], Y[1]); swrite(Y[3], 3)
    Y[4] = cmul(Y[2], Y[2]); swrite(Y[4], 4)
    for j in (5, 6, 7):
        Y[j] = cmul(Y[4], Y[j-4]); swrite(Y[j], j)
    Y[8] = cmul(Y[4], Y[4]); swrite(Y[8], 8)
    tmp = [R.alloc(2, 2) for _ in range(2)]
    for j in range(9, 16):
        z = cmul(Y[8], Y[j-8], tmp[j & 1]); swrite(z, j)
    for j in range(1, 9): R.rel(Y[j], 2)
    for k in range(2): R.rel(TL[k], 4)
    Bh = [R.alloc(4, 4) for _ in range(4)]
    Bl = [R.alloc(4, 4) for _ in range(4)]
    flush_held()
    for k in range(4):
        A(f"ds_read_b128 {v(Bh[k],4)}, {v(vSR)} offset:{64*k}")
        if not SINGLE: A(f"ds_read_b128 {v(Bl[k],4)}, {v(vSR)} offset:{64*k+256}")
    Ah = [R.alloc(4, 4) for _ in range(4)]
    Al = [R.alloc(4, 4) for _ in range(4)]
    KT = [R.alloc(4, 4) for _ in range(3)]
    def tile_reads():
        flush_held()
        for k in range(4):
            A(f"ds_read_b128 {v(Ah[k],4)}, {v(vSR)} offset:{64*k}")
            if not SINGLE: A(f"ds_read_b128 {v(Al[k],4)}, {v(vSR)} offset:{64*k+256}")
    def tile_mfmas(T):
        out = []
        for k in range(4):
            c = "0" if k == 0 else v(KT[T], 4)
            out.append(f"v_mfma_f32_16x16x32_bf16 {v(KT[T],4)}, {v(Ah[k],4)}, {v(Bh[k],4)}, {c}")
            if SINGLE: continue
            out.append(f"v_mfma_f32_16x16x32_bf16 {v(KT[T],4)}, {v(Al[k],4)}, {v(Bh[k],4)}, {v(KT[T],4)}")
            out.append(f"v_mfma_f32_16x16x32_bf16 {v(KT[T],4)}, {v(Ah[k],4)}, {v(Bl[k],4)}, {v(KT[T],4)}")
        return out
    A("s_waitcnt vmcnt(0)")
    if pf is not None:
        for r in pft: R.rel(r)
    A("s_barrier")
    lsk = A.newlabel("L_s4_sig"); lpn = A.newlabel("L_s4_pn"); lgo = A.newlabel("L_s4_go")
    A("s_cmp_lg_u32 s28, 0")
    A(f"s_cbranch_scc1 {lsk}")
    A(f"v_mov_b32 {v(vT)}, 0")
    A.label(lpn)
    A(f"global_load_dword {v(vT2)}, {v(vT)}, s[48:49] sc1")
    A("s_waitcnt vmcnt(0)")
    A(f"v_readfirstlane_b32 s52, {v(vT2)}")
    A("s_cmp_lg_u32 s52, 0")
    A(f"s_cbranch_scc1 {lgo}")
    A("s_sleep 2")
    A("s_add_u32 s93, s93, 1")
    A("s_cmp_gt_u32 s93, 300000")
    A(f"s_cbranch_scc1 {lgo}")
    A(f"s_branch {lpn}")
    A.label(lgo)
    A(f"s_lshl_b32 s36, s30, 7")
    A(f"s_lshl_b32 s37, s29, 2")
    A(f"s_add_u32 s36, s36, s37")
    A(f"s_add_u32 s36, s36, {WS_FLAG}")
    A(f"v_mov_b32 {v(vT)}, s36")
    A("s_mov_b64 exec, 1")
    A(f"global_store_dword {v(vT)}, {v(vT2)}, s[50:51] sc0 sc1")
    A("s_mov_b64 exec, -1")
    A.label(lsk)
    Pw = cexp(128)
    P2 = cmul(Pw, Pw); P4 = cmul(P2, P2); P8 = cmul(P4, P4)
    V = [None] * 8
    V[0] = W
    V[1] = cmul(V[0], Pw); V[2] = cmul(V[0], P2); V[3] = cmul(V[1], P2)
    for i in range(4, 8): V[i] = cmul(V[i-4], P4)
    R.rel(Pw, 2); R.rel(P2, 2); R.rel(P4, 2)
    for q in range(4):
        for rho in range(2):
            i = 2 * q + rho
            z = cmul(V[i], P8, tmp[rho]); swrite(z, 4 * q + rho)
            if i == 0:
                z2 = R.alloc(2, 2); cmul(z, P8, z2)
            if i == 1:
                swrite(z2, 2); R.rel(z2, 2)
    R.rel(P8, 2)
    tile_reads()
    E = [None] * 8
    E[1] = cexp(1)
    E[2] = cmul(E[1], E[1]); E[3] = cmul(E[2], E[1]); E[4] = cmul(E[2], E[2])
    E[5] = cmul(E[4], E[1]); E[6] = cmul(E[4], E[2]); E[7] = cmul(E[4], E[3])
    A("s_waitcnt lgkmcnt(0)")
    pending += tile_mfmas(2)
    for q in range(4):
        base = V[2 + (q >> 1)]
        for rho in range(2):
            off = 4 * (q & 1) + 2 * rho
            if off == 0: swrite(base, 4 * q + rho)
            else:
                z = cmul(base, E[off], tmp[rho]); swrite(z, 4 * q + rho)
        swrite(V[4 + q], 4 * q + 2)
        z = cmul(V[4 + q], E[4], tmp[0]); swrite(z, 4 * q + 3)
    drain(100)
    for i in range(2, 8): R.rel(V[i], 2)
    tile_reads()
    pr = [R.alloc(2, 2) for _ in range(4)]
    for k, off in enumerate((1, 2, 3, 4)):
        cmul(V[0], E[off], pr[k])
    A("s_waitcnt lgkmcnt(0)")
    pending += tile_mfmas(1)
    swrite(V[0], 0)
    for k, off in enumerate((1, 2, 3, 4)): swrite(pr[k], off)
    for off in (5, 6, 7):
        z = cmul(V[0], E[off], tmp[off & 1]); swrite(z, off)
    swrite(V[1], 8)
    for off in range(1, 8):
        z = cmul(V[1], E[off], tmp[off & 1]); swrite(z, 8 + off)
    drain(100)
    for k in range(4): R.rel(pr[k], 2)
    for i in range(1, 8): R.rel(E[i], 2)
    R.rel(V[0], 2); R.rel(V[1], 2)
    tile_reads()
    vX = R.alloc(); vXp = R.alloc()
    A(f"s_lshl_b32 s36, s28, 11")
    A(f"v_lshl_add_u32 {v(vX)}, {v(vLane)}, 4, s36")
    A(f"v_xor_b32 {v(vXp)}, 2048, {v(vX)}")
    A("s_waitcnt lgkmcnt(0)")
    for s in tile_mfmas(0): A(s)
    for k in range(4):
        R.rel(Ah[k], 4); R.rel(Al[k], 4); R.rel(Bh[k], 4); R.rel(Bl[k], 4)
    for k in range(8): R.rel(SW[k])
    for k in range(2): R.rel(TS[k], 2); R.rel(HL[k], 2); R.rel(tmp[k], 2)
    R.rel(vSR)
    lh = A.newlabel("L_s4_x1"); lhj = A.newlabel("L_s4_xj")
    A("s_cmp_eq_u32 s54, 1")
    A.fence()
    A(f"s_cbranch_scc1 {lh}")
    A(f"ds_write_b128 {v(vX)}, {v(KT[1],4)} offset:{KX}")
    A(f"ds_write_b128 {v(vX)}, {v(KT[2],4)} offset:{KX+1024}")
    A(f"s_branch {lhj}")
    A.label(lh)
    A(f"ds_write_b128 {v(vX)}, {v(KT[0],4)} offset:{KX}")
    A.label(lhj)
    stamp()
    lnp = A.newlabel("L_s4_np"); lpl = A.newlabel("L_s4_pl")
    A(f"s_lshr_b32 s36, {task}, 5")
    A(f"s_lshl_b32 s36, s36, 7")
    A(f"s_add_u32 s36, s36, {WS_FLAG}")
    A(f"v_and_b32 {v(vT)}, 31, {v(vLane)}")
    A(f"v_lshl_add_u32 {v(vT)}, {v(vT)}, 2, s36")
    A("s_cmp_lg_u32 s28, 0")
    A(f"s_cbranch_scc1 {lnp}")
    A.label(lpl)
    A(f"global_load_dword {v(vT2)}, {v(vT)}, s[50:51] sc1")
    A("s_waitcnt vmcnt(0)")
    A(f"v_cmp_ne_u32 vcc, s52, {v(vT2)}")
    A(f"s_cbranch_vccz {lnp}")
    A("s_sleep 2")
    A("s_add_u32 s93, s93, 1")
    A("s_cmp_gt_u32 s93, 300000")
    A(f"s_cbranch_scc1 {lnp}")
    A(f"s_branch {lpl}")
    A.label(lnp)
    A("s_waitcnt lgkmcnt(0)")
    A("s_barrier")
    stamp()
    UD = [R.alloc(4, 4) for _ in range(2)]; UP = R.alloc()
    vTau = R.alloc()
    A(f"v_and_b32 {v(vTau)}, 127, v0")
    A(f"s_lshl_b32 s36, s55, 12")
    A(f"s_add_u32 s36, s36, {WS_UT}")
    A(f"v_lshl_add_u32 {v(vT)}, {v(vTau)}, 5, s36")
    A(f"global_load_dwordx4 {v(UD[0],4)}, {v(vT)}, s[50:51] sc1")
    A(f"global_load_dwordx4 {v(UD[1],4)}, {v(vT)}, s[50:51] offset:16 sc1")
    A(f"global_load_dword {v(UP)}, {v(vT)}, s[50:51] offset:-4 sc1")
    vZ = R.alloc()
    A(f"v_mov_b32 {v(vZ)}, 0")
    A(f"v_min_u32 {v(vT)}, 7, {v(vLane)}")
    A(f"v_lshl_add_u32 {v(vT)}, {v(vT)}, 2, s34")
    A(f"ds_write_b32 {v(vT)}, {v(vZ)} offset:{C0}")
    A(f"v_min_u32 {v(vT)}, 6, {v(vLane)}")
    A(f"v_lshl_add_u32 {v(vT)}, {v(vT)}, 2, s34")
    A(f"ds_write_b32 {v(vT)}, {v(vZ)} offset:{C1}")
    R.rel(vZ)
    X1 = R.alloc(4, 4); X2 = R.alloc(4, 4)
    lh1 = A.newlabel("L_s4_h1"); lj = A.newlabel("L_s4_j")
    A("s_cmp_eq_u32 s54, 1")
    A(f"s_cbranch_scc1 {lh1}")
    A(f"ds_read_b128 {v(X1,4)}, {v(vXp)} offset:{KX}")
    A(f"v_lshrrev_b32 {v(vT)}, 1, {v(vQ)}")
    A(f"v_lshlrev_b32 {v(vT)}, 8, {v(vT)}")
    A(f"v_and_b32 {v(vT2)}, 1, {v(vQ)}")
    A(f"v_lshl_add_u32 {v(vT)}, {v(vT2)}, 3, {v(vT)}")
    A(f"v_lshl_add_u32 {v(vT)}, {v(vI)}, 4, {v(vT)}")
    A(f"v_sub_u32 {v(vT)}, s32, {v(vT)}")
    A(f"v_add_u32 {v(vT)}, 4088, {v(vT)}")
    A("s_waitcnt lgkmcnt(0)")
    A(f"v_pk_add_f32 {v(X1,2)}, {v(X1,2)}, {v(KT[0],2)}")
    A(f"v_pk_add_f32 {v(X1+2,2)}, {v(X1+2,2)}, {v(KT[0]+2,2)}")
    A(f"v_cvt_pk_bf16_f32 {v(X2)}, {v(X1+3)}, {v(X1+2)}")
    A(f"v_cvt_pk_bf16_f32 {v(X2+1)}, {v(X1+1)}, {v(X1)}")
    A(f"ds_write_b64 {v(vT)}, {v(X2,2)}")
    A(f"s_branch {lj}")
    A.label(lh1)
    A(f"ds_read_b128 {v(X1,4)}, {v(vXp)} offset:{KX}")
    A(f"ds_read_b128 {v(X2,4)}, {v(vXp)} offset:{KX+1024}")
    a3 = R.alloc(); a3f = R.alloc(); a2 = R.alloc(); a1 = R.alloc(); a1s = R.alloc()
    A(f"v_lshlrev_b32 {v(vT)}, 9, {v(vQ)}")
    A(f"v_lshl_add_u32 {v(vT)}, {v(vI)}, 4, {v(vT)}")
    A(f"v_sub_u32 {v(a3)}, s32, {v(vT)}")
    A(f"v_add_u32 {v(a3)}, {2040 - 256}, {v(a3)}")
    A(f"v_and_b32 {v(vT2)}, 1, {v(vI)}")
    A(f"v_lshl_add_u32 {v(a3f)}, {v(vT2)}, 1, {v(a3)}")
    A(f"v_add_u32 {v(a3f)}, 254, {v(a3f)}")
    A(f"v_lshlrev_b32 {v(vT)}, 8, {v(vQ)}")
    A(f"v_lshl_add_u32 {v(vT)}, {v(vI)}, 4, {v(vT)}")
    A(f"v_sub_u32 {v(a2)}, s32, {v(vT)}")
    A(f"v_add_u32 {v(a2)}, 3060, {v(a2)}")
    A(f"v_lshrrev_b32 {v(vT)}, 1, {v(vQ)}")
    A(f"v_lshlrev_b32 {v(vT)}, 8, {v(vT)}")
    A(f"v_and_b32 {v(vT2)}, 1, {v(vQ)}")
    A(f"v_lshl_add_u32 {v(vT)}, {v(vT2)}, 3, {v(vT)}")
    A(f"v_lshl_add_u32 {v(vT)}, {v(vI)}, 4, {v(vT)}")
    A(f"v_sub_u32 {v(a1)}, s32, {v(vT)}")
    A(f"v_add_u32 {v(a1)}, {2*(2045-256)}, {v(a1)}")
    A(f"v_cmp_eq_u32 vcc, 0, {v(vLane)}")
    A(f"v_add_u32 {v(a1s)}, 6, {v(a1)}")
    A(f"v_add_u32 {v(vT)}, 2, {v(a1)}")
    A(f"v_cndmask_b32 {v(a1s)}, {v(a1s)}, {v(vT)}, vcc")
    A(f"v_subrev_u32 {v(vT2)}, 256, {v(a3f)}")
    A("s_waitcnt lgkmcnt(0)")
    for k in range(2):
        A(f"v_pk_add_f32 {v(X1+2*k,2)}, {v(X1+2*k,2)}, {v(KT[1]+2*k,2)}")
        A(f"v_pk_add_f32 {v(X2+2*k,2)}, {v(X2+2*k,2)}, {v(KT[2]+2*k,2)}")
    D = [R.alloc(2, 2) for _ in range(3)]
    for rho in range(3):
        A(f"v_cvt_pk_bf16_f32 {v(D[rho])}, {v(X2+rho)}, {v(X2+rho)}")
        A(f"v_mov_b32 {v(D[rho]+1)}, {v(D[rho])}")
    A(f"ds_write2_b64 {v(a3)}, {v(D[0],2)}, {v(D[0],2)} offset0:32 offset1:33")
    A(f"ds_write2_b64 {v(a3)}, {v(D[1],2)}, {v(D[1],2)} offset0:0 offset1:1")
    A(f"v_mov_b32 {v(vT)}, s32")
    A("s_mov_b64 exec, 1")
    A(f"ds_write_b64 {v(vT)}, {v(D[2],2)}")
    A("s_mov_b64 exec, -1")
    A(f"ds_write_b16 {v(a3f)}, {v(D[0])}")
    A(f"ds_write_b16 {v(vT2)}, {v(D[1])}")
    A(f"v_cvt_pk_bf16_f32 {v(D[0])}, {v(X1+3)}, {v(X1+3)}")
    A(f"v_cvt_pk_bf16_f32 {v(D[0]+1)}, {v(X1+3)}, {v(X1+2)}")
    A(f"v_cvt_pk_bf16_f32 {v(D[1])}, {v(X1+2)}, {v(X1+2)}")
    A(f"ds_write2_b32 {v(a2)}, {v(D[0])}, {v(D[0]+1)} offset0:0 offset1:1")
    A(f"ds_write2_b32 {v(a2)}, {v(D[1])}, {v(D[1])} offset0:2 offset1:3")
    A(f"v_cvt_pk_bf16_f32 {v(D[2])}, {v(X1+1)}, {v(X1+1)}")
    A(f"v_cvt_pk_bf16_f32 {v(D[2]+1)}, {v(X1)}, {v(X1)}")
    A(f"ds_write_b16 {v(a1)}, {v(D[2])}")
    A(f"ds_write_b32 {v(a1)}, {v(D[2]+1)} offset:2")
    A(f"ds_write_b16 {v(a1s)}, {v(D[2]+1)}")
    for k in range(3): R.rel(D[k], 2)
    for r in (a3, a3f, a2, a1, a1s): R.rel(r)
    A.label(lj)
    R.rel(X1, 4); R.rel(X2, 4)
    for k in range(3): R.rel(KT[k], 4)
    vK = R.alloc(); vU = [R.alloc() for _ in range(4)]
    A(f"v_lshlrev_b32 {v(vT)}, 5, {v(vI)}")
    A(f"v_lshlrev_b32 {v(vT2)}, 4, {v(vQ)}")
    A(f"v_sub_u32 {v(vK)}, {v(vT2)}, {v(vT)}")
    A(f"s_lshl_b32 s36, s54, 8")
    A(f"s_add_u32 s37, s36, s32")
    A(f"s_add_u32 s37, s37, 480")
    A(f"v_add_u32 {v(vK)}, s37, {v(vK)}")
    A(f"s_add_u32 s36, s36, s34")
    A(f"v_lshlrev_b32 {v(vT)}, 1, {v(vI)}")
    A(f"v_add_u32 {v(vT)}, {v(vT)}, {v(vT2)}")
    A(f"v_and_b32 {v(vT2)}, 1, {v(vI)}")
    A(f"v_cmp_eq_u32 vcc, 0, {v(vT2)}")
    A(f"v_mov_b32 {v(vU[0])}, {C0 + 2}")
    A(f"v_mov_b32 {v(vU[1])}, {C1}")
    A(f"v_cndmask_b32 {v(vU[0])}, {v(vU[0])}, {v(vU[1])}, vcc")
    A(f"v_add3_u32 {v(vU[0])}, {v(vU[0])}, {v(vT)}, s36")
    for k in range(1, 4):
        A(f"v_add_u32 {v(vU[k])}, {1024*k}, {v(vU[0])}")
    UO = [R.alloc(4, 4) for _ in range(2)]
    A(f"v_cmp_eq_u32 vcc, 0, {v(vTau)}")
    A(f"v_lshl_add_u32 {v(vT)}, {v(vTau)}, 5, s34")
    A("s_waitcnt vmcnt(0)")
    A(f"v_cndmask_b32 {v(UP)}, {v(UP)}, 0, vcc")
    A(f"ds_write_b128 {v(vT)}, {v(UD[0],4)} offset:{C0 + 32}")
    A(f"ds_write_b128 {v(vT)}, {v(UD[1],4)} offset:{C0 + 48}")
    seq = [UP] + [UD[0] + k for k in range(4)] + [UD[1] + k for k in range(4)]
    for k in range(8):
        A(f"v_alignbit_b32 {v(UO[k//4] + k%4)}, {v(seq[k+1])}, {v(seq[k])}, 16")
    A(f"ds_write_b128 {v(vT)}, {v(UO[0],4)} offset:{C1 + 28}")
    A(f"ds_write_b128 {v(vT)}, {v(UO[1],4)} offset:{C1 + 44}")
    A("s_waitcnt lgkmcnt(0)")
    A("s_barrier")
    for k in range(2): R.rel(UO[k], 4); R.rel(UD[k], 4)
    R.rel(UP); R.rel(vTau)
    stamp()
    if STAMP: A("s_waitcnt lgkmcnt(0)")
    ACC = [R.alloc(4, 4) for _ in range(8)]
    NKS = 9; NUS = 5
    KS = [R.alloc(4, 4) for _ in range(NKS)]
    US = [R.alloc(4, 4) for _ in range(NUS)]
    ops = []
    for rr in range(4):
        if rr % 2 == 1:
            for m in range(8):
                for phi in range(8 - m): ops.append((rr, m, phi))
        else:
            for m in range(7, -1, -1):
                for phi in range(8 - m): ops.append((rr, m, phi))
    first = {}; last = {}
    for idx, (rr, m, phi) in enumerate(ops):
        for key in (("K", rr, phi), ("U", rr, m)):
            first.setdefault(key, idx); last[key] = idx
    LEAD = 10
    loads = []
    for kind, nslots in (("K", NKS), ("U", NUS)):
        keys = sorted([k for k in first if k[0] == kind], key=lambda k: first[k])
        freeat = [-1] * nslots
        for k in keys:
            s = min(range(nslots), key=lambda s: freeat[s])
            assert freeat[s] < first[k], (k, freeat, first[k])
            issue = max(freeat[s] + 1, first[k] - LEAD, 0)
            loads.append((issue, first[k], k, s))
            freeat[s] = last[k]
    loads.sort()
    slot = {k: s for (_, _, k, s) in loads}
    issued = []
    done_upto = [0]
    li = 0
    started = set()
    for idx, (rr, m, phi) in enumerate(ops):
        while li < len(loads) and loads[li][0] <= idx:
            _, _, k, s = loads[li]; li += 1
            if k[0] == "K":
                A(f"ds_read_b128 {v(KS[s],4)}, {v(vK)} offset:{64*k[1] + 512*(7-k[2])}")
                issued.append(k)
            else:
                o = 16 * k[1] + 128 * (k[2] & 1)
                A(f"ds_read2_b32 {v(US[s],2)}, {v(vU[k[2]>>1])} offset0:{o} offset1:{o+1}")
                A(f"ds_read2_b32 {v(US[s]+2,2)}, {v(vU[k[2]>>1])} offset0:{o+2} offset1:{o+3}")
                issued.append(k); issued.append(k)
        needpos = max(len(issued) - 1 - issued[::-1].index(k) for k in (("K", rr, phi), ("U", rr, m)))
        if needpos + 1 > done_upto[0]:
            N = min(len(issued) - (needpos + 1), 15)
            A(f"s_waitcnt lgkmcnt({N})")
            done_upto[0] = len(issued) - N
        c = m + phi
        cc = v(ACC[c], 4) if c in started else "0"
        started.add(c)
        A(f"v_mfma_f32_16x16x32_bf16 {v(ACC[c],4)}, {v(US[slot[('U',rr,m)]],4)}, {v(KS[slot[('K',rr,phi)]],4)}, {cc}")
    stamp()
    if STAMP: A("s_waitcnt lgkmcnt(0)")
    Xr = [KS[k] for k in range(4)]
    Ur = [US[k] for k in range(4)]
    A(f"s_lshl_b32 s36, s28, 12")
    A(f"v_lshl_add_u32 {v(vX)}, {v(vLane)}, 4, s36")
    A(f"v_xor_b32 {v(vXp)}, 4096, {v(vX)}")
    A(f"v_lshlrev_b32 {v(vT)}, 5, {v(vI)}")
    A(f"v_lshl_add_u32 {v(vT)}, {v(vQ)}, 3, {v(vT)}")
    A(f"s_lshl_b32 s36, s54, 11")
    A(f"s_add_u32 s37, s36, s34")
    A(f"v_add_u32 {v(vT2)}, s37, {v(vT)}")
    A(f"s_lshl_b32 s37, s55, 12")
    A(f"s_add_u32 s37, s37, s36")
    A(f"v_add_u32 {v(vT)}, s37, {v(vT)}")
    for k in range(4):
        A(f"ds_read_b64 {v(Ur[k],2)}, {v(vT2)} offset:{C0 + 32 + 512*k}")
    lh1 = A.newlabel("L_s4_e1"); lj = A.newlabel("L_s4_ej")
    A("s_cmp_eq_u32 s54, 1")
    A.fence()
    A(f"s_cbranch_scc1 {lh1}")
    for k in range(4):
        A(f"ds_write_b128 {v(vX)}, {v(ACC[4+k],4)} offset:{CX + 1024*k}")
    A(f"s_branch {lj}")
    A.label(lh1)
    for k in range(4):
        A(f"ds_write_b128 {v(vX)}, {v(ACC[k],4)} offset:{CX + 1024*k}")
    A("s_waitcnt lgkmcnt(0)")
    for k in range(4):
        for j in range(2):
            A(f"v_pk_mov_b32 {v(ACC[k]+2*j,2)}, {v(ACC[4+k]+2*j,2)}, {v(ACC[4+k]+2*j,2)} op_sel:[0,1]")
    A.label(lj)
    A("s_waitcnt lgkmcnt(0)")
    A("s_barrier")
    for k in range(4):
        A(f"ds_read_b128 {v(Xr[k],4)}, {v(vXp)} offset:{CX + 1024*k}")
    DS2 = R.alloc(2, 2)
    A(f"v_mov_b32 {v(DS2)}, {v(Dsk)}")
    A(f"v_mov_b32 {v(DS2+1)}, {v(Dsk)}")
    T4 = [KS[4], KS[5]]
    for k in range(4):
        t = T4[k & 1]; u = Ur[k]
        A(f"v_lshlrev_b32 {v(t)}, 16, {v(u)}")
        A(f"v_and_b32 {v(t+1)}, 0xffff0000, {v(u)}")
        A(f"v_lshlrev_b32 {v(t+2)}, 16, {v(u+1)}")
        A(f"v_and_b32 {v(t+3)}, 0xffff0000, {v(u+1)}")
        x = Xr[k]
        if FAST:
            A(f"v_pk_fma_f32 {v(t,2)}, {v(t,2)}, {v(DS2,2)}, {v(ACC[k],2)}")
            A(f"v_pk_fma_f32 {v(t+2,2)}, {v(t+2,2)}, {v(DS2,2)}, {v(ACC[k]+2,2)}")
            A(f"s_waitcnt lgkmcnt({3-k})")
            A(f"v_pk_add_f32 {v(x,2)}, {v(x,2)}, {v(t,2)}")
            A(f"v_pk_add_f32 {v(x+2,2)}, {v(x+2,2)}, {v(t+2,2)}")
        else:
            A(f"v_pk_mul_f32 {v(t,2)}, {v(t,2)}, {v(DS2,2)}")
            A(f"v_pk_mul_f32 {v(t+2,2)}, {v(t+2,2)}, {v(DS2,2)}")
            A(f"v_cvt_pk_bf16_f32 {v(u)}, {v(t)}, {v(t+1)}")
            A(f"v_cvt_pk_bf16_f32 {v(u+1)}, {v(t+2)}, {v(t+3)}")
            A(f"v_lshlrev_b32 {v(t)}, 16, {v(u)}")
            A(f"v_and_b32 {v(t+1)}, 0xffff0000, {v(u)}")
            A(f"v_lshlrev_b32 {v(t+2)}, 16, {v(u+1)}")
            A(f"v_and_b32 {v(t+3)}, 0xffff0000, {v(u+1)}")
            A(f"s_waitcnt lgkmcnt({3-k})")
            A(f"v_pk_add_f32 {v(x,2)}, {v(x,2)}, {v(ACC[k],2)}")
            A(f"v_pk_add_f32 {v(x+2,2)}, {v(x+2,2)}, {v(ACC[k]+2,2)}")
            A(f"v_cvt_pk_bf16_f32 {v(u)}, {v(x)}, {v(x+1)}")
            A(f"v_cvt_pk_bf16_f32 {v(u+1)}, {v(x+2)}, {v(x+3)}")
            A(f"v_lshlrev_b32 {v(x)}, 16, {v(u)}")
            A(f"v_and_b32 {v(x+1)}, 0xffff0000, {v(u)}")
            A(f"v_lshlrev_b32 {v(x+2)}, 16, {v(u+1)}")
            A(f"v_and_b32 {v(x+3)}, 0xffff0000, {v(u+1)}")
            A(f"v_pk_add_f32 {v(x,2)}, {v(x,2)}, {v(t,2)}")
            A(f"v_pk_add_f32 {v(x+2,2)}, {v(x+2,2)}, {v(t+2,2)}")
        A(f"v_cvt_pk_bf16_f32 {v(u)}, {v(x)}, {v(x+1)}")
        A(f"v_cvt_pk_bf16_f32 {v(u+1)}, {v(x+2)}, {v(x+3)}")
        A(f"global_store_dwordx2 {v(vT)}, {v(u,2)}, s[50:51] offset:{WS_AT + 512*k} {sc}")
    if done is not None: done(vT, vT2)
    if STAMP:
        A("s_waitcnt vmcnt(0)")
        stamp()
        A("s_waitcnt lgkmcnt(0)")
        A(f"s_lshl_b32 s36, {task}, 3")
        A(f"s_add_u32 s36, s36, s28")
        A(f"s_lshl_b32 s36, s36, 6")
        A(f"s_add_u32 s36, s36, {WS_STAMP + 0x200000}")
        A(f"v_mov_b32 {v(vT)}, s36")
        for k in stamps:
            A(f"v_mov_b32 {v(vT2)}, s{64+2*k}")
            A(f"global_store_dword {v(vT)}, {v(vT2)}, s[50:51] offset:{4*k}")
        A(f"s_getreg_b32 s36, hwreg(HW_REG_HW_ID)")
        A(f"v_mov_b32 {v(vT2)}, s36")
        A(f"global_store_dword {v(vT)}, {v(vT2)}, s[50:51] offset:56")
        A(f"s_getreg_b32 s36, hwreg(HW_REG_XCC_ID)")
        A(f"v_mov_b32 {v(vT2)}, s36")
        A(f"global_store_dword {v(vT)}, {v(vT2)}, s[50:51] offset:60")
    return R.hi, S4_LDS

def gen_nonce(A):
    l = A.newlabel("L_nonce")
    A("s_memrealtime s[36:37]")
    A("v_mov_b32 v110, 0")
    A("v_cmp_eq_u32 vcc, 0, v0")
    A("s_waitcnt lgkmcnt(0)")
    A("s_or_b32 s36, s36, 1")
    A("v_mov_b32 v111, s36")
    A("s_and_saveexec_b64 s[34:35], vcc")
    A(f"s_cbranch_execz {l}")
    A("global_store_dword v110, v111, s[48:49] sc0 sc1")
    A.label(l)
    A("s_mov_b64 exec, s[34:35]")
```

```python
import sys, os
AB = set(os.environ.get('AB', '').split(','))
from asmlib import *
from s4 import v
import s4c, gemm2, final
from gemm import gen_zero
from s4b import WS_FLAG

F_KV = WS_FLAG + 0x1000
F_PQ = WS_FLAG + 0x1200
F_AT = WS_FLAG + 0x1400
F_G  = WS_FLAG + 0x1C00
SC = "sc0 sc1"
NAME = "gated_mix__ssm_conv_s4__linear_attn_block__prompt_kernel"

def get_nonce(A, va, vb):
    l = A.newlabel("L_gn"); lo = A.newlabel("L_gno")
    A(f"v_mov_b32 {v(va)}, 0")
    A.label(l)
    A(f"global_load_dword {v(vb)}, {v(va)}, s[48:49] sc1")
    A("s_waitcnt vmcnt(0)")
    A(f"v_readfirstlane_b32 s52, {v(vb)}")
    A("s_cmp_lg_u32 s52, 0")
    A(f"s_cbranch_scc1 {lo}")
    A("s_sleep 2")
    A("s_add_u32 s93, s93, 1")
    A("s_cmp_gt_u32 s93, 300000")
    A(f"s_cbranch_scc1 {lo}")
    A(f"s_branch {l}")
    A.label(lo)

def signal(A, off_sreg, va, vb, have_nonce=False):
    l = A.newlabel("L_sig"); lk = A.newlabel("L_sigk")
    if not have_nonce:
        A(f"v_mov_b32 {v(va)}, 0")
        A(f"global_load_dword {v(vb)}, {v(va)}, s[48:49] sc1")
    A("s_waitcnt vmcnt(0)")
    A("s_barrier")
    A("s_cmp_lg_u32 s28, 0")
    A(f"s_cbranch_scc1 {l}")
    if not have_nonce:
        A(f"v_readfirstlane_b32 s52, {v(vb)}")
        A("s_cmp_lg_u32 s52, 0")
        A(f"s_cbranch_scc1 {lk}")
        get_nonce(A, va, vb)
        A.label(lk)
    A(f"v_mov_b32 {v(va)}, {off_sreg}")
    A(f"v_mov_b32 {v(vb)}, s52")
    A("s_mov_b64 exec, 1")
    A(f"global_store_dword {v(va)}, {v(vb)}, s[50:51] sc0 sc1")
    A("s_mov_b64 exec, -1")
    A.label(l)

def gen_prefetch(A, x="s5", hj="s6"):
    A(f"s_load_dwordx2 s[16:17], s[0:1], 88")
    A(f"s_lshl_b32 s29, {hj}, 8")
    A("v_add_u32 v1, s29, v0")
    A("v_lshlrev_b32 v7, 7, v1")
    A("s_waitcnt lgkmcnt(0)")
    A("s_mov_b32 s18, 819200")
    A("s_mov_b32 s19, 0x20000")
    for c in range(0 if "nowo" in AB else 4):
        A(f"s_mov_b32 s29, {c*2048*128}")
        A(f"buffer_load_dword v{107+c}, v7, s[16:19], s29 offen")

def make_pf(A, x, jj):
    def pf(T):
        a, b, c, d, e, f = T
        A(f"s_load_dwordx2 s[56:57], s[0:1], 80")
        A(f"s_lshr_b32 s36, {jj}, 2")
        A(f"s_and_b32 s37, {jj}, 3")
        A(f"s_lshr_b32 s38, {x}, 1")
        A("s_lshl_b32 s38, s38, 9")
        A("s_lshl_b32 s39, s37, 7")
        A("s_add_u32 s38, s38, s39")
        A(f"v_and_b32 {v(a)}, 127, v0")
        A(f"v_add_u32 {v(a)}, s38, {v(a)}")
        A(f"v_mul_u32_u24 {v(a)}, 1280, {v(a)}")
        A("s_lshl_b32 s38, s36, 7")
        A(f"v_add_u32 {v(a)}, s38, {v(a)}")
        A(f"global_load_dword {v(e)}, {v(a)}, s[8:9]")
        A(f"v_and_b32 {v(b)}, 15, v0")
        A(f"v_add_u32 {v(c)}, 10, {v(b)}")
        A(f"v_add_u32 {v(d)}, 12, {v(b)}")
        A(f"v_cmp_gt_u32 vcc, 8, {v(b)}")
        A(f"v_cndmask_b32 {v(c)}, {v(d)}, {v(c)}, vcc")
        A(f"v_add_u32 {v(d)}, 14, {v(b)}")
        A(f"v_add_u32 {v(a)}, 7, {v(b)}")
        A(f"v_cmp_gt_u32 vcc, 13, {v(b)}")
        A(f"v_cndmask_b32 {v(d)}, {v(d)}, {v(a)}, vcc")
        A(f"v_cmp_gt_u32 vcc, 10, {v(b)}")
        A(f"v_cndmask_b32 {v(d)}, {v(d)}, {v(b)}, vcc")
        A(f"s_and_b32 s38, {x}, 1")
        A("s_cmp_eq_u32 s38, 0")
        A("s_cselect_b64 vcc, -1, 0")
        A(f"v_cndmask_b32 {v(c)}, {v(d)}, {v(c)}, vcc")
        A(f"s_lshl_b32 s38, {jj}, 4")
        A(f"v_lshrrev_b32 {v(b)}, 4, v0")
        A(f"v_add_u32 {v(b)}, s38, {v(b)}")
        A(f"v_mul_u32_u24 {v(b)}, 3840, {v(b)}")
        A(f"v_lshl_add_u32 {v(b)}, {v(c)}, 7, {v(b)}")
        A("s_waitcnt lgkmcnt(0)")
        A(f"global_load_dword {v(f)}, {v(b)}, s[56:57]")
        return 2
    return pf

def build(stamp=False):
    s4c.STAMP = stamp
    A = Asm()
    A.raw(kernel_header(NAME))
    A("s_cmp_ge_u32 s2, 576")
    A("s_cbranch_scc1 L_end")
    A("s_mov_b32 s93, 0")
    A("s_and_b32 s5, s2, 7")
    A("s_lshr_b32 s6, s2, 3")
    A("s_cmp_ge_u32 s6, 32")
    A("s_cbranch_scc1 %s" % ("L_end" if "nos4" in AB else "L_s4"))
    A("s_cmp_lt_u32 s6, 8")
    A("s_cbranch_scc1 L_help")
    A("s_sub_u32 s6, s6, 8")
    A("s_mul_i32 s7, s6, 43")
    A("s_lshr_b32 s7, s7, 8")
    A("s_mul_i32 s4, s7, 6")
    A("s_sub_u32 s4, s6, s4")
    A("s_lshr_b32 s3, s5, 1")
    A("s_lshl_b32 s3, s3, 2")
    A("s_add_u32 s3, s3, s7")
    A("s_and_b32 s5, s5, 1")
    A("s_mul_i32 s5, s5, 6")
    A("s_add_u32 s4, s4, s5")
    A("s_setprio 3")
    A("s_sub_u32 s92, s2, 64")
    nv1, lds1 = gemm2.gen_gemm(A, "s3", "s4", sc=SC, stamp_task="s92" if stamp else None, pre=None)
    A("s_lshl_b32 s29, s3, 3")
    A("s_add_u32 s29, s29, s4")
    A("s_lshl_b32 s29, s29, 2")
    A(f"s_add_u32 s29, s29, {F_KV}")
    A("s_lshl_b32 s30, s3, 2")
    A("s_add_u32 s30, s30, s4")
    A("s_lshl_b32 s30, s30, 2")
    A(f"s_add_u32 s30, s30, {F_PQ - 32}")
    A("s_cmp_ge_u32 s4, 8")
    A("s_cselect_b32 s29, s30, s29")
    A.fence()
    signal(A, "s29", 1, 2)
    A("s_branch L_final")
    A.label("L_help")
    A("s_lshl_b32 s3, s6, 3")
    A("s_add_u32 s3, s3, s5")
    A("s_cmp_lg_u32 s3, 0")
    A("s_cbranch_scc1 L_pf")
    A("s_load_dwordx4 s[48:51], s[0:1], 112")
    A("s_waitcnt lgkmcnt(0)")
    s4c.gen_nonce(A)
    gen_zero(A)
    A.label("L_pf")
    nv2 = final.gen_gate(A, "s3", sc=SC)
    gen_prefetch(A, "s5", "s6")
    A("s_lshl_b32 s29, s3, 2")
    A(f"s_add_u32 s29, s29, {F_G}")
    signal(A, "s29", 1, 2)
    A.label("L_final")
    if "nofinal" in AB: A("s_branch L_end")
    A("v_mbcnt_lo_u32_b32 v0, -1, 0")
    A("v_mbcnt_hi_u32_b32 v0, -1, v0")
    A("s_lshl_b32 s29, s28, 6")
    A("v_add_u32 v0, s29, v0")
    A("s_and_b32 s5, s2, 7")
    A("s_lshr_b32 s6, s2, 3")
    A("s_lshr_b32 s3, s6, 3")
    A("s_lshl_b32 s5, s5, 2")
    A("s_add_u32 s3, s3, s5")
    A("s_and_b32 s4, s6, 7")
    A("s_barrier")
    def wait(kind, WV):
        l = A.newlabel("L_w"); lo = A.newlabel("L_wo")
        a0, a1, a2, d0, d1, d2 = WV
        A("s_cmp_lg_u32 s28, 0")
        A(f"s_cbranch_scc1 {lo}")
        A(f"v_and_b32 {v(a2)}, 63, v0")
        if kind == "kvpq":
            A(f"v_lshlrev_b32 {v(a0)}, 2, {v(a2)}")
            A(f"v_add_u32 {v(a0)}, {F_KV}, {v(a0)}")
            A(f"s_lshr_b32 s29, s3, 1")
            A(f"s_lshl_b32 s29, s29, 4")
            A(f"s_add_u32 s29, s29, {F_PQ}")
            A(f"v_and_b32 {v(a2)}, 3, {v(a2)}")
            A(f"v_lshl_add_u32 {v(a1)}, {v(a2)}, 2, s29")
            A.label(l)
            A(f"global_load_dword {v(d0)}, {v(a0)}, s[50:51] sc1")
            A(f"global_load_dword {v(d1)}, {v(a0)}, s[50:51] offset:256 sc1")
            A(f"global_load_dword {v(d2)}, {v(a1)}, s[50:51] sc1")
            A("s_waitcnt vmcnt(0)")
            A(f"v_cmp_ne_u32 vcc, s52, {v(d0)}")
            A(f"v_cmp_ne_u32 s[30:31], s52, {v(d1)}")
            A("s_or_b64 vcc, vcc, s[30:31]")
            A(f"v_cmp_ne_u32 s[30:31], s52, {v(d2)}")
            A("s_or_b64 vcc, vcc, s[30:31]")
        else:
            A(f"s_mul_i32 s29, s4, 160")
            A(f"s_add_u32 s29, s29, {F_AT}")
            A(f"v_min_u32 {v(a0)}, 39, {v(a2)}")
            A(f"v_lshl_add_u32 {v(a0)}, {v(a0)}, 2, s29")
            A(f"s_lshl_b32 s29, s3, 3")
            A(f"s_add_u32 s29, s29, {F_G}")
            A(f"v_and_b32 {v(a2)}, 1, {v(a2)}")
            A(f"v_lshl_add_u32 {v(a1)}, {v(a2)}, 2, s29")
            A.label(l)
            A(f"global_load_dword {v(d0)}, {v(a0)}, s[50:51] sc1")
            A(f"global_load_dword {v(d1)}, {v(a1)}, s[50:51] sc1")
            A("s_waitcnt vmcnt(0)")
            A(f"v_cmp_ne_u32 vcc, s52, {v(d0)}")
            A(f"v_cmp_ne_u32 s[30:31], s52, {v(d1)}")
            A("s_or_b64 vcc, vcc, s[30:31]")
        A("s_cmp_eq_u64 vcc, 0")
        A(f"s_cbranch_scc1 {lo}")
        A("s_sleep 2")
        A("s_add_u32 s93, s93, 1")
        A("s_cmp_gt_u32 s93, 300000")
        A(f"s_cbranch_scc1 {lo}")
        A(f"s_branch {l}")
        A.label(lo)
        A("s_barrier")
    nv4, lds4 = final.gen_final(A, "s3", "s4", sc="sc1", wait=wait, stamp_task="s2" if stamp else None)
    assert nv4 <= 168, nv4
    A("s_branch L_end")
    A.label("L_s4")
    A("s_sub_u32 s6, s6, 32")
    A("s_lshl_b32 s3, s6, 3")
    A("s_add_u32 s3, s3, s5")
    A("s_mov_b32 s90, s5")
    A("s_mov_b32 s91, s6")
    A("s_mul_i32 s7, s6, 52")
    A("s_lshr_b32 s7, s7, 8")
    A("s_mul_i32 s4, s7, 5")
    A("s_sub_u32 s4, s6, s4")
    A("s_lshr_b32 s6, s5, 1")
    A("s_lshl_b32 s6, s6, 3")
    A("s_add_u32 s6, s6, s7")
    A("s_and_b32 s5, s5, 1")
    A("s_mul_i32 s5, s5, 5")
    A("s_add_u32 s4, s4, s5")
    def done(va, vb):
        A("s_lshl_b32 s29, s3, 2")
        A(f"s_add_u32 s29, s29, {F_AT}")
        signal(A, "s29", va, vb, have_nonce=True)
    nv3, lds3 = s4c.gen_s4(A, "s3", sc=SC, done=done, tile=("s6", "s4"), pf=make_pf(A, "s90", "s91"))
    A.label("L_end")
    A("s_endpgm")
    nv = max(nv1, nv2, nv3, nv4, 112); lds = max(lds1, lds3, lds4)
    hdr = open("gated_mix__ssm_conv_s4__linear_attn_block__prompt.s.ref").read().split("; Override launch geometry")[0]
    out = hdr
    out += f"; @launch grid=(576,1,1) block=(256,1,1) lds={lds}\n"
    out += '.amdgcn_target "amdgcn-amd-amdhsa--gfx950"\n.text\n' + A.text()
    out += '.section .rodata,"a"\n' + kernel_desc(NAME, nv, 96)
    print("vgpr", nv1, nv2, nv3, nv4, "lds", lds, "lines", len(A.lines))
    return out

if __name__ == "__main__":
    open(sys.argv[1], "w").write(build(len(sys.argv) > 2))
```

```python
import sys, os
AB = set(os.environ.get('AB', '').split(','))
from asmlib import *
from s4 import v
import s4c, s4f, gemm3, final4
from gemm import gen_zero
from s4b import WS_FLAG
from build3 import get_nonce, signal, F_KV, F_PQ, F_AT, F_G, SC, NAME

NWG = 256

def gen_touch(A0, x, jw, dst=200, rb=30):
    import re
    A = lambda t: A0(re.sub(r"\bv3([0-7])\b", lambda m: "v%d" % (rb + int(m.group(1))), t))
    A.newlabel = A0.newlabel; A.label = A0.label
    A(f"s_and_b32 s39, {x}, 1")
    A(f"s_lshr_b32 s40, {x}, 1")
    A(f"s_mul_i32 s40, s40, {512*1280}")
    A(f"s_lshl_b32 s34, {jw}, 8")
    A("v_and_b32 v33, 15, v0")
    A("v_add_u32 v35, 10, v33")
    A("v_add_u32 v36, 12, v33")
    A("v_cmp_gt_u32 vcc, 8, v33")
    A("v_cndmask_b32 v35, v36, v35, vcc")
    A("v_add_u32 v36, 14, v33")
    A("v_add_u32 v37, 7, v33")
    A("v_cmp_gt_u32 vcc, 13, v33")
    A("v_cndmask_b32 v36, v36, v37, vcc")
    A("v_cmp_gt_u32 vcc, 10, v33")
    A("v_cndmask_b32 v36, v36, v33, vcc")
    A("s_cmp_eq_u32 s39, 0")
    A("s_cselect_b64 vcc, -1, 0")
    A("v_cndmask_b32 v35, v36, v35, vcc")
    A("v_lshlrev_b32 v35, 7, v35")
    for r in range(2):
        A("v_add_u32 v30, s34, v0")
        if r:
            A(f"v_add_u32 v30, 8192, v30")
            A(f"v_min_u32 v30, 15359, v30")
        A("v_lshlrev_b32 v32, 7, v30")
        A("v_add_u32 v32, s40, v32")
        A("v_subrev_u32 v34, 5120, v30")
        A("v_lshrrev_b32 v34, 4, v34")
        A("v_mul_u32_u24 v34, 3840, v34")
        A("v_add_u32 v34, v34, v35")
        A("v_readfirstlane_b32 s29, v30")
        lb = A.newlabel("L_tb"); le = A.newlabel("L_te")
        A("s_cmp_ge_u32 s29, 5120")
        A(f"s_cbranch_scc1 {lb}")
        A(f"buffer_load_dword v{dst+r}, v32, s[8:11], 0 offen")
        A(f"s_branch {le}")
        A.label(lb)
        A(f"buffer_load_dword v{dst+r}, v34, s[12:15], 0 offen")
        A.label(le)

def gen_touch_wo(A, hj):
    A("s_load_dwordx2 s[12:13], s[0:1], 88")
    A(f"s_lshl_b32 s29, {hj}, 8")
    A("v_add_u32 v245, s29, v0")
    A("v_lshlrev_b32 v245, 7, v245")
    A("s_mov_b32 s14, 819200")
    A("s_mov_b32 s15, 0x20000")
    A("s_waitcnt lgkmcnt(0)")
    for c in range(4):
        A(f"s_mov_b32 s29, {c*2048*128}")
        A(f"buffer_load_dword v{246+c}, v245, s[12:15], s29 offen")

def make_wait(A):
    def wait(kind, WV):
        l = A.newlabel("L_w"); lo = A.newlabel("L_wo")
        a0, a1, a2, d0, d1, d2 = WV
        if kind == "kvpq":
            signal(A, "s88", a0, a1, have_nonce=True)
        A("s_cmp_lg_u32 s28, 0")
        A(f"s_cbranch_scc1 {lo}")
        A(f"v_and_b32 {v(a2)}, 63, v0")
        if kind == "kvpq":
            A(f"v_lshlrev_b32 {v(a0)}, 2, {v(a2)}")
            A(f"v_add_u32 {v(a0)}, {F_KV}, {v(a0)}")
            A(f"s_lshr_b32 s29, s3, 1")
            A(f"s_lshl_b32 s29, s29, 4")
            A(f"s_add_u32 s29, s29, {F_PQ}")
            A(f"v_and_b32 {v(a2)}, 3, {v(a2)}")
            A(f"v_lshl_add_u32 {v(a1)}, {v(a2)}, 2, s29")
            A.label(l)
            A(f"global_load_dword {v(d0)}, {v(a0)}, s[50:51] sc1")
            A(f"global_load_dword {v(d1)}, {v(a0)}, s[50:51] offset:256 sc1")
            A(f"global_load_dword {v(d2)}, {v(a1)}, s[50:51] sc1")
            A("s_waitcnt vmcnt(0)")
            A(f"v_cmp_ne_u32 vcc, s52, {v(d0)}")
            A(f"v_cmp_ne_u32 s[30:31], s52, {v(d1)}")
            A("s_or_b64 vcc, vcc, s[30:31]")
            A(f"v_cmp_ne_u32 s[30:31], s52, {v(d2)}")
            A("s_or_b64 vcc, vcc, s[30:31]")
        else:
            A(f"s_mul_i32 s29, s4, 160")
            A(f"s_add_u32 s29, s29, {F_AT}")
            A(f"v_min_u32 {v(a0)}, 39, {v(a2)}")
            A(f"v_lshl_add_u32 {v(a0)}, {v(a0)}, 2, s29")
            A(f"s_lshr_b32 s29, s3, 1")
            A(f"s_lshl_b32 s29, s29, 2")
            A(f"s_add_u32 s29, s29, {F_G}")
            A(f"v_and_b32 {v(a2)}, 3, {v(a2)}")
            A(f"v_lshl_add_u32 {v(a1)}, {v(a2)}, 6, s29")
            A.label(l)
            A(f"global_load_dword {v(d0)}, {v(a0)}, s[50:51] sc1")
            A(f"global_load_dword {v(d1)}, {v(a1)}, s[50:51] sc1")
            A("s_waitcnt vmcnt(0)")
            A(f"v_cmp_ne_u32 vcc, s52, {v(d0)}")
            A(f"v_cmp_ne_u32 s[30:31], s52, {v(d1)}")
            A("s_or_b64 vcc, vcc, s[30:31]")
        A("s_cmp_eq_u64 vcc, 0")
        A(f"s_cbranch_scc1 {lo}")
        A("s_sleep 2")
        A("s_add_u32 s93, s93, 1")
        A("s_cmp_gt_u32 s93, 300000")
        A(f"s_cbranch_scc1 {lo}")
        A(f"s_branch {l}")
        A.label(lo)
        A("s_barrier")
    return wait

def build(stamp=False):
    s4f.STAMP = stamp
    A = Asm()
    A.raw(kernel_header(NAME))
    A(f"s_cmp_ge_u32 s2, {NWG}")
    A("s_cbranch_scc1 L_end")
    A("s_mov_b32 s93, 0")
    s4f.gen_params1(A)
    A("s_and_b32 s5, s2, 7")
    A("s_lshr_b32 s6, s2, 3")
    A("s_mov_b32 s89, s5")
    A("s_mov_b32 s87, s6")
    A("s_cmp_lt_u32 s6, 8")
    A("s_cbranch_scc1 L_help")
    A("s_sub_u32 s6, s6, 8")
    A("s_and_b32 s7, s6, 3")
    A("s_lshr_b32 s4, s6, 2")
    A("s_lshr_b32 s3, s5, 1")
    A("s_lshl_b32 s3, s3, 2")
    A("s_add_u32 s3, s3, s7")
    A("s_and_b32 s5, s5, 1")
    A("s_mul_i32 s5, s5, 6")
    A("s_add_u32 s4, s4, s5")
    A("s_mul_i32 s92, s3, 12")
    A("s_add_u32 s92, s92, s4")
    A("s_add_u32 s90, s92, 128")
    A("s_mov_b32 s91, 1")
    A("s_mov_b32 s84, 0")
    def pre():
        gen_touch(A, "s89", "s87")
        s4f.gen_params2(A, "s90")
    nv1, lds1 = gemm3.gen_gemm(A, "s3", "s4", sc=SC, stamp_task="s92" if stamp else None, pre=pre)
    A("s_setprio 0")
    A("s_lshl_b32 s88, s3, 3")
    A("s_add_u32 s88, s88, s4")
    A("s_lshl_b32 s88, s88, 2")
    A(f"s_add_u32 s88, s88, {F_KV}")
    A("s_lshl_b32 s30, s3, 2")
    A("s_add_u32 s30, s30, s4")
    A("s_lshl_b32 s30, s30, 2")
    A(f"s_add_u32 s30, s30, {F_PQ - 32}")
    A("s_cmp_ge_u32 s4, 8")
    A("s_cselect_b32 s88, s30, s88")
    A.fence()
    A("v_mbcnt_lo_u32_b32 v0, -1, 0")
    A("v_mbcnt_hi_u32_b32 v0, -1, v0")
    A("s_lshl_b32 s29, s28, 6")
    A("v_add_u32 v0, s29, v0")
    A("s_branch L_s4")
    A.label("L_help")
    A("s_load_dwordx2 s[8:9], s[0:1], 0")
    A("s_load_dwordx2 s[12:13], s[0:1], 80")
    A("s_load_dwordx4 s[48:51], s[0:1], 112")
    A("v_lshrrev_b32 v1, 6, v0")
    A("v_readfirstlane_b32 s28, v1")
    A("s_lshl_b32 s3, s6, 3")
    A("s_add_u32 s3, s3, s5")
    A("s_lshl_b32 s90, s3, 1")
    A("s_mov_b32 s91, 2")
    A("s_mov_b32 s84, 0")
    A("s_waitcnt lgkmcnt(0)")
    A(f"""
    s_mov_b32 s10, 2621440
    s_mov_b32 s11, 0x20000
    s_mov_b32 s14, 2457600
    s_mov_b32 s15, 0x20000
    """)
    A("s_cmp_lg_u32 s3, 0")
    A("s_cbranch_scc1 L_pf")
    s4c.gen_nonce(A)
    gen_zero(A)
    A.label("L_pf")
    A("s_lshr_b32 s86, s5, 1")
    A("s_lshl_b32 s86, s86, 2")
    A("s_lshr_b32 s29, s6, 1")
    A("s_add_u32 s86, s86, s29")
    A("s_and_b32 s83, s5, 1")
    A("s_lshl_b32 s83, s83, 1")
    A("s_and_b32 s29, s6, 1")
    A("s_add_u32 s83, s83, s29")
    def between():
        s4f.gen_params2(A, "s90")
        gen_touch(A, "s89", "s87", rb=120)
        return 10
    def after_store():
        A("s_lshl_b32 s88, s83, 6")
        A("s_lshl_b32 s30, s86, 2")
        A("s_add_u32 s88, s88, s30")
        A(f"s_add_u32 s88, s88, {WS_FLAG}")
        signal(A, "s88", 120, 121)
        gen_touch_wo(A, "s87")
    s4f.gen_transpose(A, "s86", "s83", between=between, after_store=after_store)
    A(f"s_add_u32 s88, s88, {F_G - WS_FLAG}")
    A.label("L_s4")
    A("s_barrier")
    def done(va, vb):
        ln = A.newlabel("L_s4_nx")
        A("s_lshl_b32 s88, s90, 2")
        A(f"s_add_u32 s88, s88, {F_AT}")
        A("s_add_u32 s90, s90, 1")
        A("s_sub_u32 s91, s91, 1")
        A("s_cmp_eq_u32 s91, 0")
        A(f"s_cbranch_scc1 {ln}")
        s4f.gen_params2(A, "s90")
        A("s_mov_b32 s84, 1")
        A.label(ln)
    def after_mid(T):
        A("s_lshr_b32 s29, s2, 3")
        A("s_and_b32 s83, s29, 7")
        return final4.gen_wdma(A, "s83", T)
    nv3, lds3 = s4f.gen_s4(A, "s90", sc=SC, done=done, after_mid=after_mid)
    A("s_cmp_lg_u32 s91, 0")
    A("s_cbranch_scc1 L_s4")
    A.label("L_final")
    A("s_and_b32 s5, s2, 7")
    A("s_lshr_b32 s6, s2, 3")
    A("s_lshr_b32 s3, s6, 3")
    A("s_lshl_b32 s5, s5, 2")
    A("s_add_u32 s3, s3, s5")
    A("s_and_b32 s4, s6, 7")
    A("s_barrier")
    nv4, lds4 = final4.gen_final(A, "s3", "s4", sc="sc1", wait=make_wait(A), stamp_task="s2" if stamp else None)
    A.label("L_end")
    A("s_endpgm")
    nv = max(nv1, nv3, nv4, 250); lds = max(lds1, lds3, lds4)
    hdr = open("gated_mix__ssm_conv_s4__linear_attn_block__prompt.s.ref").read().split("; Override launch geometry")[0]
    out = hdr
    out += f"; @launch grid=({NWG},1,1) block=(256,1,1) lds={lds}\n"
    out += '.amdgcn_target "amdgcn-amd-amdhsa--gfx950"\n.text\n' + A.text()
    out += '.section .rodata,"a"\n' + kernel_desc(NAME, 256, 96, agpr=final4.NAG)
    print("vgpr", nv1, nv3, nv4, "lds", lds1, lds3, lds4, "lines", len(A.lines))
    return out

if __name__ == "__main__":
    open(sys.argv[1], "w").write(build(len(sys.argv) > 2))
```

```python
import numpy as np, os
from asmlib import *
TIMER = os.environ.get('TIMER', 's_memtime')
from s4 import Regs, v, f2u
from s4b import WS_AT, WS_G, WS_KV, WS_STAMP
from final import WS_PQF, PAIR

KVZ = 0
WO = 26896
WGRP = 25600
FINAL_LDS = WO + 2 * WGRP

class Track:
    def __init__(self, A, name, maxn):
        self.A = A; self.name = name; self.maxn = maxn; self.log = []; self.done = 0
    def issue(self, tag): self.log.append(tag)
    def wait(self, tags):
        pos = -1
        for t in tags:
            for i in range(len(self.log) - 1, -1, -1):
                if self.log[i] == t:
                    pos = max(pos, i); break
        if pos + 1 > self.done:
            n = min(len(self.log) - (pos + 1), self.maxn)
            self.A(f"s_waitcnt {self.name}({n})")
            self.done = len(self.log) - n
    def all(self):
        if self.done < len(self.log):
            self.A(f"s_waitcnt {self.name}(0)"); self.done = len(self.log)

def gen_final(A, rb="s3", cb="s4", sc="", wait=None, stamp_task=None):
    stamps = []
    sc2 = sc if os.environ.get("SC2") else ""
    def stamp():
        if stamp_task is None: return
        k = len(stamps); stamps.append(k)
        A(f"{TIMER} s[{64+2*k}:{65+2*k}]")
        A("s_waitcnt lgkmcnt(0)"); L.done = len(L.log)
    R = Regs(1, 256)
    L = Track(A, "lgkmcnt", 15); V = Track(A, "vmcnt", 63)
    A(f"""
    s_load_dwordx2 s[12:13], s[0:1], 88
    s_load_dwordx2 s[16:17], s[0:1], 104
    s_load_dwordx4 s[48:51], s[0:1], 112
    """)
    stamp()
    lane = R.alloc(); vi = R.alloc(); vq = R.alloc(); t1 = R.alloc(); t2 = R.alloc(); t3 = R.alloc()
    A(f"v_and_b32 {v(lane)}, 63, v0")
    A(f"v_lshrrev_b32 {v(t1)}, 6, v0")
    A(f"v_readfirstlane_b32 s28, {v(t1)}")
    A(f"v_and_b32 {v(vi)}, 15, {v(lane)}")
    A(f"v_lshrrev_b32 {v(vq)}, 4, {v(lane)}")
    VDW = [R.alloc() for _ in range(7)]
    A(f"s_mul_i32 s29, s28, 400")
    A(f"s_mul_i32 s30, {cb}, 160")
    for j in range(7):
        A(f"v_add_u32 {v(t1)}, s29, {v(lane)}")
        if j: A(f"v_add_u32 {v(t1)}, {64*j}, {v(t1)}")
        A(f"v_mul_u32_u24 {v(t2)}, 6554, {v(t1)}")
        A(f"v_lshrrev_b32 {v(t2)}, 16, {v(t2)}")
        A(f"v_mul_u32_u24 {v(t3)}, 10, {v(t2)}")
        A(f"v_sub_u32 {v(t1)}, {v(t1)}, {v(t3)}")
        A(f"v_mul_u32_u24 {v(t2)}, 1280, {v(t2)}")
        A(f"v_lshl_add_u32 {v(t2)}, {v(t1)}, 4, {v(t2)}")
        A(f"v_add_u32 {v(VDW[j])}, s30, {v(t2)}")
    A(f"s_mul_i32 s35, s28, 6400")
    A(f"s_add_u32 s35, s35, {WO}")
    A("s_mov_b32 s62, -1")
    A("s_mov_b32 s63, 0xffff")
    A("s_waitcnt lgkmcnt(0)")
    A("s_mov_b32 s14, 819200")
    A("s_mov_b32 s15, 0x20000")
    def issueW(G, j):
        A(f"s_add_u32 m0, s35, {WGRP*(G%2) + 1024*j}")
        if j == 0: A(f"s_mov_b32 s38, {G*160*1280}")
        if j == 6: A("s_mov_b64 exec, 0xffff")
        A(f"buffer_load_dwordx4 {v(VDW[j])}, s[12:15], s38 offen lds")
        if j == 6: A("s_mov_b64 exec, -1")
        V.issue(("W", G))
    for G in range(2):
        for j in range(7): issueW(G, j)
    VW = [[R.alloc() for _ in range(2)] for _ in range(5)]
    vr = R.alloc(); vc8 = R.alloc()
    A(f"v_lshrrev_b32 {v(vr)}, 2, {v(vi)}")
    A(f"v_and_b32 {v(vc8)}, 3, {v(vi)}")
    A(f"v_lshlrev_b32 {v(vc8)}, 3, {v(vc8)}")
    A(f"v_add_u32 {v(vc8)}, {WO}, {v(vc8)}")
    A(f"v_lshlrev_b32 {v(t3)}, 3, {v(vr)}")
    for f in range(5):
        for hf in range(2):
            bases = 0; mults = 0
            for rp in range(4):
                idx = 8 * f + 4 * hf + rp
                ho, r = PAIR[idx % 10]
                head = 2 * (idx // 10) + ho
                base = 20 * head + (r if r < 3 else 12 + r - 3)
                mult = 3 if r < 3 else 2
                bases |= base << (8 * rp); mults |= mult << (8 * rp)
            A(f"s_mov_b32 s29, {bases}")
            A(f"s_mov_b32 s30, {mults}")
            A(f"v_bfe_u32 {v(t1)}, s29, {v(t3)}, 8")
            A(f"v_bfe_u32 {v(t2)}, s30, {v(t3)}, 8")
            A(f"v_mad_u32_u24 {v(t1)}, {v(t2)}, {v(vq)}, {v(t1)}")
            A(f"v_mul_u32_u24 {v(t1)}, 160, {v(t1)}")
            A(f"v_add_u32 {v(VW[f][hf])}, {v(t1)}, {v(vc8)}")
    R.rel(vr); R.rel(vc8)
    vK0 = R.alloc(); vK1 = R.alloc()
    A(f"v_lshrrev_b32 {v(t1)}, 2, {v(vi)}")
    A(f"v_and_b32 {v(t2)}, 3, {v(vi)}")
    A(f"v_min_u32 {v(t3)}, 2, {v(vq)}")
    A(f"v_lshlrev_b32 {v(t3)}, 4, {v(t3)}")
    A(f"v_mad_u32_u24 {v(vK0)}, {v(t1)}, 3, {v(t2)}")
    A(f"v_cmp_eq_u32 vcc, 3, {v(t2)}")
    A(f"v_cndmask_b32 {v(vK0)}, {v(vK0)}, 20, vcc")
    A(f"v_mad_u32_u24 {v(vK0)}, {v(vK0)}, 40, {v(t3)}")
    A(f"v_lshl_add_u32 {v(vK1)}, {v(t1)}, 1, {v(t2)}")
    A(f"v_add_u32 {v(vK1)}, 12, {v(vK1)}")
    A(f"v_cmp_lt_u32 vcc, 1, {v(t2)}")
    A(f"v_cndmask_b32 {v(vK1)}, {v(vK1)}, 20, vcc")
    A(f"v_mad_u32_u24 {v(vK1)}, {v(vK1)}, 40, {v(t3)}")
    vPQ = R.alloc(); vMask = R.alloc()
    A(f"v_lshlrev_b32 {v(vPQ)}, 4, {v(lane)}")
    A(f"v_cmp_gt_u32 vcc, 2, {v(vq)}")
    A(f"v_cndmask_b32 {v(vMask)}, 0, -1, vcc")
    A(f"s_lshl_b32 s29, {rb}, 2")
    A(f"s_add_u32 s29, s29, s28")
    A(f"s_mul_i32 s29, s29, {32*768}")
    A(f"s_add_u32 s29, s29, {WS_PQF}")
    A(f"s_add_u32 s20, s50, s29")
    A(f"s_addc_u32 s21, s51, 0")
    A(f"s_mov_b32 s22, {32*768}")
    A(f"s_mov_b32 s23, 0x20000")
    NPQ = 16
    PQ = [R.alloc(4, 4) for _ in range(NPQ)]
    for p in PQ:
        for k in range(4): A(f"v_mov_b32 {v(p+k)}, 0")
    ACC = [R.alloc(4, 4) for _ in range(5)]
    for a in ACC:
        for k in range(4): A(f"v_mov_b32 {v(a+k)}, 0")
    vATr = R.alloc(); vO8 = R.alloc(); vO16 = R.alloc(); vATg = R.alloc(); vATW = R.alloc(); vGa = R.alloc()
    A(f"v_lshrrev_b32 {v(t1)}, 2, {v(vi)}")
    A(f"v_lshl_add_u32 {v(t1)}, {v(vq)}, 2, {v(t1)}")
    A(f"v_lshlrev_b32 {v(t1)}, 7, {v(t1)}")
    A(f"v_and_b32 {v(t2)}, 3, {v(vi)}")
    A(f"v_lshl_add_u32 {v(t1)}, {v(t2)}, 3, {v(t1)}")
    A(f"s_lshl_b32 s29, s28, 5")
    A(f"s_add_u32 s29, s29, {WO}")
    A(f"v_add_u32 {v(vATr)}, s29, {v(t1)}")
    A(f"s_lshl_b32 s29, {rb}, 6")
    A(f"s_lshl_b32 s30, s28, 4")
    A(f"s_add_u32 s29, s29, s30")
    A(f"v_add_u32 {v(t2)}, s29, {v(vi)}")
    A(f"v_lshlrev_b32 {v(vGa)}, 2, {v(t2)}")
    A(f"v_add_u32 {v(vGa)}, {WS_G}, {v(vGa)}")
    A(f"v_mul_u32_u24 {v(t2)}, 1280, {v(t2)}")
    A(f"s_mul_i32 s29, {cb}, 160")
    A(f"v_lshl_add_u32 {v(vO8)}, {v(vq)}, 3, {v(t2)}")
    A(f"v_add_u32 {v(vO8)}, s29, {v(vO8)}")
    A(f"v_and_b32 {v(t1)}, 1, {v(vq)}")
    A(f"v_lshl_add_u32 {v(t2)}, {v(t1)}, 5, {v(t2)}")
    A(f"v_lshrrev_b32 {v(t1)}, 1, {v(vq)}")
    A(f"v_lshl_add_u32 {v(t2)}, {v(t1)}, 4, {v(t2)}")
    A(f"v_add_u32 {v(vO16)}, s29, {v(t2)}")
    A(f"s_mul_i32 s29, s28, 160")
    A(f"v_add_u32 {v(t1)}, s29, {v(lane)}")
    A(f"v_lshrrev_b32 {v(t2)}, 3, {v(t1)}")
    A(f"v_and_b32 {v(t1)}, 7, {v(t1)}")
    A(f"v_lshlrev_b32 {v(t2)}, 12, {v(t2)}")
    A(f"v_lshl_add_u32 {v(t1)}, {v(t1)}, 4, {v(t2)}")
    A(f"s_mul_i32 s29, {cb}, {80*4096}")
    A(f"s_lshl_b32 s30, {rb}, 7")
    A(f"s_add_u32 s29, s29, s30")
    A(f"s_add_u32 s29, s29, {WS_AT}")
    A(f"v_add_u32 {v(vATg)}, s29, {v(t1)}")
    A(f"s_mul_i32 s30, s28, 2560")
    A(f"s_add_u32 s30, s30, {WO}")
    A(f"v_lshl_add_u32 {v(vATW)}, {v(lane)}, 4, s30")
    A(f"s_add_u32 s44, s50, {WS_KV}")
    A(f"s_addc_u32 s45, s51, 0")
    A(f"s_mov_b32 s46, {32*21*20*4}")
    A(f"s_mov_b32 s47, 0x20000")
    A(f"s_mov_b32 s58, {f2u(1e-6)}")
    A(f"v_lshlrev_b32 {v(t1)}, 4, v0")
    A(f"v_lshlrev_b32 {v(t2)}, 3, v0")
    if wait is not None:
        wtmp = [R.alloc() for _ in range(6)]
        wait("kvpq", wtmp)
        for r in wtmp: R.rel(r)
    stamp()
    KL = [R.alloc(4, 4) for _ in range(14)]
    for m in range(14):
        A(f"s_mov_b32 s29, {4096*m}")
        A(f"buffer_load_dwordx4 {v(KL[m],4)}, {v(t1)}, s[44:47], s29 offen {sc2}")
        V.issue(("KL", m))
    def ldpq(h):
        if h % 4 == 0: A(f"s_mov_b32 s39, {768*h}")
        A(f"buffer_load_dwordx4 {v(PQ[h % NPQ],4)}, {v(vPQ)}, s[20:23], s39 offen offset:{768*(h%4)} {sc2}")
        V.issue(("PQ", h))
    A("s_mov_b64 exec, s[62:63]")
    for h in range(16): ldpq(h)
    A("s_mov_b64 exec, -1")
    for m in range(14):
        V.wait([("KL", m)])
        A(f"v_cvt_pk_bf16_f32 {v(KL[m])}, {v(KL[m])}, {v(KL[m]+1)}")
        A(f"v_cvt_pk_bf16_f32 {v(KL[m]+1)}, {v(KL[m]+2)}, {v(KL[m]+3)}")
        if m == 13:
            A(f"v_cmp_gt_u32 vcc, 34, v0")
            A("s_and_saveexec_b64 s[30:31], vcc")
        A(f"ds_write_b64 {v(t2)}, {v(KL[m],2)} offset:{KVZ + 2048*m}")
        L.issue(("kw", m))
        if m == 13: A("s_mov_b64 exec, -1")
    for k in KL: R.rel(k, 4)
    L.all()
    A("s_barrier")
    stamp()
    KF = [[[R.alloc(4, 4) for _ in range(2)] for _ in range(2)] for _ in range(2)]
    D = [[R.alloc(4, 4) for _ in range(2)] for _ in range(2)]
    OF = [[R.alloc(4, 4) for _ in range(5)] for _ in range(2)]
    WF = [R.alloc(4, 4) for _ in range(5)]
    RC = [R.alloc(2, 2) for _ in range(2)]
    ATR = [R.alloc(4, 4) for _ in range(3)]
    vG = R.alloc()
    def rdk(P):
        if P > 15: return
        for ho in range(2):
            o = 105 * ho
            A(f"ds_read2_b64 {v(KF[P&1][ho][0],4)}, {v(vK0)} offset0:{o} offset1:{o+1}"); L.issue(("K", P))
            A(f"ds_read2_b64 {v(KF[P&1][ho][1],4)}, {v(vK1)} offset0:{o} offset1:{o+1}"); L.issue(("K", P))
        A(f"v_add_u32 {v(vK0)}, 1680, {v(vK0)}")
        A(f"v_add_u32 {v(vK1)}, 1680, {v(vK1)}")
    def O_a(P):
        V.wait([("PQ", 2 * P + 1)])
        for ho in range(2):
            p = PQ[(2 * P + ho) % NPQ]
            A(f"v_and_b32 {v(p+2)}, {v(vMask)}, {v(p+2)}")
            A(f"v_and_b32 {v(p+3)}, {v(vMask)}, {v(p+3)}")
        L.wait([("K", P)])
        for ho in range(2):
            p = PQ[(2 * P + ho) % NPQ]
            A(f"v_mfma_f32_16x16x32_bf16 {v(D[ho][0],4)}, {v(KF[P&1][ho][0],4)}, {v(p,4)}, 0")
            A(f"v_mfma_f32_16x16x32_bf16 {v(D[ho][1],4)}, {v(KF[P&1][ho][1],4)}, {v(p,4)}, 0")
        rdk(P + 2)
        if 2 * P + 16 < 32:
            A("s_mov_b64 exec, s[62:63]")
            ldpq(2 * P + 16); ldpq(2 * P + 17)
            A("s_mov_b64 exec, -1")
    def O_b(P, ho):
        d0 = D[ho][0]; d1 = D[ho][1]; rc = RC[ho]
        A(f"v_add_f32 {v(rc)}, s58, {v(d0+3)}")
        A(f"v_rcp_f32 {v(rc)}, {v(rc)}")
        A(f"v_pk_mul_f32 {v(d0,2)}, {v(d0,2)}, {v(rc,2)} op_sel:[0,0] op_sel_hi:[1,0]")
        A(f"v_mul_f32 {v(d0+2)}, {v(d0+2)}, {v(rc)}")
        A(f"v_pk_mul_f32 {v(d1,2)}, {v(d1,2)}, {v(rc,2)} op_sel:[0,0] op_sel_hi:[1,0]")
        hp = P % 4; of = OF[(P // 4) & 1]
        dw = lambda k: of[(5 * hp + k) // 4] + (5 * hp + k) % 4
        if ho == 0:
            A(f"v_cvt_pk_bf16_f32 {v(dw(0))}, {v(D[0][0])}, {v(D[0][0]+1)}")
            A(f"v_cvt_pk_bf16_f32 {v(dw(1))}, {v(D[0][1])}, {v(D[0][1]+1)}")
        else:
            A(f"v_cvt_pk_bf16_f32 {v(dw(2))}, {v(D[0][0]+2)}, {v(D[1][0]+2)}")
            A(f"v_cvt_pk_bf16_f32 {v(dw(3))}, {v(D[1][0])}, {v(D[1][0]+1)}")
            A(f"v_cvt_pk_bf16_f32 {v(dw(4))}, {v(D[1][1])}, {v(D[1][1]+1)}")
    def rdw(G, f, nt):
        o = WGRP * (G % 2) + 32 * nt
        A(f"ds_read_b64_tr_b16 {v(WF[nt],2)}, {v(VW[f][0])} offset:{o}"); L.issue(("Wf", G, f, nt))
        A(f"ds_read_b64_tr_b16 {v(WF[nt]+2,2)}, {v(VW[f][1])} offset:{o}"); L.issue(("Wf", G, f, nt))
    def P_step(G, n):
        f, nt = divmod(n, 5)
        L.wait([("Wf", G, f, nt)])
        A(f"v_mfma_f32_16x16x32_bf16 {v(ACC[nt],4)}, {v(WF[nt],4)}, {v(OF[G&1][f],4)}, {v(ACC[nt],4)}")
        if f < 4: rdw(G, f + 1, nt)
    rdk(0); rdk(1)
    for P in range(4):
        O_a(P); O_b(P, 0); O_b(P, 1)
    for G in range(4):
        if G >= 1:
            V.wait([("W", G)])
            A("s_barrier")
        for nt in range(5): rdw(G, 0, nt)
        wq = [(G + 1, j) for j in range(7)] if 1 <= G <= 2 else []
        if G == 3:
            if wait is not None:
                wait("at", [D[1][1], D[1][1]+1, D[1][1]+2, D[1][1]+3, D[1][0], D[1][0]+1])
            for j in range(3):
                if j == 2: A("s_mov_b64 exec, 0xffffffff")
                A(f"global_load_dwordx4 {v(ATR[j],4)}, {v(vATg)}, s[50:51] {sc}"); V.issue(("AT", j))
                if j < 2: A(f"v_add_u32 {v(vATg)}, {8*4096}, {v(vATg)}")
            A("s_mov_b64 exec, -1")
            A(f"global_load_dword {v(vG)}, {v(vGa)}, s[50:51] {sc}"); V.issue(("AT", 3))
        n = 0
        for hp in range(4):
            P = 4 * (G + 1) + hp
            if G < 3: O_a(P)
            for _ in range(3):
                P_step(G, n); n += 1
                if wq: issueW(*wq.pop(0))
            if G < 3: O_b(P, 0)
            for _ in range(2):
                P_step(G, n); n += 1
                if wq: issueW(*wq.pop(0))
            if G < 3: O_b(P, 1)
            for _ in range(1 if hp < 3 else 2): P_step(G, n); n += 1
        assert n == 25 and not wq
    stamp()
    V.all()
    for j in range(3):
        if j == 2: A("s_mov_b64 exec, 0xffffffff")
        A(f"ds_write_b128 {v(vATW)}, {v(ATR[j],4)} offset:{1024*j}")
    A("s_mov_b64 exec, -1")
    G2 = RC[0]; M2 = RC[1]
    A(f"v_mov_b32 {v(G2)}, {v(vG)}")
    A(f"v_sub_f32 {v(M2)}, 1.0, {v(vG)}")
    A(f"v_cvt_pk_bf16_f32 {v(M2)}, {v(M2)}, {v(M2)}")
    A(f"v_lshlrev_b32 {v(M2)}, 16, {v(M2)}")
    for nt in range(5):
        a = ACC[nt]
        A(f"v_pk_mul_f32 {v(a,2)}, {v(a,2)}, {v(M2,2)} op_sel:[0,0] op_sel_hi:[1,0]")
        A(f"v_pk_mul_f32 {v(a+2,2)}, {v(a+2,2)}, {v(M2,2)} op_sel:[0,0] op_sel_hi:[1,0]")
    A("s_waitcnt lgkmcnt(0)")
    A("s_barrier")
    AT = [WF[k] for k in range(5)]
    for nt in range(5):
        A(f"ds_read_b64_tr_b16 {v(AT[nt],2)}, {v(vATr)} offset:{2048*nt}")
    OUT = [OF[0][0], OF[0][1], OF[0][2]]
    for nt in range(5):
        a = ACC[nt]; at = AT[nt]; X = D[nt & 1][0]
        o = OUT[nt // 2] + 2 * (nt % 2)
        A(f"s_waitcnt lgkmcnt({4-nt})")
        A(f"v_lshlrev_b32 {v(X)}, 16, {v(at)}")
        A(f"v_and_b32 {v(X+1)}, 0xffff0000, {v(at)}")
        A(f"v_lshlrev_b32 {v(X+2)}, 16, {v(at+1)}")
        A(f"v_and_b32 {v(X+3)}, 0xffff0000, {v(at+1)}")
        A(f"v_pk_fma_f32 {v(a,2)}, {v(X,2)}, {v(G2,2)}, {v(a,2)} op_sel:[0,0,0] op_sel_hi:[1,0,1]")
        A(f"v_pk_fma_f32 {v(a+2,2)}, {v(X+2,2)}, {v(G2,2)}, {v(a+2,2)} op_sel:[0,0,0] op_sel_hi:[1,0,1]")
        A(f"v_cvt_pk_bf16_f32 {v(o)}, {v(a)}, {v(a+1)}")
        A(f"v_cvt_pk_bf16_f32 {v(o+1)}, {v(a+2)}, {v(a+3)}")
        if nt % 2 == 1:
            ob = OUT[nt // 2]
            A(f"v_permlane16_swap_b32 {v(ob)}, {v(ob+2)}")
            A(f"v_permlane16_swap_b32 {v(ob+1)}, {v(ob+3)}")
            A(f"global_store_dwordx4 {v(vO16)}, {v(ob,4)}, s[16:17] offset:{64*(nt//2)}")
        elif nt == 4:
            A(f"global_store_dwordx2 {v(vO8)}, {v(o,2)}, s[16:17] offset:128")
    if stamp_task is not None:
        stamp()
        A("s_waitcnt vmcnt(0)")
        stamp()
        A(f"s_lshl_b32 s36, {stamp_task}, 3")
        A(f"s_add_u32 s36, s36, s28")
        A(f"s_lshl_b32 s36, s36, 6")
        A(f"s_add_u32 s36, s36, {WS_STAMP + 0x100000}")
        A(f"v_mov_b32 v1, s36")
        for k in stamps:
            A(f"v_mov_b32 v2, s{64+2*k}")
            A(f"global_store_dword v1, v2, s[50:51] offset:{4*k}")
    return R.hi, FINAL_LDS
```

```python
import numpy as np, os
from asmlib import *
TIMER = os.environ.get('TIMER', 's_memtime')
from s4 import Regs, v, f2u
from s4b import WS_AT, WS_G, WS_KV, WS_STAMP
from final import WS_PQF, PAIR
from final2 import Track

WL = 0
WGRP = 25600
FINAL_LDS = WL + 4 * WGRP
KVO = 20480
ATB = 102400
NAG = 100

def a_(i, n=1):
    return f"a{i}" if n == 1 else f"a[{i}:{i+n-1}]"

def gen_wdma(A, cb, T, last="s91"):
    lane, t1, t2, t3 = T[0:4]
    VD = T[4:9]
    A("s_load_dwordx2 s[12:13], s[0:1], 88")
    A(f"v_mbcnt_lo_u32_b32 {v(lane)}, -1, 0")
    A(f"v_mbcnt_hi_u32_b32 {v(lane)}, -1, {v(lane)}")
    A(f"s_mul_i32 s30, {cb}, 160")
    for j in range(5):
        A(f"v_add_u32 {v(t1)}, {64*j}, {v(lane)}")
        A(f"v_mul_u32_u24 {v(t2)}, 6554, {v(t1)}")
        A(f"v_lshrrev_b32 {v(t2)}, 16, {v(t2)}")
        A(f"v_mul_u32_u24 {v(t3)}, 10, {v(t2)}")
        A(f"v_sub_u32 {v(t1)}, {v(t1)}, {v(t3)}")
        A(f"v_mul_u32_u24 {v(t2)}, 1280, {v(t2)}")
        A(f"v_lshl_add_u32 {v(t2)}, {v(t1)}, 4, {v(t2)}")
        A(f"v_add_u32 {v(VD[j])}, s30, {v(t2)}")
    A(f"s_mul_i32 s31, s28, {WGRP}")
    A(f"s_add_u32 s31, s31, {WL}")
    A(f"s_mul_i32 s30, s28, {160*1280}")
    A(f"s_cmp_eq_u32 {last}, 1")
    A("s_cselect_b32 s14, 819200, 0")
    A("s_mov_b32 s15, 0x20000")
    A("s_waitcnt lgkmcnt(0)")
    def one(j):
        A(f"s_add_u32 m0, s31, {1024*j}")
        A(f"buffer_load_dwordx4 {v(VD[j%5])}, s[12:15], s30 offen lds")
        if j % 5 == 4: A(f"s_add_u32 s30, s30, {32*1280}")
    return [lambda j=j: one(j) for j in range(25)]

def gen_final(A, rb="s3", cb="s4", sc="", wait=None, stamp_task=None):
    stamps = []
    def stamp():
        if stamp_task is None: return
        k = len(stamps); stamps.append(k)
        A(f"{TIMER} s[{64+2*k}:{65+2*k}]")
        A("s_waitcnt lgkmcnt(0)"); L.done = len(L.log)
    R = Regs(1, 256)
    L = Track(A, "lgkmcnt", 15); V = Track(A, "vmcnt", 63)
    A("s_load_dwordx2 s[16:17], s[0:1], 104")
    stamp()
    lane = R.alloc(); vi = R.alloc(); vq = R.alloc(); t1 = R.alloc(); t2 = R.alloc(); t3 = R.alloc()
    A(f"v_and_b32 {v(lane)}, 63, v0")
    A(f"v_and_b32 {v(vi)}, 15, {v(lane)}")
    A(f"v_lshrrev_b32 {v(vq)}, 4, {v(lane)}")
    A(f"s_mul_i32 s35, s28, {WGRP}")
    A(f"s_add_u32 s35, s35, {WL}")
    vr = R.alloc(); vc8 = R.alloc(); VWt = [R.alloc() for _ in range(2)]
    A(f"v_lshrrev_b32 {v(vr)}, 2, {v(vi)}")
    A(f"v_and_b32 {v(vc8)}, 3, {v(vi)}")
    A(f"v_lshl_add_u32 {v(vc8)}, {v(vc8)}, 3, s35")
    A(f"v_lshlrev_b32 {v(t3)}, 3, {v(vr)}")
    A("s_waitcnt vmcnt(0)")
    WR = [[4 * (5 * f + nt) for nt in range(5)] for f in range(5)]
    for f in range(5):
        for hf in range(2):
            bases = 0; mults = 0
            for rp in range(4):
                idx = 8 * f + 4 * hf + rp
                ho, r = PAIR[idx % 10]
                head = 2 * (idx // 10) + ho
                base = 20 * head + (r if r < 3 else 12 + r - 3)
                mult = 3 if r < 3 else 2
                bases |= base << (8 * rp); mults |= mult << (8 * rp)
            A(f"s_mov_b32 s29, {bases}")
            A(f"s_mov_b32 s30, {mults}")
            A(f"v_bfe_u32 {v(t1)}, s29, {v(t3)}, 8")
            A(f"v_bfe_u32 {v(t2)}, s30, {v(t3)}, 8")
            A(f"v_mad_u32_u24 {v(t1)}, {v(t2)}, {v(vq)}, {v(t1)}")
            A(f"v_mul_u32_u24 {v(t1)}, 160, {v(t1)}")
            A(f"v_add_u32 {v(VWt[hf])}, {v(t1)}, {v(vc8)}")
            for nt in range(5):
                A(f"ds_read_b64_tr_b16 {a_(WR[f][nt] + 2*hf, 2)}, {v(VWt[hf])} offset:{32*nt}")
    R.rel(vr); R.rel(vc8); R.rel(VWt[0]); R.rel(VWt[1])
    vK0 = R.alloc(); vK1 = R.alloc()
    A(f"s_add_u32 s36, s35, 0")
    A(f"v_lshrrev_b32 {v(t1)}, 2, {v(vi)}")
    A(f"v_and_b32 {v(t2)}, 3, {v(vi)}")
    A(f"v_min_u32 {v(t3)}, 2, {v(vq)}")
    A(f"v_lshl_add_u32 {v(t3)}, {v(t3)}, 4, s36")
    A(f"v_mad_u32_u24 {v(vK0)}, {v(t1)}, 3, {v(t2)}")
    A(f"v_cmp_eq_u32 vcc, 3, {v(t2)}")
    A(f"v_cndmask_b32 {v(vK0)}, {v(vK0)}, 20, vcc")
    A(f"v_mad_u32_u24 {v(vK0)}, {v(vK0)}, 40, {v(t3)}")
    A(f"v_lshl_add_u32 {v(vK1)}, {v(t1)}, 1, {v(t2)}")
    A(f"v_add_u32 {v(vK1)}, 12, {v(vK1)}")
    A(f"v_cmp_lt_u32 vcc, 1, {v(t2)}")
    A(f"v_cndmask_b32 {v(vK1)}, {v(vK1)}, 20, vcc")
    A(f"v_mad_u32_u24 {v(vK1)}, {v(vK1)}, 40, {v(t3)}")
    vPQ = R.alloc(); vMask = R.alloc()
    A(f"v_lshlrev_b32 {v(vPQ)}, 4, {v(lane)}")
    A(f"v_cmp_gt_u32 vcc, 2, {v(vq)}")
    A(f"v_cndmask_b32 {v(vMask)}, 0, -1, vcc")
    A(f"s_mul_i32 s29, {rb}, {4*32*768}")
    A(f"s_mul_i32 s30, s28, {8*768}")
    A(f"s_add_u32 s29, s29, s30")
    A(f"s_add_u32 s29, s29, {WS_PQF}")
    A(f"s_add_u32 s20, s50, s29")
    A(f"s_addc_u32 s21, s51, 0")
    A(f"s_mov_b32 s22, {4*32*768}")
    A(f"s_mov_b32 s23, 0x20000")
    for k in range(4):
        A(f"s_add_u32 s29, s28, {k+1}")
        A(f"s_and_b32 s29, s29, 3")
        A(f"s_mul_i32 s{40+k}, s29, {32*768}")
        A(f"s_add_u32 s{24+k}, s{40+k}, 3072")
    NPQ = 16
    PQ = [R.alloc(4, 4) for _ in range(NPQ)]
    for p in PQ:
        for k in range(4): A(f"v_mov_b32 {v(p+k)}, 0")
    vATr = R.alloc(); vO8 = R.alloc(); vO16 = R.alloc(); vATg = R.alloc(); vATW = R.alloc(); vGa = R.alloc()
    vPW = R.alloc(); vPR = R.alloc()
    A(f"v_lshrrev_b32 {v(t1)}, 2, {v(vi)}")
    A(f"v_lshl_add_u32 {v(t1)}, {v(vq)}, 2, {v(t1)}")
    A(f"v_lshlrev_b32 {v(t1)}, 7, {v(t1)}")
    A(f"v_and_b32 {v(t2)}, 3, {v(vi)}")
    A(f"v_lshl_add_u32 {v(t1)}, {v(t2)}, 3, {v(t1)}")
    A(f"s_lshl_b32 s29, s28, 5")
    A(f"s_add_u32 s29, s29, {ATB}")
    A(f"v_add_u32 {v(vATr)}, s29, {v(t1)}")
    A(f"s_lshl_b32 s29, {rb}, 6")
    A(f"s_lshl_b32 s30, s28, 4")
    A(f"s_add_u32 s29, s29, s30")
    A(f"v_add_u32 {v(t2)}, s29, {v(vi)}")
    A(f"v_lshlrev_b32 {v(vGa)}, 2, {v(t2)}")
    A(f"v_add_u32 {v(vGa)}, {WS_G}, {v(vGa)}")
    A(f"v_mul_u32_u24 {v(t2)}, 1280, {v(t2)}")
    A(f"s_mul_i32 s29, {cb}, 160")
    A(f"v_lshl_add_u32 {v(vO8)}, {v(vq)}, 3, {v(t2)}")
    A(f"v_add_u32 {v(vO8)}, s29, {v(vO8)}")
    A(f"v_and_b32 {v(t1)}, 1, {v(vq)}")
    A(f"v_lshl_add_u32 {v(t2)}, {v(t1)}, 5, {v(t2)}")
    A(f"v_lshrrev_b32 {v(t1)}, 1, {v(vq)}")
    A(f"v_lshl_add_u32 {v(t2)}, {v(t1)}, 4, {v(t2)}")
    A(f"v_add_u32 {v(vO16)}, s29, {v(t2)}")
    A(f"s_mul_i32 s29, s28, 160")
    A(f"v_add_u32 {v(t1)}, s29, {v(lane)}")
    A(f"v_lshrrev_b32 {v(t2)}, 3, {v(t1)}")
    A(f"v_and_b32 {v(t1)}, 7, {v(t1)}")
    A(f"v_lshlrev_b32 {v(t2)}, 12, {v(t2)}")
    A(f"v_lshl_add_u32 {v(t1)}, {v(t1)}, 4, {v(t2)}")
    A(f"s_mul_i32 s29, {cb}, {80*4096}")
    A(f"s_lshl_b32 s30, {rb}, 7")
    A(f"s_add_u32 s29, s29, s30")
    A(f"s_add_u32 s29, s29, {WS_AT}")
    A(f"v_add_u32 {v(vATg)}, s29, {v(t1)}")
    A(f"s_mul_i32 s30, s28, 2560")
    A(f"s_add_u32 s30, s30, {ATB}")
    A(f"v_lshl_add_u32 {v(vATW)}, {v(lane)}, 4, s30")
    A(f"v_lshl_add_u32 {v(vPW)}, {v(lane)}, 4, s35")
    A(f"v_lshlrev_b32 {v(vPR)}, 4, {v(lane)}")
    A(f"s_mul_i32 s29, s28, {8*420*4}")
    A(f"s_add_u32 s29, s29, {WS_KV}")
    A(f"s_add_u32 s44, s50, s29")
    A(f"s_addc_u32 s45, s51, 0")
    A(f"s_mov_b32 s46, {8*420*4}")
    A(f"s_mov_b32 s47, 0x20000")
    A(f"s_mov_b32 s58, {f2u(1e-6)}")
    A("s_mov_b32 s62, -1")
    A("s_mov_b32 s63, 0xffff")
    A(f"v_lshl_add_u32 {v(t2)}, {v(lane)}, 3, s36")
    A("s_waitcnt lgkmcnt(0)")
    if wait is not None:
        wtmp = [R.alloc() for _ in range(6)]
        wait("kvpq", wtmp)
        for r in wtmp: R.rel(r)
    stamp()
    KL = [R.alloc(4, 4) for _ in range(14)]
    for m in range(14):
        if m % 4 == 0: A(f"s_mov_b32 s29, {1024*m}")
        A(f"buffer_load_dwordx4 {v(KL[m],4)}, {v(vPQ)}, s[44:47], s29 offen offset:{1024*(m%4)}")
        V.issue(("KL", m))
    def ldpq(n):
        k, h = divmod(n, 8)
        so = f"s{40+k}" if h < 4 else f"s{24+k}"
        A(f"buffer_load_dwordx4 {v(PQ[n % NPQ],4)}, {v(vPQ)}, s[20:23], {so} offen offset:{768*(h%4)}")
        V.issue(("PQ", n))
    A("s_mov_b64 exec, s[62:63]")
    for n in range(16): ldpq(n)
    A("s_mov_b64 exec, -1")
    for m in range(14):
        V.wait([("KL", m)])
        A(f"v_cvt_pk_bf16_f32 {v(KL[m])}, {v(KL[m])}, {v(KL[m]+1)}")
        A(f"v_cvt_pk_bf16_f32 {v(KL[m]+1)}, {v(KL[m]+2)}, {v(KL[m]+3)}")
        A(f"ds_write_b64 {v(t2)}, {v(KL[m],2)} offset:{512*m}")
        L.issue(("kw", m))
    for k in KL: R.rel(k, 4)
    KF = [[R.alloc(4, 4) for _ in range(2)] for _ in range(8)]
    for h in range(8):
        o = 105 * (h & 1)
        A(f"ds_read2_b64 {v(KF[h][0],4)}, {v(vK0)} offset0:{o} offset1:{o+1}"); L.issue(("K", h))
        A(f"ds_read2_b64 {v(KF[h][1],4)}, {v(vK1)} offset0:{o} offset1:{o+1}"); L.issue(("K", h))
        if h & 1 and h < 7:
            A(f"v_add_u32 {v(vK0)}, 1680, {v(vK0)}")
            A(f"v_add_u32 {v(vK1)}, 1680, {v(vK1)}")
    stamp()
    D = [[R.alloc(4, 4) for _ in range(2)] for _ in range(2)]
    OF = [[R.alloc(4, 4) for _ in range(5)] for _ in range(2)]
    ACC = [R.alloc(4, 4) for _ in range(5)]
    RC = [R.alloc(2, 2) for _ in range(2)]
    vG = R.alloc(); GP = R.alloc(4, 4)
    def O_a(P):
        k, hp = divmod(P, 4)
        V.wait([("PQ", 2 * P + 1)])
        for ho in range(2):
            p = PQ[(2 * P + ho) % NPQ]
            A(f"v_and_b32 {v(p+2)}, {v(vMask)}, {v(p+2)}")
            A(f"v_and_b32 {v(p+3)}, {v(vMask)}, {v(p+3)}")
        L.wait([("K", 2 * hp + 1)])
        for ho in range(2):
            p = PQ[(2 * P + ho) % NPQ]
            A(f"v_mfma_f32_16x16x32_bf16 {v(D[ho][0],4)}, {v(KF[2*hp+ho][0],4)}, {v(p,4)}, 0")
            A(f"v_mfma_f32_16x16x32_bf16 {v(D[ho][1],4)}, {v(KF[2*hp+ho][1],4)}, {v(p,4)}, 0")
        if 2 * P + 16 < 32:
            A("s_mov_b64 exec, s[62:63]")
            ldpq(2 * P + 16); ldpq(2 * P + 17)
            A("s_mov_b64 exec, -1")
    def O_b(P, ho):
        d0 = D[ho][0]; d1 = D[ho][1]; rc = RC[ho]
        A(f"v_add_f32 {v(rc)}, s58, {v(d0+3)}")
        A(f"v_rcp_f32 {v(rc)}, {v(rc)}")
        A(f"v_pk_mul_f32 {v(d0,2)}, {v(d0,2)}, {v(rc,2)} op_sel:[0,0] op_sel_hi:[1,0]")
        A(f"v_mul_f32 {v(d0+2)}, {v(d0+2)}, {v(rc)}")
        A(f"v_pk_mul_f32 {v(d1,2)}, {v(d1,2)}, {v(rc,2)} op_sel:[0,0] op_sel_hi:[1,0]")
        hp = P % 4; of = OF[(P // 4) & 1]
        dw = lambda k: of[(5 * hp + k) // 4] + (5 * hp + k) % 4
        if ho == 0:
            A(f"v_cvt_pk_bf16_f32 {v(dw(0))}, {v(D[0][0])}, {v(D[0][0]+1)}")
            A(f"v_cvt_pk_bf16_f32 {v(dw(1))}, {v(D[0][1])}, {v(D[0][1]+1)}")
        else:
            A(f"v_cvt_pk_bf16_f32 {v(dw(2))}, {v(D[0][0]+2)}, {v(D[1][0]+2)}")
            A(f"v_cvt_pk_bf16_f32 {v(dw(3))}, {v(D[1][0])}, {v(D[1][0]+1)}")
            A(f"v_cvt_pk_bf16_f32 {v(dw(4))}, {v(D[1][1])}, {v(D[1][1]+1)}")
    def P_step(k, n):
        nt, f = divmod(n, 5)
        c = v(ACC[nt], 4) if f else "0"
        A(f"v_mfma_f32_16x16x32_bf16 {v(ACC[nt],4)}, {a_(WR[f][nt],4)}, {v(OF[k&1][f],4)}, {c}")
        if k < 3 and f == 2 and nt >= 1:
            A(f"ds_write_b128 {v(vPW)}, {v(ACC[nt-1],4)} offset:{8192 + 5120*k + 1024*(nt-1)}"); L.issue(("pw", k, nt - 1))
    for P in range(4):
        O_a(P); O_b(P, 0); O_b(P, 1)
    ATR = [KF[0][0], KF[0][1], KF[1][0]]
    for k in range(4):
        if k == 3:
            if wait is not None:
                wait("at", [D[1][1], D[1][1]+1, D[1][1]+2, D[1][1]+3, D[1][0], D[1][0]+1])
            for j in range(3):
                if j == 2: A("s_mov_b64 exec, 0xffffffff")
                A(f"global_load_dwordx4 {v(ATR[j],4)}, {v(vATg)}, s[50:51] {sc}"); V.issue(("AT", j))
                if j < 2: A(f"v_add_u32 {v(vATg)}, {8*4096}, {v(vATg)}")
            A("s_mov_b64 exec, -1")
            for kk in range(4):
                A(f"global_load_dword {v(GP+kk)}, {v(vGa)}, s[50:51] {sc}"); V.issue(("AT", 3 + kk))
                if kk < 3: A(f"v_add_u32 {v(vGa)}, 8192, {v(vGa)}")
        n = 0
        for hp in range(4):
            P = 4 * (k + 1) + hp
            if k < 3: O_a(P)
            for _ in range(3): P_step(k, n); n += 1
            if k < 3: O_b(P, 0)
            for _ in range(2): P_step(k, n); n += 1
            if k < 3: O_b(P, 1)
            for _ in range(1 if hp < 3 else 2): P_step(k, n); n += 1
        if k < 3:
            A(f"ds_write_b128 {v(vPW)}, {v(ACC[4],4)} offset:{8192 + 5120*k + 4096}"); L.issue(("pw", k, 4))
            L.wait([("pw", k, 4)])
    stamp()
    V.all()
    for j in range(3):
        if j == 2: A("s_mov_b64 exec, 0xffffffff")
        A(f"ds_write_b128 {v(vATW)}, {v(ATR[j],4)} offset:{1024*j}")
    A("s_mov_b64 exec, -1")
    G2 = RC[0]; M2 = RC[1]
    A(f"v_add_f32 {v(GP)}, {v(GP)}, {v(GP+1)}")
    A(f"v_add_f32 {v(GP+2)}, {v(GP+2)}, {v(GP+3)}")
    A(f"v_add_f32 {v(vG)}, {v(GP)}, {v(GP+2)}")
    A(f"v_cvt_pk_bf16_f32 {v(vG)}, {v(vG)}, {v(vG)}")
    A(f"v_lshlrev_b32 {v(vG)}, 16, {v(vG)}")
    A(f"v_mul_f32 {v(vG)}, {f2u(-1.4426950408889634)}, {v(vG)}")
    A(f"v_exp_f32 {v(vG)}, {v(vG)}")
    A(f"v_add_f32 {v(vG)}, 1.0, {v(vG)}")
    A(f"v_rcp_f32 {v(vG)}, {v(vG)}")
    A(f"v_cvt_pk_bf16_f32 {v(vG)}, {v(vG)}, {v(vG)}")
    A(f"v_lshlrev_b32 {v(vG)}, 16, {v(vG)}")
    A(f"v_mov_b32 {v(G2)}, {v(vG)}")
    A(f"v_sub_f32 {v(M2)}, 1.0, {v(vG)}")
    A(f"v_cvt_pk_bf16_f32 {v(M2)}, {v(M2)}, {v(M2)}")
    A(f"v_lshlrev_b32 {v(M2)}, 16, {v(M2)}")
    VR = [t1, t2, t3]
    for o in range(1, 4):
        A(f"s_add_u32 s29, s28, {o}")
        A(f"s_and_b32 s29, s29, 3")
        A(f"s_mul_i32 s29, s29, {WGRP}")
        A(f"s_add_u32 s29, s29, {WL + 8192 + 5120*(3-o)}")
        A(f"v_add_u32 {v(VR[o-1])}, s29, {v(vPR)}")
    A("s_waitcnt lgkmcnt(0)")
    A("s_barrier")
    XP = [[PQ[5 * o + nt] for nt in range(5)] for o in range(3)]
    AT = [KF[2 + nt][0] for nt in range(5)]
    L.log = []; L.done = 0
    for nt in range(5):
        for o in range(3):
            A(f"ds_read_b128 {v(XP[o][nt],4)}, {v(VR[o])} offset:{1024*nt}"); L.issue(("x", nt))
        A(f"ds_read_b64_tr_b16 {v(AT[nt],2)}, {v(vATr)} offset:{2048*nt}"); L.issue(("x", nt))
    OUT = [OF[0][0], OF[0][1], OF[0][2]]
    for nt in range(5):
        a = ACC[nt]; at = AT[nt]; X = D[nt & 1][0]
        o = OUT[nt // 2] + 2 * (nt % 2)
        L.wait([("x", nt)])
        for j in range(2):
            A(f"v_pk_add_f32 {v(a+2*j,2)}, {v(a+2*j,2)}, {v(XP[0][nt]+2*j,2)}")
            A(f"v_pk_add_f32 {v(XP[1][nt]+2*j,2)}, {v(XP[1][nt]+2*j,2)}, {v(XP[2][nt]+2*j,2)}")
            A(f"v_pk_add_f32 {v(a+2*j,2)}, {v(a+2*j,2)}, {v(XP[1][nt]+2*j,2)}")
            A(f"v_pk_mul_f32 {v(a+2*j,2)}, {v(a+2*j,2)}, {v(M2,2)} op_sel:[0,0] op_sel_hi:[1,0]")
        A(f"v_lshlrev_b32 {v(X)}, 16, {v(at)}")
        A(f"v_and_b32 {v(X+1)}, 0xffff0000, {v(at)}")
        A(f"v_lshlrev_b32 {v(X+2)}, 16, {v(at+1)}")
        A(f"v_and_b32 {v(X+3)}, 0xffff0000, {v(at+1)}")
        A(f"v_pk_fma_f32 {v(a,2)}, {v(X,2)}, {v(G2,2)}, {v(a,2)} op_sel:[0,0,0] op_sel_hi:[1,0,1]")
        A(f"v_pk_fma_f32 {v(a+2,2)}, {v(X+2,2)}, {v(G2,2)}, {v(a+2,2)} op_sel:[0,0,0] op_sel_hi:[1,0,1]")
        A(f"v_cvt_pk_bf16_f32 {v(o)}, {v(a)}, {v(a+1)}")
        A(f"v_cvt_pk_bf16_f32 {v(o+1)}, {v(a+2)}, {v(a+3)}")
        if nt % 2 == 1:
            ob = OUT[nt // 2]
            A(f"v_permlane16_swap_b32 {v(ob)}, {v(ob+2)}")
            A(f"v_permlane16_swap_b32 {v(ob+1)}, {v(ob+3)}")
            A(f"global_store_dwordx4 {v(vO16)}, {v(ob,4)}, s[16:17] offset:{64*(nt//2)}")
        elif nt == 4:
            A(f"global_store_dwordx2 {v(vO8)}, {v(o,2)}, s[16:17] offset:128")
    if stamp_task is not None:
        stamp()
        A("s_waitcnt vmcnt(0)")
        stamp()
        A(f"s_lshl_b32 s36, {stamp_task}, 3")
        A(f"s_add_u32 s36, s36, s28")
        A(f"s_lshl_b32 s36, s36, 6")
        A(f"s_add_u32 s36, s36, {WS_STAMP + 0x100000}")
        A(f"v_mov_b32 v1, s36")
        for k in stamps:
            A(f"v_mov_b32 v2, s{64+2*k}")
            A(f"global_store_dword v1, v2, s[50:51] offset:{4*k}")
    return R.hi, FINAL_LDS
```

```python
import numpy as np, os
from asmlib import *
TIMER = os.environ.get('TIMER', 's_memtime')
from s4 import Regs, v, f2u
from s4b import WS_KV, WS_STAMP
from final import WS_PQF
from gemm2 import phi_pair

SLOT = 18432
BOFF = 8192
NSLOT = 4
GEMM_LDS = SLOT * NSLOT
ABL = set(os.environ.get('GABL', '').split(','))
KVPOS = [0, 1, 2, 5, 6, 3, 4, 7, 8, 9]

def gen_gemm(A, rb="s3", ct="s4", sc="", stamp_task=None, pre=None, post=None, mid=None, post2=None):
    stamps = []
    def stamp():
        if stamp_task is None: return
        k = len(stamps); stamps.append(k)
        A(f"{TIMER} s[{64+2*k}:{65+2*k}]")
    A(f"""
    s_load_dwordx2 s[8:9], s[0:1], 0
    s_load_dwordx2 s[12:13], s[0:1], 80
    s_load_dwordx4 s[48:51], s[0:1], 112
    """)
    stamp()
    ACC = [[4 * (4 * nt + rt) for rt in range(4)] for nt in range(5)]
    AF = [[80 + 36 * p + 4 * rt for rt in range(4)] for p in range(2)]
    BF = [[96 + 36 * p + 4 * nt for nt in range(5)] for p in range(2)]
    vDA = [152, 153]; vDB = [154, 155, 156]; vBe, vBo, vAr = 157, 158, 159
    NV = 160
    lane = 11; t1 = 12; t2 = 13; t3 = 14; vi = 15; vq = 16; t4 = 17; t5 = 18
    A(f"v_and_b32 {v(lane)}, 63, v0")
    A(f"v_lshrrev_b32 {v(t1)}, 6, v0")
    A(f"v_readfirstlane_b32 s28, {v(t1)}")
    A(f"v_and_b32 {v(vi)}, 15, {v(lane)}")
    A(f"v_lshrrev_b32 {v(vq)}, 4, {v(lane)}")
    A(f"s_lshr_b32 s53, s28, 1")
    A(f"s_and_b32 s54, s28, 1")
    A(f"s_mul_i32 s30, {ct}, 160")
    A(f"s_add_u32 s31, s30, {2560 - 160}")
    A(f"s_add_u32 s30, s30, 1280")
    A(f"s_sub_u32 s32, {ct}, 8")
    A(f"s_mul_i32 s32, s32, 320")
    A(f"s_cmp_ge_u32 {ct}, 8")
    A(f"s_cselect_b32 s30, s32, s30")
    A(f"s_cselect_b32 s31, s32, s31")
    kvtab = sum(t << (4 * p) for p, t in enumerate(KVPOS))
    idtab = sum(p << (4 * p) for p in range(10))
    A(f"s_mov_b32 s44, {kvtab & 0xffffffff}")
    A(f"s_mov_b32 s45, {kvtab >> 32}")
    A(f"s_mov_b32 s46, {idtab & 0xffffffff}")
    A(f"s_cselect_b32 s44, s46, s44")
    A(f"s_lshl_b32 s33, {rb}, 7")
    A("s_mov_b32 s47, 0x78")
    A(f"v_lshrrev_b32 {v(t1)}, 2, {v(lane)}")
    A(f"v_lshrrev_b32 {v(t2)}, 4, {v(lane)}")
    A(f"v_lshlrev_b32 {v(t2)}, 1, {v(t2)}")
    A(f"v_lshrrev_b32 {v(t2)}, {v(t2)}, s47")
    A(f"v_xor_b32 {v(t2)}, {v(t2)}, {v(lane)}")
    A(f"v_and_b32 {v(t2)}, 3, {v(t2)}")
    A(f"s_lshl_b32 s34, s28, 5")
    A(f"s_add_u32 s34, s34, s33")
    A(f"v_add_u32 {v(t1)}, s34, {v(t1)}")
    A(f"v_mul_u32_u24 {v(t1)}, 1280, {v(t1)}")
    A(f"v_lshl_add_u32 {v(vDA[0])}, {v(t2)}, 4, {v(t1)}")
    A(f"v_add_u32 {v(vDA[1])}, 20480, {v(vDA[0])}")
    A(f"v_lshrrev_b32 {v(t2)}, 2, {v(vi)}")
    A(f"v_lshlrev_b32 {v(t2)}, 1, {v(t2)}")
    A(f"v_lshrrev_b32 {v(t2)}, {v(t2)}, s47")
    A(f"v_xor_b32 {v(t2)}, {v(t2)}, {v(vq)}")
    A(f"v_and_b32 {v(t2)}, 3, {v(t2)}")
    A(f"v_lshlrev_b32 {v(t1)}, 6, {v(vi)}")
    A(f"v_lshl_add_u32 {v(t1)}, {v(t2)}, 4, {v(t1)}")
    A(f"s_lshl_b32 s34, s53, 12")
    A(f"v_add_u32 {v(vAr)}, s34, {v(t1)}")
    A(f"s_mul_i32 s34, s28, 160")
    for j in range(3):
        A(f"v_add_u32 {v(t1)}, s34, {v(lane)}")
        if j: A(f"v_add_u32 {v(t1)}, {64*j}, {v(t1)}")
        A(f"v_mul_u32_u24 {v(t2)}, 3277, {v(t1)}")
        A(f"v_lshrrev_b32 {v(t2)}, 16, {v(t2)}")
        A(f"v_mul_u32_u24 {v(t3)}, 20, {v(t2)}")
        A(f"v_sub_u32 {v(t1)}, {v(t1)}, {v(t3)}")
        A(f"v_lshrrev_b32 {v(t3)}, 3, {v(t2)}")
        A(f"v_and_b32 {v(t3)}, 1, {v(t3)}")
        A(f"v_lshrrev_b32 {v(t4)}, 1, {v(t1)}")
        A(f"v_xor_b32 {v(t4)}, {v(t4)}, {v(t3)}")
        A(f"v_lshlrev_b32 {v(t4)}, 2, {v(t4)}")
        A(f"v_lshrrev_b64 {v(20,2)}, {v(t4)}, s[44:45]")
        A(f"v_and_b32 {v(t4)}, 15, {v(20)}")
        A(f"v_and_b32 {v(t1)}, 1, {v(t1)}")
        A(f"v_lshl_add_u32 {v(t1)}, {v(t4)}, 1, {v(t1)}")
        A(f"v_cmp_gt_u32 vcc, 10, {v(t1)}")
        A(f"v_mov_b32 {v(t3)}, s31")
        A(f"v_mov_b32 {v(t4)}, s30")
        A(f"v_cndmask_b32 {v(t3)}, {v(t3)}, {v(t4)}, vcc")
        A(f"v_lshl_add_u32 {v(t3)}, {v(t1)}, 4, {v(t3)}")
        A(f"v_mul_u32_u24 {v(t2)}, 3840, {v(t2)}")
        A(f"v_add_u32 {v(vDB[j])}, {v(t2)}, {v(t3)}")
    A(f"v_lshrrev_b32 {v(t1)}, 2, {v(vi)}")
    A(f"v_lshl_add_u32 {v(t1)}, {v(vq)}, 3, {v(t1)}")
    A(f"v_mul_u32_u24 {v(t1)}, 320, {v(t1)}")
    A(f"v_and_b32 {v(t2)}, 3, {v(vi)}")
    A(f"v_lshl_add_u32 {v(t1)}, {v(t2)}, 3, {v(t1)}")
    A(f"s_mul_i32 s34, s54, 160")
    A(f"v_add_u32 {v(t1)}, s34, {v(t1)}")
    A(f"v_and_b32 {v(t2)}, 1, {v(vq)}")
    A(f"v_lshlrev_b32 {v(t2)}, 5, {v(t2)}")
    A(f"v_sub_u32 {v(t3)}, 0, {v(t2)}")
    A("s_cmp_eq_u32 s54, 0")
    A("s_cselect_b64 vcc, -1, 0")
    A(f"v_cndmask_b32 {v(t4)}, {v(t3)}, {v(t2)}, vcc")
    A(f"v_add_u32 {v(vBe)}, {v(t1)}, {v(t4)}")
    A(f"v_sub_u32 {v(vBo)}, {v(t1)}, {v(t4)}")
    A(f"s_lshl_b32 s35, s28, 11")
    A(f"s_mul_i32 s36, s28, 2560")
    A(f"s_add_u32 s36, s36, {BOFF}")
    A("s_waitcnt lgkmcnt(0)")
    A(f"""
    s_mov_b32 s10, 2621440
    s_mov_b32 s11, 0x20000
    s_mov_b32 s14, 2457600
    s_mov_b32 s15, 0x20000
    s_mov_b32 s37, 0
    s_mov_b32 s38, 0
    """)
    def dma(slot, k):
        if k < 2:
            if "A" in ABL: return
            A(f"s_add_u32 m0, s35, {slot*SLOT + 1024*k}")
            A(f"buffer_load_dwordx4 {v(vDA[k])}, s[8:11], s37 offen lds")
            if k == 1: A("s_add_u32 s37, s37, 64")
        else:
            if "B" in ABL: return
            j = k - 2
            A(f"s_add_u32 m0, s36, {slot*SLOT + 1024*j}")
            if j == 2: A("s_mov_b64 exec, 0xffffffff")
            A(f"buffer_load_dwordx4 {v(vDB[j])}, s[12:15], s38 offen lds")
            if j == 2:
                A("s_mov_b64 exec, -1")
                A(f"s_add_u32 s38, s38, {32*3840}")
    def rd(par, slot, k):
        if "rd" in ABL: return
        if k < 4:
            A(f"ds_read_b128 {v(AF[par][k],4)}, {v(vAr)} offset:{slot*SLOT + 1024*k}")
        else:
            nt = k - 4
            base = vBe if nt % 2 == 0 else vBo
            o = slot * SLOT + BOFF + nt * 32
            A(f"ds_read_b64_tr_b16 {v(BF[par][nt],2)}, {v(base)} offset:{o}")
            A(f"ds_read_b64_tr_b16 {v(BF[par][nt]+2,2)}, {v(base)} offset:{o+1280}")
    NV1 = 5 - (2 if "A" in ABL else 0) - (3 if "B" in ABL else 0)
    if pre is not None: pre()
    for s_ in range(3):
        for k in range(5): dma(s_, k)
    if mid is not None: mid()
    for r in range(80):
        A(f"v_mov_b32 {v(r)}, 0")
    if not os.environ.get("NOPRIO"): A("s_setprio 3")
    A("s_mov_b32 s41, 0")
    A(f"s_waitcnt vmcnt({2*NV1})")
    A("s_barrier")
    for k in range(9): rd(0, 0, k)
    stamp()
    lq = A.newlabel("L_g_q")
    A(f"s_cmp_ge_u32 {ct}, 8")
    A(f"s_cbranch_scc1 {lq}")
    fin = A.newlabel("L_g_fin")
    ns0 = len(stamps)
    for variant in ("kv", "q"):
        del stamps[ns0:]
        if variant == "q": A.label(lq)
        loop = A.newlabel("L_g_loop")
        A.label(loop)
        def mf(nt, rt, par):
            if "mfma" in ABL: return
            a = v(AF[par][rt], 4); b = v(BF[par][nt], 4); c = v(ACC[nt][rt], 4)
            if variant == "kv": A(f"v_mfma_f32_16x16x32_bf16 {c}, {a}, {b}, {c}")
            else: A(f"v_mfma_f32_16x16x32_bf16 {c}, {b}, {a}, {c}")
        for st in range(4):
            par = st & 1; nx = (st + 1) % 4
            A(f"s_waitcnt vmcnt({NV1})")
            A("s_barrier")
            A("s_waitcnt lgkmcnt(0)")
            idx = 0
            extra = {1: [("r", 0)], 2: [("r", 1)], 3: [("r", 4)], 4: [("d", 0)], 5: [("r", 2)], 6: [("r", 3)], 7: [("r", 5)], 8: [("d", 2)],
                     9: [("r", 6)], 10: [("d", 1)], 11: [("r", 7)], 12: [("d", 3)], 13: [("r", 8)], 15: [("d", 4)]}
            for nt in range(5):
                for rt in range(4):
                    mf(nt, rt, par)
                    idx += 1
                    for kind, k in extra.get(idx, []):
                        if kind == "r": rd(par ^ 1, nx, k)
                        else: dma((st + 3) % 4, k)
        A("s_add_u32 s41, s41, 1")
        A("s_cmp_lt_u32 s41, 5")
        A(f"s_cbranch_scc1 {loop}")
        A.fence()
        stamp()
        A(f"s_mov_b32 s56, {f2u(1.4426950408889634)}")
        A(f"s_mov_b32 s57, {f2u(1.4426950408889634)}")
        A(f"s_mov_b32 s58, {f2u(1e-6)}")
        A(f"s_mov_b32 s59, {f2u(1e-6)}")
        A("s_waitcnt lgkmcnt(0)")
        lane = 152; vi = 153; vq = 154; vO = 155
        A(f"v_mbcnt_lo_u32_b32 {v(lane)}, -1, 0")
        A(f"v_mbcnt_hi_u32_b32 {v(lane)}, -1, {v(lane)}")
        A(f"v_and_b32 {v(vi)}, 15, {v(lane)}")
        A(f"v_lshrrev_b32 {v(vq)}, 4, {v(lane)}")
        if variant == "q":
            A("s_waitcnt vmcnt(0)")
            if post is not None: post()
            T = 120
            VO = [124 + k for k in range(5)]
            A(f"s_lshr_b32 s34, s33, 4")
            A(f"s_lshl_b32 s36, s53, 2")
            A(f"s_add_u32 s34, s34, s36")
            A(f"s_lshl_b32 s34, s34, 5")
            A(f"s_sub_u32 s36, {ct}, 8")
            A(f"s_lshl_b32 s36, s36, 3")
            A(f"s_add_u32 s34, s34, s36")
            A(f"s_lshl_b32 s36, s54, 2")
            A(f"s_add_u32 s34, s34, s36")
            A(f"s_mul_i32 s34, s34, 768")
            A(f"s_add_u32 s34, s34, {WS_PQF}")
            A(f"v_lshl_add_u32 {v(vO)}, {v(vi)}, 4, s34")
            for k in range(5):
                A(f"v_add_u32 {v(T)}, {4*k}, {v(vq)}")
                A(f"v_mul_u32_u24 {v(T+1)}, 13108, {v(T)}")
                A(f"v_lshrrev_b32 {v(T+1)}, 16, {v(T+1)}")
                A(f"v_mul_u32_u24 {v(T+2)}, 5, {v(T+1)}")
                A(f"v_sub_u32 {v(T)}, {v(T)}, {v(T+2)}")
                A(f"v_mul_u32_u24 {v(T+1)}, 768, {v(T+1)}")
                A(f"v_lshrrev_b32 {v(T+2)}, 1, {v(T)}")
                A(f"v_lshl_add_u32 {v(T+1)}, {v(T+2)}, 8, {v(T+1)}")
                A(f"v_and_b32 {v(T)}, 1, {v(T)}")
                A(f"v_lshl_add_u32 {v(T+1)}, {v(T)}, 3, {v(T+1)}")
                A(f"v_add_u32 {v(VO[k])}, {v(T+1)}, {v(vO)}")
            A("s_mov_b32 s44, s50")
            A("s_mov_b32 s45, s51")
            k = 0
            for rt in range(4):
                for nt in range(5):
                    o = 80 + 2 * (k % 8); tt = 100 + 2 * (k % 4); k += 1
                    a0 = ACC[nt][rt]
                    phi_pair(A, a0, a0 + 1, tt, "s[56:57]", o)
                    phi_pair(A, a0 + 2, a0 + 3, tt, "s[56:57]", o + 1)
                    A(f"global_store_dwordx2 {v(VO[nt])}, {v(o,2)}, s[44:45] {sc}")
                if rt == 1 and post2 is not None: post2(10)
                if rt < 3:
                    A(f"s_add_u32 s44, s44, {32*768}")
                    A(f"s_addc_u32 s45, s45, 0")
            A(f"s_branch {fin}")
        else:
            A("s_waitcnt vmcnt(0)")
            if post is not None: post()
            A("s_barrier")
            if stamp_task is not None: A(f"{TIMER} s[78:79]")
            A(f"s_mul_i32 s34, s53, 20480")
            A(f"v_lshl_add_u32 {v(vO)}, {v(lane)}, 4, s34")
            A(f"v_mov_b32 {v(130)}, 4")
            A(f"global_load_dword {v(131)}, {v(130)}, s[48:49] sc1")
            lw1 = A.newlabel("L_g_wc1"); lwj = A.newlabel("L_g_wcj")
            A("s_cmp_eq_u32 s54, 1")
            A(f"s_cbranch_scc1 {lw1}")
            for wc in range(2):
                if wc: A.label(lw1)
                k = 0
                for nt in (4, 3, 2, 1, 0):
                    src = KVPOS[5 * wc + nt]
                    for rp in range(2):
                        o = 80 + 4 * (k % 4); tt = 100 + 2 * (k % 4); k += 1
                        for h in range(2):
                            a = ACC[nt][2 * rp + h]
                            if src < 5:
                                phi_pair(A, a, a + 1, tt, "s[56:57]", o + 2 * h)
                                phi_pair(A, a + 2, a + 3, tt, "s[56:57]", o + 2 * h + 1)
                            else:
                                A(f"v_cvt_pk_bf16_f32 {v(o+2*h)}, {v(a)}, {v(a+1)}")
                                A(f"v_cvt_pk_bf16_f32 {v(o+2*h+1)}, {v(a+2)}, {v(a+3)}")
                        A(f"ds_write_b128 {v(vO)}, {v(o,4)} offset:{10240*rp + 1024*src}")
                if wc == 0: A(f"s_branch {lwj}")
            A.label(lwj)
            if post2 is not None: post2(1)
            hd = [40, 41]; cp = [42, 43]
            he = [[44 + 4 * j + r for r in range(4)] for j in range(2)]
            rp_ = [[52 + 4 * j + r for r in range(4)] for j in range(2)]
            T = 60
            A(f"s_lshl_b32 s34, s28, 10")
            A(f"v_lshl_add_u32 {v(vO)}, {v(lane)}, 4, s34")
            A("s_waitcnt lgkmcnt(0)")
            A("s_barrier")
            P = [[0, 4], [8, 12]]; Z = [16, 20]
            F = lambda ks, t: 80 + 16 * (ks % 2) + 4 * t
            def rdf(ks):
                A(f"ds_read_b128 {v(F(ks,0),4)}, {v(vO)} offset:{10240*ks}")
                A(f"ds_read_b128 {v(F(ks,1),4)}, {v(vO)} offset:{10240*ks + 1024}")
                A(f"ds_read_b128 {v(F(ks,2),4)}, {v(vO)} offset:{10240*ks + 5120}")
                A(f"ds_read_b128 {v(F(ks,3),4)}, {v(vO)} offset:{10240*ks + 6144}")
            rdf(0); rdf(1)
            ones = 64
            for r in range(4): A(f"v_mov_b32 {v(ones+r)}, 0x3f803f80")
            for ks in range(4):
                A(f"s_waitcnt lgkmcnt({4 if ks < 3 else 0})")
                for a in range(2):
                    for b in range(2):
                        c = v(P[a][b], 4) if ks else "0"
                        A(f"v_mfma_f32_16x16x32_bf16 {v(P[a][b],4)}, {v(F(ks,2+a),4)}, {v(F(ks,b),4)}, {c}")
                for b in range(2):
                    c = v(Z[b], 4) if ks else "0"
                    A(f"v_mfma_f32_16x16x32_bf16 {v(Z[b],4)}, {v(ones,4)}, {v(F(ks,b),4)}, {c}")
                if ks + 2 < 4: rdf(ks + 2)
            KB = 40960
            A(f"s_lshl_b32 s34, s28, 4")
            for j in range(2):
                A(f"v_add_u32 {v(T)}, s34, {v(vi)}")
                if j: A(f"v_add_u32 {v(T)}, 16, {v(T)}")
                A(f"v_mul_u32_u24 {v(hd[j])}, 3277, {v(T)}")
                A(f"v_lshrrev_b32 {v(hd[j])}, 16, {v(hd[j])}")
                A(f"v_mul_u32_u24 {v(T+1)}, 20, {v(hd[j])}")
                A(f"v_sub_u32 {v(T)}, {v(T)}, {v(T+1)}")
                A(f"v_lshlrev_b32 {v(cp[j])}, 2, {v(T)}")
                for r in range(4):
                    A(f"v_lshl_add_u32 {v(T)}, {v(vq)}, 2, s34")
                    A(f"v_add_u32 {v(T)}, {16*j + r}, {v(T)}")
                    A(f"v_mul_u32_u24 {v(he[j][r])}, 3277, {v(T)}")
                    A(f"v_lshrrev_b32 {v(he[j][r])}, 16, {v(he[j][r])}")
                    A(f"v_add_u32 {v(T)}, {v(T)}, {v(he[j][r])}")
                    A(f"v_mul_u32_u24 {v(rp_[j][r])}, 80, {v(T)}")
            A(f"v_mov_b32 {v(T+2)}, 6720")
            A(f"v_mov_b32 {v(T+3)}, 1600")
            lsk = A.newlabel("L_g_sk")
            def put(a, b):
                for r in range(4):
                    tt = 68 + (r % 4)
                    A(f"v_cmp_eq_u32 vcc, {v(he[a][r])}, {v(hd[b])}")
                    A(f"v_add_u32 {v(tt)}, {v(rp_[a][r])}, {v(cp[b])}")
                    A(f"v_cndmask_b32 {v(tt)}, {v(T+2)}, {v(tt)}, vcc")
                    A(f"ds_write_b32 {v(tt)}, {v(P[a][b]+r)} offset:{KB}")
            def putz(b):
                tt = 72 + b
                A(f"v_mul_u32_u24 {v(tt)}, {21*80}, {v(hd[b])}")
                A(f"v_add3_u32 {v(tt)}, {v(tt)}, {v(cp[b])}, {v(T+3)}")
                A(f"ds_write_b32 {v(tt)}, {v(Z[b])} offset:{KB}")
            put(0, 1); put(1, 0); put(1, 1); putz(1)
            A("s_cmp_lg_u32 s28, 0")
            A(f"s_cbranch_scc1 {lsk}")
            put(0, 0); putz(0)
            A.label(lsk)
            A(f"s_mul_i32 s34, {ct}, {4*21*20*4}")
            A(f"s_add_u32 s34, s34, {WS_KV}")
            A(f"s_add_u32 s44, s50, s34")
            A(f"s_addc_u32 s45, s51, 0")
            A(f"s_mov_b32 s46, {4*21*20*4}")
            A(f"s_mov_b32 s47, 0x20000")
            A(f"s_lshl_b32 s34, s28, 8")
            A(f"v_lshl_add_u32 {v(vO)}, {v(lane)}, 2, s34")
            A("s_waitcnt lgkmcnt(0)")
            A("s_barrier")
            for m in range(7):
                A(f"ds_read_b32 {v(80+m)}, {v(vO)} offset:{KB + 1024*m}")
            lz = A.newlabel("L_g_z"); lzo = A.newlabel("L_g_zo")
            if stamp_task is not None: A(f"{TIMER} s[74:75]")
            A.label(lz)
            A("s_waitcnt vmcnt(0)")
            A(f"v_readfirstlane_b32 s34, {v(131)}")
            A("s_cmp_lg_u32 s34, 0")
            A(f"s_cbranch_scc1 {lzo}")
            A("s_sleep 2")
            A("s_add_u32 s93, s93, 1")
            A("s_cmp_gt_u32 s93, 300000")
            A(f"s_cbranch_scc1 {lzo}")
            A(f"global_load_dword {v(131)}, {v(130)}, s[48:49] sc1")
            A(f"s_branch {lz}")
            A.label(lzo)
            if stamp_task is not None: A(f"{TIMER} s[76:77]")
            A("s_waitcnt lgkmcnt(0)")
            for m in range(7):
                if m < 4:
                    A(f"buffer_atomic_add_f32 {v(80+m)}, {v(vO)}, s[44:47], 0 offen offset:{1024*m}")
                else:
                    if m == 4: A("s_mov_b32 s34, 4096")
                    A(f"buffer_atomic_add_f32 {v(80+m)}, {v(vO)}, s[44:47], s34 offen offset:{1024*(m-4)}")
            A(f"s_branch {fin}")
    A.label(fin)
    if stamp_task is not None:
        stamp()
        A("s_waitcnt vmcnt(0)")
        stamp()
        A("s_waitcnt lgkmcnt(0)")
        A(f"s_lshl_b32 s36, {stamp_task}, 3")
        A(f"s_add_u32 s36, s36, s28")
        A(f"s_lshl_b32 s36, s36, 6")
        A(f"s_add_u32 s36, s36, {WS_STAMP}")
        A(f"v_mov_b32 v1, s36")
        for k in stamps + [5, 6, 7]:
            A(f"v_mov_b32 v2, s{64+2*k}")
            A(f"global_store_dword v1, v2, s[50:51] offset:{4*k}")
        A(f"s_getreg_b32 s36, hwreg(HW_REG_HW_ID)")
        A(f"v_mov_b32 v2, s36")
        A(f"global_store_dword v1, v2, s[50:51] offset:56")
        A(f"s_getreg_b32 s36, hwreg(HW_REG_XCC_ID)")
        A(f"v_mov_b32 v2, s36")
        A(f"global_store_dword v1, v2, s[50:51] offset:60")
    return NV, GEMM_LDS
```

```python
import numpy as np
from asmlib import *
import os
TIMER = os.environ.get('TIMER', 's_memtime')
from s4 import Regs, v, f2u
from s4b import WS_AT, WS_UT, WS_FLAG, WS_STAMP

STAMP = False
SINGLE = True
FAST = True
KRS = 4576
KX = 9152
XB = 17344
C0 = 0
C1 = 4164
UCS = 8288
CX = XB + 2 * UCS
ST_ROW = 544
ST_SIZE = 16 * ST_ROW
S4_LDS = XB + 4 * ST_SIZE
TP_ROW = 144


PREG = list(range(232, 240))
def gen_params1(A):
    A("s_load_dwordx4 s[16:19], s[0:1], 8")
    A("s_load_dwordx4 s[20:23], s[0:1], 24")
    A("s_load_dwordx4 s[24:27], s[0:1], 40")
    A("s_load_dwordx4 s[60:63], s[0:1], 56")

def gen_params2(A, task, PREG=PREG):
    A("v_mbcnt_lo_u32_b32 v240, -1, 0")
    A("v_mbcnt_hi_u32_b32 v240, -1, v240")
    A(f"s_lshl_b32 s80, {task}, 9")
    A(f"s_lshl_b32 s81, s28, 7")
    A(f"s_add_u32 s80, s80, s81")
    A(f"v_lshl_add_u32 v240, v240, 1, s80")
    A(f"s_lshl_b32 s81, {task}, 2")
    A(f"s_lshr_b32 s82, s28, 1")
    A(f"s_lshl_b32 s82, s82, 1")
    A(f"s_add_u32 s81, s81, s82")
    A(f"v_mov_b32 v241, s81")
    for k in range(6):
        A(f"global_load_ushort v{PREG[k]}, v240, s[{16+2*k}:{17+2*k}]")
    A(f"global_load_ushort v{PREG[6]}, v241, s[60:61]")
    A(f"global_load_ushort v{PREG[7]}, v241, s[62:63]")

TP2_ROW = 336
def gen_transpose(A, rb, cb, between=None, after_store=None):
    from s4b import WS_G
    A("s_load_dwordx2 s[56:57], s[0:1], 96")
    A("v_and_b32 v1, 63, v0")
    A("v_and_b32 v2, 15, v1")
    A("v_lshrrev_b32 v3, 4, v1")
    A(f"s_mul_i32 s31, {rb}, {128*1280}")
    A(f"s_mul_i32 s32, {cb}, 320")
    A("s_add_u32 s31, s31, s32")
    for k in range(10):
        A(f"v_add_u32 v4, {256*k}, v0")
        A("v_mul_u32_u24 v5, 3277, v4")
        A("v_lshrrev_b32 v5, 16, v5")
        A("v_mul_u32_u24 v6, 20, v5")
        A("v_sub_u32 v4, v4, v6")
        A(f"v_mul_u32_u24 v6, {TP2_ROW}, v5")
        A(f"v_lshl_add_u32 v{60+k}, v4, 4, v6")
        A("v_mul_u32_u24 v5, 1280, v5")
        A("v_lshl_add_u32 v5, v4, 4, v5")
        A("v_add_u32 v5, s31, v5")
        A(f"global_load_dwordx4 v[{8+4*k}:{11+4*k}], v5, s[8:9]")
    A("v_lshl_add_u32 v6, v2, 1, s32")
    A("s_waitcnt lgkmcnt(0)")
    for k in range(10):
        A(f"global_load_ushort v{72+2*k}, v6, s[56:57] offset:{32*k}")
    NB = between() if between is not None else 0
    A("v_lshrrev_b32 v4, 2, v2")
    A("v_lshl_add_u32 v4, v3, 3, v4")
    A("s_lshl_b32 s32, s28, 5")
    A("v_add_u32 v4, s32, v4")
    A(f"v_mul_u32_u24 v4, {TP2_ROW}, v4")
    A("v_and_b32 v5, 3, v2")
    A("v_lshl_add_u32 v4, v5, 3, v4")
    A(f"s_mul_i32 s31, {cb}, {160*4096}")
    A(f"s_lshl_b32 s32, {rb}, 8")
    A("s_add_u32 s31, s31, s32")
    A("s_lshl_b32 s32, s28, 6")
    A("s_add_u32 s31, s31, s32")
    A(f"s_add_u32 s31, s31, {WS_UT}")
    A("v_lshlrev_b32 v5, 12, v2")
    A("v_lshl_add_u32 v5, v3, 4, v5")
    A("v_add_u32 v5, s31, v5")
    for k in range(10):
        A(f"s_waitcnt vmcnt({19-k+NB})")
        A(f"ds_write_b128 v{60+k}, v[{8+4*k}:{11+4*k}]")
    A("s_waitcnt lgkmcnt(0)")
    A("s_barrier")
    for k in range(10):
        A(f"ds_read_b64_tr_b16 v[{8+4*k}:{9+4*k}], v4 offset:{32*k}")
        A(f"ds_read_b64_tr_b16 v[{10+4*k}:{11+4*k}], v4 offset:{32*k + 4*TP2_ROW}")
    for k in range(10):
        A(f"s_waitcnt lgkmcnt({min(15, 18-2*k)})")
        A(f"global_store_dwordx4 v5, v[{8+4*k}:{11+4*k}], s[50:51] sc0 sc1")
        if k < 9: A(f"v_add_u32 v5, {16*4096}, v5")
    if after_store is not None: after_store()
    A("s_waitcnt vmcnt(10)")
    for k in range(10):
        A(f"v_lshlrev_b32 v{72+2*k}, 16, v{72+2*k}")
    for k in range(10):
        for j in range(4):
            src = 8 + 4 * k + j
            A(f"v_lshlrev_b32 v110, 16, v{src}")
            A(f"v_and_b32 v111, 0xffff0000, v{src}")
            A(f"v_pk_mul_f32 v[110:111], v[110:111], v[{72+2*k}:{73+2*k}] op_sel:[0,0] op_sel_hi:[1,0]")
            A(f"v_cvt_pk_bf16_f32 v112, v110, v111")
            if k == 0:
                A(f"v_lshlrev_b32 v{100+2*j}, 16, v112")
                A(f"v_and_b32 v{101+2*j}, 0xffff0000, v112")
            else:
                A(f"v_lshlrev_b32 v110, 16, v112")
                A(f"v_and_b32 v111, 0xffff0000, v112")
                A(f"v_pk_add_f32 v[{100+2*j}:{101+2*j}], v[{100+2*j}:{101+2*j}], v[110:111]")
    for op in ("quad_perm:[1,0,3,2]", "quad_perm:[2,3,0,1]", "row_half_mirror", "row_mirror"):
        for r in range(8):
            x = f"v{100+r}"
            A(f"v_add_f32_dpp {x}, {x}, {x} {op} row_mask:0xf bank_mask:0xf")
    A(f"s_lshl_b32 s31, {cb}, 13")
    A(f"s_lshl_b32 s32, {rb}, 9")
    A("s_add_u32 s31, s31, s32")
    A("s_lshl_b32 s32, s28, 7")
    A("s_add_u32 s31, s31, s32")
    A(f"s_add_u32 s31, s31, {WS_G}")
    A("v_lshl_add_u32 v5, v3, 5, s31")
    A("s_mov_b32 exec_lo, 0x00010001")
    A("s_mov_b32 exec_hi, 0x00010001")
    A("global_store_dwordx4 v5, v[100:103], s[50:51] sc0 sc1")
    A("global_store_dwordx4 v5, v[104:107], s[50:51] offset:16 sc0 sc1")
    A("s_mov_b64 exec, -1")

def gen_s4(A, task="s3", sc="", done=None, after_mid=None):
    stamps = []
    def stamp():
        if not STAMP: return
        k = len(stamps); stamps.append(k)
        A(f"{TIMER} s[{64+2*k}:{65+2*k}]")
    R = Regs(1, 256)
    L2E = f2u(1.4426950408889634)
    L2E_LO = f2u(1.4426950408889634 - float(np.float32(1.4426950408889634)))
    LN2 = f2u(0.6931471805599453)
    INV2PI = f2u(0.15915494309189535)
    stamp()
    for r in PREG: R.free[r] = False
    P = list(PREG)
    vLane = R.alloc(); vT = R.alloc(); vT2 = R.alloc()
    A(f"v_and_b32 {v(vLane)}, 63, v0")
    A(f"s_lshr_b32 s53, s28, 1")
    A(f"s_and_b32 s54, s28, 1")
    A(f"s_lshl_b32 s55, {task}, 1")
    A(f"s_add_u32 s55, s55, s53")
    A(f"s_mul_i32 s33, s28, {ST_SIZE}")
    A(f"s_add_u32 s33, s33, {XB}")
    A(f"s_mul_i32 s32, s53, {KRS}")
    A(f"s_mul_i32 s34, s53, {UCS}")
    A(f"s_add_u32 s34, s34, {XB}")
    vI = R.alloc(); vQ = R.alloc()
    A(f"v_and_b32 {v(vI)}, 15, {v(vLane)}")
    A(f"v_lshrrev_b32 {v(vQ)}, 4, {v(vLane)}")
    vZ = R.alloc(2, 2)
    A(f"v_mov_b32 {v(vZ)}, 0")
    A(f"v_mov_b32 {v(vZ+1)}, 0")
    A(f"v_min_u32 {v(vT)}, 59, {v(vLane)}")
    A(f"v_lshl_add_u32 {v(vT)}, {v(vT)}, 3, s32")
    A(f"ds_write_b64 {v(vT)}, {v(vZ,2)} offset:4096")
    R.rel(vZ, 2)
    SW = [R.alloc() for _ in range(8)]
    A(f"v_lshl_add_u32 {v(SW[0])}, {v(vLane)}, 2, s33")
    for k in range(1, 8):
        A(f"v_add_u32 {v(SW[k])}, {2*ST_ROW*k}, {v(SW[0])}")
    vSR = R.alloc()
    A(f"v_mul_u32_u24 {v(vSR)}, {ST_ROW}, {v(vI)}")
    A(f"v_lshl_add_u32 {v(vSR)}, {v(vQ)}, 4, {v(vSR)}")
    A(f"v_add_u32 {v(vSR)}, s33, {v(vSR)}")
    vFA = R.alloc(); vFD = R.alloc(); vN0 = R.alloc(); vN = R.alloc()
    UD = [R.alloc(4, 4) for _ in range(2)]; UP = R.alloc(); vTau = R.alloc(); vUA = R.alloc()
    A(f"s_mul_i32 s36, {task}, 820")
    A(f"s_lshr_b32 s36, s36, 16")
    A(f"s_lshl_b32 s36, s36, 6")
    A(f"s_add_u32 s36, s36, {WS_FLAG}")
    A(f"v_lshl_add_u32 {v(vFA)}, {v(vI)}, 2, s36")
    A(f"v_mov_b32 {v(vN0)}, 0")
    A(f"v_and_b32 {v(vTau)}, 127, v0")
    A(f"s_lshl_b32 s36, s55, 12")
    A(f"s_add_u32 s36, s36, {WS_UT}")
    A(f"v_lshl_add_u32 {v(vUA)}, {v(vTau)}, 5, s36")
    A("s_cmp_eq_u32 s84, 0")
    lpw = A.newlabel("L_s4_pw")
    A(f"s_cbranch_scc1 {lpw}")
    A("s_waitcnt vmcnt(0)")
    A.label(lpw)
    A(f"global_load_dword {v(vN)}, {v(vN0)}, s[48:49] sc1")
    A(f"global_load_dword {v(vFD)}, {v(vFA)}, s[50:51] sc1")
    def ut_loads():
        A(f"global_load_dwordx4 {v(UD[0],4)}, {v(vUA)}, s[50:51] sc1")
        A(f"global_load_dwordx4 {v(UD[1],4)}, {v(vUA)}, s[50:51] offset:16 sc1")
        A(f"global_load_dword {v(UP)}, {v(vUA)}, s[50:51] offset:-4 sc1")
    stamp()
    for k in range(8):
        A(f"v_lshlrev_b32 {v(P[k])}, 16, {v(P[k])}")
    Are, Aim, Bre, Bim, Cre, Cim, Ldt, Dsk = P
    A(f"s_mov_b32 s44, {L2E}")
    A(f"s_mov_b32 s45, {L2E_LO}")
    A(f"s_mov_b32 s46, {LN2}")
    A(f"s_mov_b32 s47, {INV2PI}")
    A(f"v_mul_f32 {v(vT)}, s44, {v(Ldt)}")
    A(f"v_fma_f32 {v(vT2)}, {v(Ldt)}, s44, -{v(vT)}")
    A(f"v_fma_f32 {v(vT2)}, {v(Ldt)}, s45, {v(vT2)}")
    A(f"v_exp_f32 {v(vT)}, {v(vT)}")
    A(f"v_mul_f32 {v(vT2)}, s46, {v(vT2)}")
    A(f"v_fma_f32 {v(vT)}, {v(vT)}, {v(vT2)}, {v(vT)}")
    A(f"v_cvt_pk_bf16_f32 {v(vT)}, {v(vT)}, {v(vT)}")
    A(f"v_lshlrev_b32 {v(Ldt)}, 16, {v(vT)}")
    dt = Ldt
    A(f"v_mul_f32 {v(Are)}, {v(dt)}, {v(Are)}")
    A(f"v_mul_f32 {v(Aim)}, {v(dt)}, {v(Aim)}")
    A(f"v_mul_f32 {v(Are)}, s44, {v(Are)}")
    A(f"v_mul_f32 {v(Aim)}, s47, {v(Aim)}")
    A(f"v_mul_f32 {v(Bre)}, {v(dt)}, {v(Bre)}")
    A(f"v_mul_f32 {v(Bim)}, {v(dt)}, {v(Bim)}")
    W = R.alloc(2, 2)
    A(f"v_mul_f32 {v(W)}, {v(Cre)}, {v(Bre)}")
    A(f"v_fma_f32 {v(W)}, -{v(Cim)}, {v(Bim)}, {v(W)}")
    A(f"v_mul_f32 {v(W+1)}, {v(Cre)}, {v(Bim)}")
    A(f"v_fma_f32 {v(W+1)}, {v(Cim)}, {v(Bre)}, {v(W+1)}")
    for r in (Bre, Bim, Cre, Cim, Ldt): R.rel(r)
    def cexp(x, conj=False):
        z = R.alloc(2, 2)
        xs = f2u(float(x))
        if x == 1:
            A(f"v_exp_f32 {v(vT)}, {v(Are)}")
            A(f"v_fract_f32 {v(vT2)}, {v(Aim)}")
        else:
            A(f"v_mul_f32 {v(vT)}, {xs}, {v(Are)}")
            A(f"v_mul_f32 {v(vT2)}, {xs}, {v(Aim)}")
            A(f"v_exp_f32 {v(vT)}, {v(vT)}")
            A(f"v_fract_f32 {v(vT2)}, {v(vT2)}")
        A(f"v_cos_f32 {v(z)}, {v(vT2)}")
        A(f"v_sin_f32 {v(z+1)}, {v(vT2)}")
        A(f"v_mul_f32 {v(z)}, {v(vT)}, {v(z)}")
        A(f"v_mul_f32 {v(z+1)}, {'-' if conj else ''}{v(vT)}, {v(z+1)}")
        return z
    def cmul(x, y, z=None):
        if z is None: z = R.alloc(2, 2)
        assert z != x and z != y
        A(f"v_pk_mul_f32 {v(z,2)}, {v(x,2)}, {v(y,2)} op_sel:[0,0] op_sel_hi:[1,0]")
        A(f"v_pk_fma_f32 {v(z,2)}, {v(x,2)}, {v(y,2)}, {v(z,2)} op_sel:[1,1,0] op_sel_hi:[0,1,1] neg_lo:[1,0,0]")
        return z
    TS = [R.alloc(2, 2) for _ in range(2)]
    HL = [R.alloc(2, 2) for _ in range(2)]
    cnt = [0]
    pending = []
    def drain(n=1):
        for _ in range(n):
            if pending: A(pending.pop(0))
    held = []
    def flush_held():
        if held:
            h, row = held.pop()
            A(f"ds_write_b32 {v(SW[row>>1])}, {v(h)} offset:{ST_ROW*(row&1)}")
    def swrite(x, row):
        k = cnt[0] & 1; cnt[0] += 1
        t = TS[k]; h = HL[k]; l = HL[k] + 1
        if SINGLE:
            hh = HL[(cnt[0] >> 1) & 1] + (cnt[0] & 1)
            A(f"v_cvt_pk_bf16_f32 {v(hh)}, {v(x)}, {v(x+1)}")
            if held and held[0][1] == row - 1 and row % 2 == 1:
                h0, _ = held.pop()
                A(f"ds_write2_b32 {v(SW[row>>1])}, {v(h0)}, {v(hh)} offset0:0 offset1:136")
            else:
                flush_held()
                held.append((hh, row))
            drain(1)
            return
        A(f"v_cvt_pk_bf16_f32 {v(h)}, {v(x)}, {v(x+1)}")
        A(f"v_lshlrev_b32 {v(t)}, 16, {v(h)}")
        A(f"v_and_b32 {v(t+1)}, 0xffff0000, {v(h)}")
        A(f"v_pk_add_f32 {v(t,2)}, {v(x,2)}, {v(t,2)} neg_lo:[0,1] neg_hi:[0,1]")
        A(f"v_cvt_pk_bf16_f32 {v(l)}, {v(t)}, {v(t+1)}")
        o = 136 * (row & 1)
        A(f"ds_write2_b32 {v(SW[row>>1])}, {v(h)}, {v(l)} offset0:{o} offset1:{o+64}")
        drain(1)
    Y = [None] * 16
    Y[1] = cexp(8, conj=True)
    one = R.alloc(2, 2)
    A(f"v_mov_b32 {v(one)}, 1.0")
    A(f"v_mov_b32 {v(one+1)}, 0")
    swrite(one, 0)
    R.rel(one, 2)
    swrite(Y[1], 1)
    Y[2] = cmul(Y[1], Y[1]); swrite(Y[2], 2)
    Y[3] = cmul(Y[2], Y[1]); swrite(Y[3], 3)
    Y[4] = cmul(Y[2], Y[2]); swrite(Y[4], 4)
    for j in (5, 6, 7):
        Y[j] = cmul(Y[4], Y[j-4]); swrite(Y[j], j)
    Y[8] = cmul(Y[4], Y[4]); swrite(Y[8], 8)
    tmp = [R.alloc(2, 2) for _ in range(2)]
    for j in range(9, 16):
        z = cmul(Y[8], Y[j-8], tmp[j & 1]); swrite(z, j)
    for j in range(1, 9): R.rel(Y[j], 2)
    Bh = [R.alloc(4, 4) for _ in range(4)]
    Bl = [R.alloc(4, 4) for _ in range(4)]
    flush_held()
    for k in range(4):
        A(f"ds_read_b128 {v(Bh[k],4)}, {v(vSR)} offset:{64*k}")
        if not SINGLE: A(f"ds_read_b128 {v(Bl[k],4)}, {v(vSR)} offset:{64*k+256}")
    Ah = [R.alloc(4, 4) for _ in range(4)]
    Al = [R.alloc(4, 4) for _ in range(4)]
    KT = [R.alloc(4, 4) for _ in range(3)]
    def tile_reads():
        flush_held()
        for k in range(4):
            A(f"ds_read_b128 {v(Ah[k],4)}, {v(vSR)} offset:{64*k}")
            if not SINGLE: A(f"ds_read_b128 {v(Al[k],4)}, {v(vSR)} offset:{64*k+256}")
    def tile_mfmas(T):
        out = []
        for k in range(4):
            c = "0" if k == 0 else v(KT[T], 4)
            out.append(f"v_mfma_f32_16x16x32_bf16 {v(KT[T],4)}, {v(Ah[k],4)}, {v(Bh[k],4)}, {c}")
            if SINGLE: continue
            out.append(f"v_mfma_f32_16x16x32_bf16 {v(KT[T],4)}, {v(Al[k],4)}, {v(Bh[k],4)}, {v(KT[T],4)}")
            out.append(f"v_mfma_f32_16x16x32_bf16 {v(KT[T],4)}, {v(Ah[k],4)}, {v(Bl[k],4)}, {v(KT[T],4)}")
        return out
    A("s_waitcnt vmcnt(0)")
    A("s_barrier")
    lpn = A.newlabel("L_s4_pn"); lgo = A.newlabel("L_s4_go"); lsk = A.newlabel("L_s4_sk"); lne = A.newlabel("L_s4_ne")
    A.label(lpn)
    A(f"v_readfirstlane_b32 s52, {v(vN)}")
    A("s_cmp_lg_u32 s52, 0")
    A(f"s_cbranch_scc1 {lgo}")
    A("s_sleep 2")
    A("s_add_u32 s93, s93, 1")
    A("s_cmp_gt_u32 s93, 300000")
    A(f"s_cbranch_scc1 {lgo}")
    A(f"global_load_dword {v(vN)}, {v(vN0)}, s[48:49] sc1")
    A("s_waitcnt vmcnt(0)")
    A(f"s_branch {lpn}")
    A.label(lgo)
    A("s_cmp_lg_u32 s28, 0")
    A(f"s_cbranch_scc1 {lsk}")
    A(f"v_mov_b32 {v(vT)}, s88")
    A("s_mov_b64 exec, 1")
    A(f"global_store_dword {v(vT)}, {v(vN)}, s[50:51] sc0 sc1")
    A("s_mov_b64 exec, -1")
    A.label(lsk)
    A("s_mov_b32 s85, 0")
    A(f"v_cmp_ne_u32 vcc, s52, {v(vFD)}")
    A(f"s_cbranch_vccnz {lne}")
    A("s_mov_b32 s85, 1")
    ut_loads()
    A.label(lne)
    Pw = cexp(128)
    P2 = cmul(Pw, Pw); P4 = cmul(P2, P2); P8 = cmul(P4, P4)
    V = [None] * 8
    V[0] = W
    V[1] = cmul(V[0], Pw); V[2] = cmul(V[0], P2); V[3] = cmul(V[1], P2)
    for i in range(4, 8): V[i] = cmul(V[i-4], P4)
    R.rel(Pw, 2); R.rel(P2, 2); R.rel(P4, 2)
    for q in range(4):
        for rho in range(2):
            i = 2 * q + rho
            z = cmul(V[i], P8, tmp[rho]); swrite(z, 4 * q + rho)
            if i == 0:
                z2 = R.alloc(2, 2); cmul(z, P8, z2)
            if i == 1:
                swrite(z2, 2); R.rel(z2, 2)
    R.rel(P8, 2)
    tile_reads()
    E = [None] * 8
    E[1] = cexp(1)
    E[2] = cmul(E[1], E[1]); E[3] = cmul(E[2], E[1]); E[4] = cmul(E[2], E[2])
    E[5] = cmul(E[4], E[1]); E[6] = cmul(E[4], E[2]); E[7] = cmul(E[4], E[3])
    A("s_waitcnt lgkmcnt(0)")
    pending += tile_mfmas(2)
    for q in range(4):
        base = V[2 + (q >> 1)]
        for rho in range(2):
            off = 4 * (q & 1) + 2 * rho
            if off == 0: swrite(base, 4 * q + rho)
            else:
                z = cmul(base, E[off], tmp[rho]); swrite(z, 4 * q + rho)
        swrite(V[4 + q], 4 * q + 2)
        z = cmul(V[4 + q], E[4], tmp[0]); swrite(z, 4 * q + 3)
    drain(100)
    for i in range(2, 8): R.rel(V[i], 2)
    tile_reads()
    pr = [R.alloc(2, 2) for _ in range(4)]
    for k, off in enumerate((1, 2, 3, 4)):
        cmul(V[0], E[off], pr[k])
    A("s_waitcnt lgkmcnt(0)")
    pending += tile_mfmas(1)
    swrite(V[0], 0)
    for k, off in enumerate((1, 2, 3, 4)): swrite(pr[k], off)
    for off in (5, 6, 7):
        z = cmul(V[0], E[off], tmp[off & 1]); swrite(z, off)
    swrite(V[1], 8)
    for off in range(1, 8):
        z = cmul(V[1], E[off], tmp[off & 1]); swrite(z, 8 + off)
    drain(100)
    for k in range(4): R.rel(pr[k], 2)
    for i in range(1, 8): R.rel(E[i], 2)
    R.rel(V[0], 2); R.rel(V[1], 2)
    tile_reads()
    vX = R.alloc(); vXp = R.alloc()
    A(f"s_lshl_b32 s36, s28, 11")
    A(f"v_lshl_add_u32 {v(vX)}, {v(vLane)}, 4, s36")
    A(f"v_xor_b32 {v(vXp)}, 2048, {v(vX)}")
    A("s_waitcnt lgkmcnt(0)")
    for s in tile_mfmas(0): A(s)
    for k in range(4):
        R.rel(Ah[k], 4); R.rel(Al[k], 4); R.rel(Bh[k], 4); R.rel(Bl[k], 4)
    for k in range(8): R.rel(SW[k])
    for k in range(2): R.rel(TS[k], 2); R.rel(HL[k], 2); R.rel(tmp[k], 2)
    R.rel(vSR)
    lh = A.newlabel("L_s4_x1"); lhj = A.newlabel("L_s4_xj")
    A("s_cmp_eq_u32 s54, 1")
    A.fence()
    A(f"s_cbranch_scc1 {lh}")
    A(f"ds_write_b128 {v(vX)}, {v(KT[1],4)} offset:{KX}")
    A(f"ds_write_b128 {v(vX)}, {v(KT[2],4)} offset:{KX+1024}")
    A(f"s_branch {lhj}")
    A.label(lh)
    A(f"ds_write_b128 {v(vX)}, {v(KT[0],4)} offset:{KX}")
    A.label(lhj)
    stamp()
    lnp = A.newlabel("L_s4_np"); lpl = A.newlabel("L_s4_pl"); lok = A.newlabel("L_s4_ok")
    A("s_cmp_eq_u32 s85, 1")
    A(f"s_cbranch_scc1 {lnp}")
    A.label(lpl)
    A(f"global_load_dword {v(vFD)}, {v(vFA)}, s[50:51] sc1")
    A("s_waitcnt vmcnt(0)")
    A(f"v_cmp_ne_u32 vcc, s52, {v(vFD)}")
    A(f"s_cbranch_vccz {lok}")
    A("s_sleep 4")
    A("s_add_u32 s93, s93, 1")
    A("s_cmp_gt_u32 s93, 300000")
    A(f"s_cbranch_scc1 {lok}")
    A(f"s_branch {lpl}")
    A.label(lok)
    ut_loads()
    A.label(lnp)
    A("s_waitcnt lgkmcnt(0)")
    A("s_barrier")
    stamp()
    for r in (vFA, vFD, vN0, vN, vUA): R.rel(r)
    vZ = R.alloc()
    A(f"v_mov_b32 {v(vZ)}, 0")
    A(f"v_min_u32 {v(vT)}, 7, {v(vLane)}")
    A(f"v_lshl_add_u32 {v(vT)}, {v(vT)}, 2, s34")
    A(f"ds_write_b32 {v(vT)}, {v(vZ)} offset:{C0}")
    A(f"v_min_u32 {v(vT)}, 6, {v(vLane)}")
    A(f"v_lshl_add_u32 {v(vT)}, {v(vT)}, 2, s34")
    A(f"ds_write_b32 {v(vT)}, {v(vZ)} offset:{C1}")
    R.rel(vZ)
    X1 = R.alloc(4, 4); X2 = R.alloc(4, 4)
    lh1 = A.newlabel("L_s4_h1"); lj = A.newlabel("L_s4_j")
    A("s_cmp_eq_u32 s54, 1")
    A(f"s_cbranch_scc1 {lh1}")
    A(f"ds_read_b128 {v(X1,4)}, {v(vXp)} offset:{KX}")
    A(f"v_lshrrev_b32 {v(vT)}, 1, {v(vQ)}")
    A(f"v_lshlrev_b32 {v(vT)}, 8, {v(vT)}")
    A(f"v_and_b32 {v(vT2)}, 1, {v(vQ)}")
    A(f"v_lshl_add_u32 {v(vT)}, {v(vT2)}, 3, {v(vT)}")
    A(f"v_lshl_add_u32 {v(vT)}, {v(vI)}, 4, {v(vT)}")
    A(f"v_sub_u32 {v(vT)}, s32, {v(vT)}")
    A(f"v_add_u32 {v(vT)}, 4088, {v(vT)}")
    A("s_waitcnt lgkmcnt(0)")
    A(f"v_pk_add_f32 {v(X1,2)}, {v(X1,2)}, {v(KT[0],2)}")
    A(f"v_pk_add_f32 {v(X1+2,2)}, {v(X1+2,2)}, {v(KT[0]+2,2)}")
    A(f"v_cvt_pk_bf16_f32 {v(X2)}, {v(X1+3)}, {v(X1+2)}")
    A(f"v_cvt_pk_bf16_f32 {v(X2+1)}, {v(X1+1)}, {v(X1)}")
    A(f"ds_write_b64 {v(vT)}, {v(X2,2)}")
    A(f"s_branch {lj}")
    A.label(lh1)
    A(f"ds_read_b128 {v(X1,4)}, {v(vXp)} offset:{KX}")
    A(f"ds_read_b128 {v(X2,4)}, {v(vXp)} offset:{KX+1024}")
    a3 = R.alloc(); a3f = R.alloc(); a2 = R.alloc(); a1 = R.alloc(); a1s = R.alloc()
    A(f"v_lshlrev_b32 {v(vT)}, 9, {v(vQ)}")
    A(f"v_lshl_add_u32 {v(vT)}, {v(vI)}, 4, {v(vT)}")
    A(f"v_sub_u32 {v(a3)}, s32, {v(vT)}")
    A(f"v_add_u32 {v(a3)}, {2040 - 256}, {v(a3)}")
    A(f"v_and_b32 {v(vT2)}, 1, {v(vI)}")
    A(f"v_lshl_add_u32 {v(a3f)}, {v(vT2)}, 1, {v(a3)}")
    A(f"v_add_u32 {v(a3f)}, 254, {v(a3f)}")
    A(f"v_lshlrev_b32 {v(vT)}, 8, {v(vQ)}")
    A(f"v_lshl_add_u32 {v(vT)}, {v(vI)}, 4, {v(vT)}")
    A(f"v_sub_u32 {v(a2)}, s32, {v(vT)}")
    A(f"v_add_u32 {v(a2)}, 3060, {v(a2)}")
    A(f"v_lshrrev_b32 {v(vT)}, 1, {v(vQ)}")
    A(f"v_lshlrev_b32 {v(vT)}, 8, {v(vT)}")
    A(f"v_and_b32 {v(vT2)}, 1, {v(vQ)}")
    A(f"v_lshl_add_u32 {v(vT)}, {v(vT2)}, 3, {v(vT)}")
    A(f"v_lshl_add_u32 {v(vT)}, {v(vI)}, 4, {v(vT)}")
    A(f"v_sub_u32 {v(a1)}, s32, {v(vT)}")
    A(f"v_add_u32 {v(a1)}, {2*(2045-256)}, {v(a1)}")
    A(f"v_cmp_eq_u32 vcc, 0, {v(vLane)}")
    A(f"v_add_u32 {v(a1s)}, 6, {v(a1)}")
    A(f"v_add_u32 {v(vT)}, 2, {v(a1)}")
    A(f"v_cndmask_b32 {v(a1s)}, {v(a1s)}, {v(vT)}, vcc")
    A(f"v_subrev_u32 {v(vT2)}, 256, {v(a3f)}")
    A("s_waitcnt lgkmcnt(0)")
    for k in range(2):
        A(f"v_pk_add_f32 {v(X1+2*k,2)}, {v(X1+2*k,2)}, {v(KT[1]+2*k,2)}")
        A(f"v_pk_add_f32 {v(X2+2*k,2)}, {v(X2+2*k,2)}, {v(KT[2]+2*k,2)}")
    D = [R.alloc(2, 2) for _ in range(3)]
    for rho in range(3):
        A(f"v_cvt_pk_bf16_f32 {v(D[rho])}, {v(X2+rho)}, {v(X2+rho)}")
        A(f"v_mov_b32 {v(D[rho]+1)}, {v(D[rho])}")
    A(f"ds_write2_b64 {v(a3)}, {v(D[0],2)}, {v(D[0],2)} offset0:32 offset1:33")
    A(f"ds_write2_b64 {v(a3)}, {v(D[1],2)}, {v(D[1],2)} offset0:0 offset1:1")
    A(f"v_mov_b32 {v(vT)}, s32")
    A("s_mov_b64 exec, 1")
    A(f"ds_write_b64 {v(vT)}, {v(D[2],2)}")
    A("s_mov_b64 exec, -1")
    A(f"ds_write_b16 {v(a3f)}, {v(D[0])}")
    A(f"ds_write_b16 {v(vT2)}, {v(D[1])}")
    A(f"v_cvt_pk_bf16_f32 {v(D[0])}, {v(X1+3)}, {v(X1+3)}")
    A(f"v_cvt_pk_bf16_f32 {v(D[0]+1)}, {v(X1+3)}, {v(X1+2)}")
    A(f"v_cvt_pk_bf16_f32 {v(D[1])}, {v(X1+2)}, {v(X1+2)}")
    A(f"ds_write2_b32 {v(a2)}, {v(D[0])}, {v(D[0]+1)} offset0:0 offset1:1")
    A(f"ds_write2_b32 {v(a2)}, {v(D[1])}, {v(D[1])} offset0:2 offset1:3")
    A(f"v_cvt_pk_bf16_f32 {v(D[2])}, {v(X1+1)}, {v(X1+1)}")
    A(f"v_cvt_pk_bf16_f32 {v(D[2]+1)}, {v(X1)}, {v(X1)}")
    A(f"ds_write_b16 {v(a1)}, {v(D[2])}")
    A(f"ds_write_b32 {v(a1)}, {v(D[2]+1)} offset:2")
    A(f"ds_write_b16 {v(a1s)}, {v(D[2]+1)}")
    for k in range(3): R.rel(D[k], 2)
    for r in (a3, a3f, a2, a1, a1s): R.rel(r)
    A.label(lj)
    R.rel(X1, 4); R.rel(X2, 4)
    for k in range(3): R.rel(KT[k], 4)
    vK = R.alloc(); vU = [R.alloc() for _ in range(4)]
    A(f"v_lshlrev_b32 {v(vT)}, 5, {v(vI)}")
    A(f"v_lshlrev_b32 {v(vT2)}, 4, {v(vQ)}")
    A(f"v_sub_u32 {v(vK)}, {v(vT2)}, {v(vT)}")
    A(f"s_lshl_b32 s36, s54, 8")
    A(f"s_add_u32 s37, s36, s32")
    A(f"s_add_u32 s37, s37, 480")
    A(f"v_add_u32 {v(vK)}, s37, {v(vK)}")
    A(f"s_add_u32 s36, s36, s34")
    A(f"v_lshlrev_b32 {v(vT)}, 1, {v(vI)}")
    A(f"v_add_u32 {v(vT)}, {v(vT)}, {v(vT2)}")
    A(f"v_and_b32 {v(vT2)}, 1, {v(vI)}")
    A(f"v_cmp_eq_u32 vcc, 0, {v(vT2)}")
    A(f"v_mov_b32 {v(vU[0])}, {C0 + 2}")
    A(f"v_mov_b32 {v(vU[1])}, {C1}")
    A(f"v_cndmask_b32 {v(vU[0])}, {v(vU[0])}, {v(vU[1])}, vcc")
    A(f"v_add3_u32 {v(vU[0])}, {v(vU[0])}, {v(vT)}, s36")
    for k in range(1, 4):
        A(f"v_add_u32 {v(vU[k])}, {1024*k}, {v(vU[0])}")
    UO = [R.alloc(4, 4) for _ in range(2)]
    A(f"v_cmp_eq_u32 vcc, 0, {v(vTau)}")
    A(f"v_lshl_add_u32 {v(vT)}, {v(vTau)}, 5, s34")
    A("s_waitcnt vmcnt(0)")
    A(f"v_cndmask_b32 {v(UP)}, {v(UP)}, 0, vcc")
    A(f"ds_write_b128 {v(vT)}, {v(UD[0],4)} offset:{C0 + 32}")
    A(f"ds_write_b128 {v(vT)}, {v(UD[1],4)} offset:{C0 + 48}")
    seq = [UP] + [UD[0] + k for k in range(4)] + [UD[1] + k for k in range(4)]
    for k in range(8):
        A(f"v_alignbit_b32 {v(UO[k//4] + k%4)}, {v(seq[k+1])}, {v(seq[k])}, 16")
    A(f"ds_write_b128 {v(vT)}, {v(UO[0],4)} offset:{C1 + 28}")
    A(f"ds_write_b128 {v(vT)}, {v(UO[1],4)} offset:{C1 + 44}")
    A("s_waitcnt lgkmcnt(0)")
    A("s_barrier")
    for k in range(2): R.rel(UO[k], 4); R.rel(UD[k], 4)
    R.rel(UP); R.rel(vTau)
    stamp()
    if STAMP: A("s_waitcnt lgkmcnt(0)")
    extra_ops = []
    if after_mid is not None:
        amt = [R.alloc() for _ in range(9)]
        extra_ops = after_mid(amt)
    ACC = [R.alloc(4, 4) for _ in range(8)]
    NKS = 9; NUS = 5
    KS = [R.alloc(4, 4) for _ in range(NKS)]
    US = [R.alloc(4, 4) for _ in range(NUS)]
    ops = []
    for rr in range(4):
        if rr % 2 == 1:
            for m in range(8):
                for phi in range(8 - m): ops.append((rr, m, phi))
        else:
            for m in range(7, -1, -1):
                for phi in range(8 - m): ops.append((rr, m, phi))
    first = {}; last = {}
    for idx, (rr, m, phi) in enumerate(ops):
        for key in (("K", rr, phi), ("U", rr, m)):
            first.setdefault(key, idx); last[key] = idx
    LEAD = 10
    loads = []
    for kind, nslots in (("K", NKS), ("U", NUS)):
        keys = sorted([k for k in first if k[0] == kind], key=lambda k: first[k])
        freeat = [-1] * nslots
        for k in keys:
            s = min(range(nslots), key=lambda s: freeat[s])
            assert freeat[s] < first[k], (k, freeat, first[k])
            issue = max(freeat[s] + 1, first[k] - LEAD, 0)
            loads.append((issue, first[k], k, s))
            freeat[s] = last[k]
    loads.sort()
    slot = {k: s for (_, _, k, s) in loads}
    issued = []
    done_upto = [0]
    li = 0
    started = set()
    for idx, (rr, m, phi) in enumerate(ops):
        while li < len(loads) and loads[li][0] <= idx:
            _, _, k, s = loads[li]; li += 1
            if k[0] == "K":
                A(f"ds_read_b128 {v(KS[s],4)}, {v(vK)} offset:{64*k[1] + 512*(7-k[2])}")
                issued.append(k)
            else:
                o = 16 * k[1] + 128 * (k[2] & 1)
                A(f"ds_read2_b32 {v(US[s],2)}, {v(vU[k[2]>>1])} offset0:{o} offset1:{o+1}")
                A(f"ds_read2_b32 {v(US[s]+2,2)}, {v(vU[k[2]>>1])} offset0:{o+2} offset1:{o+3}")
                issued.append(k); issued.append(k)
        needpos = max(len(issued) - 1 - issued[::-1].index(k) for k in (("K", rr, phi), ("U", rr, m)))
        if needpos + 1 > done_upto[0]:
            N = min(len(issued) - (needpos + 1), 15)
            A(f"s_waitcnt lgkmcnt({N})")
            done_upto[0] = len(issued) - N
        c = m + phi
        cc = v(ACC[c], 4) if c in started else "0"
        started.add(c)
        A(f"v_mfma_f32_16x16x32_bf16 {v(ACC[c],4)}, {v(US[slot[('U',rr,m)]],4)}, {v(KS[slot[('K',rr,phi)]],4)}, {cc}")
        if extra_ops and idx % 5 == 4: extra_ops.pop(0)()
    stamp()
    if STAMP: A("s_waitcnt lgkmcnt(0)")
    Xr = [KS[k] for k in range(4)]
    Ur = [US[k] for k in range(4)]
    A(f"s_lshl_b32 s36, s28, 12")
    A(f"v_lshl_add_u32 {v(vX)}, {v(vLane)}, 4, s36")
    A(f"v_xor_b32 {v(vXp)}, 4096, {v(vX)}")
    A(f"v_lshlrev_b32 {v(vT)}, 5, {v(vI)}")
    A(f"v_lshl_add_u32 {v(vT)}, {v(vQ)}, 3, {v(vT)}")
    A(f"s_lshl_b32 s36, s54, 11")
    A(f"s_add_u32 s37, s36, s34")
    A(f"v_add_u32 {v(vT2)}, s37, {v(vT)}")
    A(f"s_lshl_b32 s37, s55, 12")
    A(f"s_add_u32 s37, s37, s36")
    A(f"v_add_u32 {v(vT)}, s37, {v(vT)}")
    for k in range(4):
        A(f"ds_read_b64 {v(Ur[k],2)}, {v(vT2)} offset:{C0 + 32 + 512*k}")
    lh1 = A.newlabel("L_s4_e1"); lj = A.newlabel("L_s4_ej")
    A("s_cmp_eq_u32 s54, 1")
    A.fence()
    A(f"s_cbranch_scc1 {lh1}")
    for k in range(4):
        A(f"ds_write_b128 {v(vX)}, {v(ACC[4+k],4)} offset:{CX + 1024*k}")
    A(f"s_branch {lj}")
    A.label(lh1)
    for k in range(4):
        A(f"ds_write_b128 {v(vX)}, {v(ACC[k],4)} offset:{CX + 1024*k}")
    A("s_waitcnt lgkmcnt(0)")
    for k in range(4):
        for j in range(2):
            A(f"v_pk_mov_b32 {v(ACC[k]+2*j,2)}, {v(ACC[4+k]+2*j,2)}, {v(ACC[4+k]+2*j,2)} op_sel:[0,1]")
    A.label(lj)
    A("s_waitcnt lgkmcnt(0)")
    A("s_barrier")
    for k in range(4):
        A(f"ds_read_b128 {v(Xr[k],4)}, {v(vXp)} offset:{CX + 1024*k}")
    DS2 = R.alloc(2, 2)
    A(f"v_mov_b32 {v(DS2)}, {v(Dsk)}")
    A(f"v_mov_b32 {v(DS2+1)}, {v(Dsk)}")
    T4 = [KS[4], KS[5]]
    for k in range(4):
        t = T4[k & 1]; u = Ur[k]
        A(f"v_lshlrev_b32 {v(t)}, 16, {v(u)}")
        A(f"v_and_b32 {v(t+1)}, 0xffff0000, {v(u)}")
        A(f"v_lshlrev_b32 {v(t+2)}, 16, {v(u+1)}")
        A(f"v_and_b32 {v(t+3)}, 0xffff0000, {v(u+1)}")
        x = Xr[k]
        if FAST:
            A(f"v_pk_fma_f32 {v(t,2)}, {v(t,2)}, {v(DS2,2)}, {v(ACC[k],2)}")
            A(f"v_pk_fma_f32 {v(t+2,2)}, {v(t+2,2)}, {v(DS2,2)}, {v(ACC[k]+2,2)}")
            A(f"s_waitcnt lgkmcnt({3-k})")
            A(f"v_pk_add_f32 {v(x,2)}, {v(x,2)}, {v(t,2)}")
            A(f"v_pk_add_f32 {v(x+2,2)}, {v(x+2,2)}, {v(t+2,2)}")
        else:
            A(f"v_pk_mul_f32 {v(t,2)}, {v(t,2)}, {v(DS2,2)}")
            A(f"v_pk_mul_f32 {v(t+2,2)}, {v(t+2,2)}, {v(DS2,2)}")
            A(f"v_cvt_pk_bf16_f32 {v(u)}, {v(t)}, {v(t+1)}")
            A(f"v_cvt_pk_bf16_f32 {v(u+1)}, {v(t+2)}, {v(t+3)}")
            A(f"v_lshlrev_b32 {v(t)}, 16, {v(u)}")
            A(f"v_and_b32 {v(t+1)}, 0xffff0000, {v(u)}")
            A(f"v_lshlrev_b32 {v(t+2)}, 16, {v(u+1)}")
            A(f"v_and_b32 {v(t+3)}, 0xffff0000, {v(u+1)}")
            A(f"s_waitcnt lgkmcnt({3-k})")
            A(f"v_pk_add_f32 {v(x,2)}, {v(x,2)}, {v(ACC[k],2)}")
            A(f"v_pk_add_f32 {v(x+2,2)}, {v(x+2,2)}, {v(ACC[k]+2,2)}")
            A(f"v_cvt_pk_bf16_f32 {v(u)}, {v(x)}, {v(x+1)}")
            A(f"v_cvt_pk_bf16_f32 {v(u+1)}, {v(x+2)}, {v(x+3)}")
            A(f"v_lshlrev_b32 {v(x)}, 16, {v(u)}")
            A(f"v_and_b32 {v(x+1)}, 0xffff0000, {v(u)}")
            A(f"v_lshlrev_b32 {v(x+2)}, 16, {v(u+1)}")
            A(f"v_and_b32 {v(x+3)}, 0xffff0000, {v(u+1)}")
            A(f"v_pk_add_f32 {v(x,2)}, {v(x,2)}, {v(t,2)}")
            A(f"v_pk_add_f32 {v(x+2,2)}, {v(x+2,2)}, {v(t+2,2)}")
        A(f"v_cvt_pk_bf16_f32 {v(u)}, {v(x)}, {v(x+1)}")
        A(f"v_cvt_pk_bf16_f32 {v(u+1)}, {v(x+2)}, {v(x+3)}")
        A(f"global_store_dwordx2 {v(vT)}, {v(u,2)}, s[50:51] offset:{WS_AT + 512*k} {sc}")
    if done is not None: done(vT, vT2)
    if STAMP:
        A("s_waitcnt vmcnt(0)")
        stamp()
        A("s_waitcnt lgkmcnt(0)")
        A(f"s_lshl_b32 s36, {task}, 3")
        A(f"s_add_u32 s36, s36, s28")
        A(f"s_lshl_b32 s36, s36, 6")
        A(f"s_add_u32 s36, s36, {WS_STAMP + 0x200000}")
        A(f"v_mov_b32 {v(vT)}, s36")
        for k in stamps:
            A(f"v_mov_b32 {v(vT2)}, s{64+2*k}")
            A(f"global_store_dword {v(vT)}, {v(vT2)}, s[50:51] offset:{4*k}")
        A(f"s_getreg_b32 s36, hwreg(HW_REG_HW_ID)")
        A(f"v_mov_b32 {v(vT2)}, s36")
        A(f"global_store_dword {v(vT)}, {v(vT2)}, s[50:51] offset:56")
        A(f"s_getreg_b32 s36, hwreg(HW_REG_XCC_ID)")
        A(f"v_mov_b32 {v(vT2)}, s36")
        A(f"global_store_dword {v(vT)}, {v(vT2)}, s[50:51] offset:60")
    return R.hi, S4_LDS
```

```python
import numpy as np, os
from asmlib import *
TIMER = os.environ.get('TIMER', 's_memtime')
from s4 import Regs, v, f2u
from s4b import WS_AT, WS_UT, WS_FLAG, WS_STAMP
from s4f import PREG, gen_params1, gen_params2, gen_transpose

KRS = 4576
KX = 9152
XB = 17344
C0 = 0
C1 = 4164
UCS = 8288
CX = XB + 2 * UCS
ST_ROW = 288
ST_SIZE = 16 * ST_ROW
S4_SIZE = CX + 4 * 4096
SB = 163840 - S4_SIZE
assert SB % 64 == 0
sKR, sST, sUC, sCH, sHF, sD, sT0, sT1 = "s94", "s95", "s96", "s97", "s98", "s99", "s100", "s101"
vDSK = 239
UD = [160, 164]; UP = 168; vFA = 169; vFD = 170; vN0 = 171; vN = 172; vUA = 173; vTAU = 174

def setup_sregs(A, task):
    A(f"s_lshr_b32 {sCH}, s28, 1")
    A(f"s_and_b32 {sHF}, s28, 1")
    A(f"s_lshl_b32 {sD}, {task}, 1")
    A(f"s_add_u32 {sD}, {sD}, {sCH}")
    A(f"s_mul_i32 {sST}, s28, {ST_SIZE}")
    A(f"s_add_u32 {sST}, {sST}, {SB + XB}")
    A(f"s_mul_i32 {sKR}, {sCH}, {KRS}")
    A(f"s_add_u32 {sKR}, {sKR}, {SB}")
    A(f"s_mul_i32 {sUC}, {sCH}, {UCS}")
    A(f"s_add_u32 {sUC}, {sUC}, {SB + XB}")

def gen_kgen(A, task, wait_params):
    R = Regs(1, 152)
    L2E = f2u(1.4426950408889634)
    L2E_LO = f2u(1.4426950408889634 - float(np.float32(1.4426950408889634)))
    LN2 = f2u(0.6931471805599453)
    INV2PI = f2u(0.15915494309189535)
    setup_sregs(A, task)
    P = list(PREG)
    vLane = R.alloc(); vT = R.alloc(); vT2 = R.alloc(); vI = R.alloc(); vQ = R.alloc()
    A(f"v_mbcnt_lo_u32_b32 {v(vLane)}, -1, 0")
    A(f"v_mbcnt_hi_u32_b32 {v(vLane)}, -1, {v(vLane)}")
    A(f"v_and_b32 {v(vI)}, 15, {v(vLane)}")
    A(f"v_lshrrev_b32 {v(vQ)}, 4, {v(vLane)}")
    vZ = R.alloc(2, 2)
    A(f"v_mov_b32 {v(vZ)}, 0")
    A(f"v_mov_b32 {v(vZ+1)}, 0")
    A(f"v_min_u32 {v(vT)}, 59, {v(vLane)}")
    A(f"v_lshl_add_u32 {v(vT)}, {v(vT)}, 3, {sKR}")
    A(f"ds_write_b64 {v(vT)}, {v(vZ,2)} offset:4096")
    R.rel(vZ, 2)
    SW = [R.alloc() for _ in range(4)]
    A(f"v_lshl_add_u32 {v(SW[0])}, {v(vLane)}, 2, {sST}")
    for k in range(1, 4):
        A(f"v_add_u32 {v(SW[k])}, {4*ST_ROW*k}, {v(SW[0])}")
    vSR = R.alloc()
    A(f"v_mul_u32_u24 {v(vSR)}, {ST_ROW}, {v(vI)}")
    A(f"v_lshl_add_u32 {v(vSR)}, {v(vQ)}, 4, {v(vSR)}")
    A(f"v_add_u32 {v(vSR)}, {sST}, {v(vSR)}")
    vX = R.alloc(); vXp = R.alloc()
    A(f"s_lshl_b32 {sT0}, s28, 11")
    A(f"v_lshl_add_u32 {v(vX)}, {v(vLane)}, 4, {sT0}")
    A(f"v_xor_b32 {v(vXp)}, 2048, {v(vX)}")
    A(f"v_add_u32 {v(vX)}, {SB + KX}, {v(vX)}")
    A(f"v_add_u32 {v(vXp)}, {SB + KX}, {v(vXp)}")
    A(f"s_mov_b32 s44, {L2E}")
    A(f"s_mov_b32 s45, {L2E_LO}")
    A(f"s_mov_b32 s46, {LN2}")
    A(f"s_mov_b32 s47, {INV2PI}")
    wait_params()
    for k in range(8):
        A(f"v_lshlrev_b32 {v(P[k])}, 16, {v(P[k])}")
    Are, Aim, Bre, Bim, Cre, Cim, Ldt, Dsk = P
    A(f"v_mul_f32 {v(vT)}, s44, {v(Ldt)}")
    A(f"v_fma_f32 {v(vT2)}, {v(Ldt)}, s44, -{v(vT)}")
    A(f"v_fma_f32 {v(vT2)}, {v(Ldt)}, s45, {v(vT2)}")
    A(f"v_exp_f32 {v(vT)}, {v(vT)}")
    A(f"v_mul_f32 {v(vT2)}, s46, {v(vT2)}")
    A(f"v_fma_f32 {v(vT)}, {v(vT)}, {v(vT2)}, {v(vT)}")
    A(f"v_cvt_pk_bf16_f32 {v(vT)}, {v(vT)}, {v(vT)}")
    A(f"v_lshlrev_b32 {v(Ldt)}, 16, {v(vT)}")
    dt = Ldt
    A(f"v_mul_f32 {v(Are)}, {v(dt)}, {v(Are)}")
    A(f"v_mul_f32 {v(Aim)}, {v(dt)}, {v(Aim)}")
    A(f"v_mul_f32 {v(Are)}, s44, {v(Are)}")
    A(f"v_mul_f32 {v(Aim)}, s47, {v(Aim)}")
    A(f"v_mul_f32 {v(Bre)}, {v(dt)}, {v(Bre)}")
    A(f"v_mul_f32 {v(Bim)}, {v(dt)}, {v(Bim)}")
    W = R.alloc(2, 2)
    A(f"v_mul_f32 {v(W)}, {v(Cre)}, {v(Bre)}")
    A(f"v_fma_f32 {v(W)}, -{v(Cim)}, {v(Bim)}, {v(W)}")
    A(f"v_mul_f32 {v(W+1)}, {v(Cre)}, {v(Bim)}")
    A(f"v_fma_f32 {v(W+1)}, {v(Cim)}, {v(Bre)}, {v(W+1)}")
    def cexp(x, conj=False):
        z = R.alloc(2, 2)
        xs = f2u(float(x))
        if x == 1:
            A(f"v_exp_f32 {v(vT)}, {v(Are)}")
            A(f"v_fract_f32 {v(vT2)}, {v(Aim)}")
        else:
            A(f"v_mul_f32 {v(vT)}, {xs}, {v(Are)}")
            A(f"v_mul_f32 {v(vT2)}, {xs}, {v(Aim)}")
            A(f"v_exp_f32 {v(vT)}, {v(vT)}")
            A(f"v_fract_f32 {v(vT2)}, {v(vT2)}")
        A(f"v_cos_f32 {v(z)}, {v(vT2)}")
        A(f"v_sin_f32 {v(z+1)}, {v(vT2)}")
        A(f"v_mul_f32 {v(z)}, {v(vT)}, {v(z)}")
        A(f"v_mul_f32 {v(z+1)}, {'-' if conj else ''}{v(vT)}, {v(z+1)}")
        return z
    def cmul(x, y, z=None):
        if z is None: z = R.alloc(2, 2)
        assert z != x and z != y
        A(f"v_pk_mul_f32 {v(z,2)}, {v(x,2)}, {v(y,2)} op_sel:[0,0] op_sel_hi:[1,0]")
        A(f"v_pk_fma_f32 {v(z,2)}, {v(x,2)}, {v(y,2)}, {v(z,2)} op_sel:[1,1,0] op_sel_hi:[0,1,1] neg_lo:[1,0,0]")
        return z
    HL = [R.alloc() for _ in range(4)]
    cnt = [0]; pending = []; held = []
    def drain(n=1):
        for _ in range(n):
            if pending: A(pending.pop(0))
    def flush_held():
        if held:
            h, row = held.pop()
            A(f"ds_write_b32 {v(SW[row>>2])}, {v(h)} offset:{ST_ROW*(row&3)}")
    def swrite(x, row):
        hh = HL[cnt[0] % 4]; cnt[0] += 1
        A(f"v_cvt_pk_bf16_f32 {v(hh)}, {v(x)}, {v(x+1)}")
        if held and (held[0][1] >> 2) == (row >> 2):
            h0, r0 = held.pop()
            A(f"ds_write2_b32 {v(SW[row>>2])}, {v(h0)}, {v(hh)} offset0:{72*(r0&3)} offset1:{72*(row&3)}")
        else:
            flush_held()
            held.append((hh, row))
        drain(1)
    tmp = [R.alloc(2, 2) for _ in range(2)]
    def chain(base, step, rows):
        cur = base
        for k, row in enumerate(rows):
            if k > 0: cur = cmul(cur, step, tmp[k & 1])
            swrite(cur, row)
    Y1 = cexp(8, conj=True)
    one = R.alloc(2, 2)
    A(f"v_mov_b32 {v(one)}, 1.0")
    A(f"v_mov_b32 {v(one+1)}, 0")
    swrite(one, 0)
    R.rel(one, 2)
    chain(Y1, Y1, range(1, 8))
    S = cexp(64, conj=True)
    chain(S, Y1, range(8, 16))
    R.rel(Y1, 2); R.rel(S, 2)
    Bh = [R.alloc(4, 4) for _ in range(4)]
    flush_held()
    for k in range(4):
        A(f"ds_read_b128 {v(Bh[k],4)}, {v(vSR)} offset:{64*k}")
    Ah = [R.alloc(4, 4) for _ in range(4)]
    KT = [R.alloc(4, 4) for _ in range(3)]
    def tile_reads():
        flush_held()
        for k in range(4):
            A(f"ds_read_b128 {v(Ah[k],4)}, {v(vSR)} offset:{64*k}")
    def tile_mfmas(T):
        return [f"v_mfma_f32_16x16x32_bf16 {v(KT[T],4)}, {v(Ah[k],4)}, {v(Bh[k],4)}, {'0' if k == 0 else v(KT[T],4)}" for k in range(4)]
    E128 = cexp(128); E512 = cexp(512)
    V = [None] * 8
    V[0] = W
    for i in (1, 2, 3): V[i] = cmul(V[i-1], E128)
    for i in range(4, 8): V[i] = cmul(V[i-4], E512)
    V8 = cmul(V[4], E512); V12 = cmul(V8, E512)
    chain(V8, E128, (0, 1, 4, 5))
    chain(V12, E128, (8, 9, 12, 13, 2))
    for z in (V8, V12, E128, E512): R.rel(z, 2)
    tile_reads()
    E1 = cexp(1)
    E2 = cmul(E1, E1); E4 = cmul(E2, E2)
    A("s_waitcnt lgkmcnt(0)")
    pending += tile_mfmas(2)
    chain(V[2], E2, (0, 1, 4, 5))
    chain(V[3], E2, (8, 9, 12, 13))
    for q in range(4):
        chain(V[4 + q], E4, (4 * q + 2, 4 * q + 3))
    drain(100)
    tile_reads()
    z1 = cmul(V[0], E1); z2 = cmul(z1, E1)
    A("s_waitcnt lgkmcnt(0)")
    pending += tile_mfmas(1)
    swrite(V[0], 0); swrite(z1, 1)
    chain(z2, E1, range(2, 8))
    chain(V[1], E1, range(8, 16))
    drain(100)
    tile_reads()
    a0 = R.alloc(); a3 = R.alloc(); a3g = R.alloc(); a2 = R.alloc(); a1 = R.alloc(); a1s = R.alloc()
    A(f"v_lshrrev_b32 {v(vT)}, 1, {v(vQ)}")
    A(f"v_lshlrev_b32 {v(vT)}, 8, {v(vT)}")
    A(f"v_and_b32 {v(vT2)}, 1, {v(vQ)}")
    A(f"v_lshl_add_u32 {v(vT)}, {v(vT2)}, 3, {v(vT)}")
    A(f"v_lshl_add_u32 {v(vT)}, {v(vI)}, 4, {v(vT)}")
    A(f"v_sub_u32 {v(vT)}, {sKR}, {v(vT)}")
    A(f"v_add_u32 {v(a0)}, 4088, {v(vT)}")
    A(f"v_add_u32 {v(a1)}, {2*(2045-256)}, {v(vT)}")
    A(f"v_lshlrev_b32 {v(vT)}, 9, {v(vQ)}")
    A(f"v_lshl_add_u32 {v(vT)}, {v(vI)}, 4, {v(vT)}")
    A(f"v_sub_u32 {v(a3)}, {sKR}, {v(vT)}")
    A(f"v_add_u32 {v(a3)}, {2040 - 256}, {v(a3)}")
    A(f"v_and_b32 {v(vT2)}, 1, {v(vI)}")
    A(f"v_lshl_add_u32 {v(a3g)}, {v(vT2)}, 1, {v(a3)}")
    A(f"v_subrev_u32 {v(a3g)}, 2, {v(a3g)}")
    A(f"v_lshlrev_b32 {v(vT)}, 8, {v(vQ)}")
    A(f"v_lshl_add_u32 {v(vT)}, {v(vI)}, 4, {v(vT)}")
    A(f"v_sub_u32 {v(a2)}, {sKR}, {v(vT)}")
    A(f"v_add_u32 {v(a2)}, 3060, {v(a2)}")
    A(f"v_cmp_eq_u32 vcc, 0, {v(vLane)}")
    A(f"v_add_u32 {v(a1s)}, 6, {v(a1)}")
    A(f"v_add_u32 {v(vT)}, 2, {v(a1)}")
    A(f"v_cndmask_b32 {v(a1s)}, {v(a1s)}, {v(vT)}, vcc")
    A("s_waitcnt lgkmcnt(0)")
    for s in tile_mfmas(0): A(s)
    X1 = Ah[0]; X2 = Ah[1]
    lh1 = A.newlabel("L_k_h1"); lj = A.newlabel("L_k_j")
    A(f"s_cmp_eq_u32 {sHF}, 1")
    A.fence()
    A(f"s_cbranch_scc1 {lh1}")
    A(f"ds_write_b128 {v(vX)}, {v(KT[1],4)}")
    A(f"ds_write_b128 {v(vX)}, {v(KT[2],4)} offset:1024")
    A("s_waitcnt lgkmcnt(0)")
    A("s_barrier")
    A(f"ds_read_b128 {v(X1,4)}, {v(vXp)}")
    A("s_waitcnt lgkmcnt(0)")
    A(f"v_pk_add_f32 {v(X1,2)}, {v(X1,2)}, {v(KT[0],2)}")
    A(f"v_pk_add_f32 {v(X1+2,2)}, {v(X1+2,2)}, {v(KT[0]+2,2)}")
    A(f"v_cvt_pk_bf16_f32 {v(X2)}, {v(X1+3)}, {v(X1+2)}")
    A(f"v_cvt_pk_bf16_f32 {v(X2+1)}, {v(X1+1)}, {v(X1)}")
    A(f"ds_write_b64 {v(a0)}, {v(X2,2)}")
    A(f"s_branch {lj}")
    A.label(lh1)
    A(f"ds_write_b128 {v(vX)}, {v(KT[0],4)}")
    A("s_waitcnt lgkmcnt(0)")
    A("s_barrier")
    A(f"ds_read_b128 {v(X1,4)}, {v(vXp)}")
    A(f"ds_read_b128 {v(X2,4)}, {v(vXp)} offset:1024")
    A("s_waitcnt lgkmcnt(0)")
    for k in range(2):
        A(f"v_pk_add_f32 {v(X1+2*k,2)}, {v(X1+2*k,2)}, {v(KT[1]+2*k,2)}")
        A(f"v_pk_add_f32 {v(X2+2*k,2)}, {v(X2+2*k,2)}, {v(KT[2]+2*k,2)}")
    D = [Ah[2], Ah[2] + 2, Ah[3]]
    for rho in range(3):
        A(f"v_cvt_pk_bf16_f32 {v(D[rho])}, {v(X2+rho)}, {v(X2+rho)}")
        A(f"v_mov_b32 {v(D[rho]+1)}, {v(D[rho])}")
    A(f"ds_write2_b64 {v(a3)}, {v(D[0],2)}, {v(D[0],2)} offset0:32 offset1:33")
    A(f"ds_write2_b64 {v(a3)}, {v(D[1],2)}, {v(D[1],2)} offset0:0 offset1:1")
    A(f"v_mov_b32 {v(vT)}, {sKR}")
    A("s_mov_b64 exec, 1")
    A(f"ds_write_b64 {v(vT)}, {v(D[2],2)}")
    A("s_mov_b64 exec, -1")
    A(f"ds_write_b16 {v(a3g)}, {v(D[0])} offset:256")
    A(f"ds_write_b16 {v(a3g)}, {v(D[1])}")
    E = [Bh[0], Bh[0] + 2, Bh[1]]
    A(f"v_cvt_pk_bf16_f32 {v(E[0])}, {v(X1+3)}, {v(X1+3)}")
    A(f"v_cvt_pk_bf16_f32 {v(E[0]+1)}, {v(X1+3)}, {v(X1+2)}")
    A(f"v_cvt_pk_bf16_f32 {v(E[1])}, {v(X1+2)}, {v(X1+2)}")
    A(f"ds_write2_b32 {v(a2)}, {v(E[0])}, {v(E[0]+1)} offset0:0 offset1:1")
    A(f"ds_write2_b32 {v(a2)}, {v(E[1])}, {v(E[1])} offset0:2 offset1:3")
    A(f"v_cvt_pk_bf16_f32 {v(E[2])}, {v(X1+1)}, {v(X1+1)}")
    A(f"v_cvt_pk_bf16_f32 {v(E[2]+1)}, {v(X1)}, {v(X1)}")
    A(f"ds_write_b16 {v(a1)}, {v(E[2])}")
    A(f"ds_write_b32 {v(a1)}, {v(E[2]+1)} offset:2")
    A(f"ds_write_b16 {v(a1s)}, {v(E[2]+1)}")
    A.label(lj)
    A(f"v_mov_b32 {v(vT2)}, 0")
    A(f"v_min_u32 {v(vT)}, 7, {v(vLane)}")
    A(f"v_lshl_add_u32 {v(vT)}, {v(vT)}, 2, {sUC}")
    A(f"ds_write_b32 {v(vT)}, {v(vT2)} offset:{C0}")
    A(f"v_min_u32 {v(vT)}, 6, {v(vLane)}")
    A(f"v_lshl_add_u32 {v(vT)}, {v(vT)}, 2, {sUC}")
    A(f"ds_write_b32 {v(vT)}, {v(vT2)} offset:{C1}")
    A("s_waitcnt lgkmcnt(0)")

def gen_flag_issue(A, task):
    A(f"v_mbcnt_lo_u32_b32 {v(vTAU)}, -1, 0")
    A(f"v_mbcnt_hi_u32_b32 {v(vTAU)}, -1, {v(vTAU)}")
    A(f"s_mul_i32 {sT0}, {task}, 820")
    A(f"s_lshr_b32 {sT0}, {sT0}, 16")
    A(f"s_lshl_b32 {sT0}, {sT0}, 6")
    A(f"s_add_u32 {sT0}, {sT0}, {WS_FLAG}")
    A(f"v_and_b32 {v(vFA)}, 15, {v(vTAU)}")
    A(f"v_lshl_add_u32 {v(vFA)}, {v(vFA)}, 2, {sT0}")
    A(f"v_mov_b32 {v(vN0)}, 0")
    A(f"global_load_dword {v(vN)}, {v(vN0)}, s[48:49] sc1")
    A(f"global_load_dword {v(vFD)}, {v(vFA)}, s[50:51] sc1")
    A(f"s_lshl_b32 {sT0}, {sHF}, 6")
    A(f"v_add_u32 {v(vTAU)}, {sT0}, {v(vTAU)}")
    A(f"s_lshl_b32 {sT0}, {sD}, 12")
    A(f"s_add_u32 {sT0}, {sT0}, {WS_UT}")
    A(f"v_lshl_add_u32 {v(vUA)}, {v(vTAU)}, 5, {sT0}")

def gen_flag_check(A, nlater):
    lpn = A.newlabel("L_u_pn"); lgo = A.newlabel("L_u_go"); lpl = A.newlabel("L_u_pl"); lok = A.newlabel("L_u_ok")
    A(f"s_waitcnt vmcnt({nlater})")
    A.label(lpn)
    A(f"v_readfirstlane_b32 s52, {v(vN)}")
    A("s_cmp_lg_u32 s52, 0")
    A(f"s_cbranch_scc1 {lgo}")
    A("s_sleep 2")
    A("s_add_u32 s93, s93, 1")
    A("s_cmp_gt_u32 s93, 300000")
    A(f"s_cbranch_scc1 {lgo}")
    A(f"global_load_dword {v(vN)}, {v(vN0)}, s[48:49] sc1")
    A("s_waitcnt vmcnt(0)")
    A(f"s_branch {lpn}")
    A.label(lgo)
    A.label(lpl)
    A(f"v_cmp_ne_u32 vcc, s52, {v(vFD)}")
    A(f"s_cbranch_vccz {lok}")
    A("s_sleep 4")
    A("s_add_u32 s93, s93, 1")
    A("s_cmp_gt_u32 s93, 300000")
    A(f"s_cbranch_scc1 {lok}")
    A(f"global_load_dword {v(vFD)}, {v(vFA)}, s[50:51] sc1")
    A("s_waitcnt vmcnt(0)")
    A(f"s_branch {lpl}")
    A.label(lok)
    A(f"global_load_dwordx4 {v(UD[0],4)}, {v(vUA)}, s[50:51] sc1")
    A(f"global_load_dwordx4 {v(UD[1],4)}, {v(vUA)}, s[50:51] offset:16 sc1")
    A(f"global_load_dword {v(UP)}, {v(vUA)}, s[50:51] offset:-4 sc1")

def gen_conv(A, sc="", sig=None, extra=None, stamp=None):
    R = Regs(1, 160)
    vLane = R.alloc(); vT = R.alloc(); vT2 = R.alloc(); vI = R.alloc(); vQ = R.alloc()
    A(f"v_mbcnt_lo_u32_b32 {v(vLane)}, -1, 0")
    A(f"v_mbcnt_hi_u32_b32 {v(vLane)}, -1, {v(vLane)}")
    A(f"v_and_b32 {v(vI)}, 15, {v(vLane)}")
    A(f"v_lshrrev_b32 {v(vQ)}, 4, {v(vLane)}")
    vK = R.alloc(); vU = [R.alloc() for _ in range(4)]
    A(f"v_lshlrev_b32 {v(vT)}, 5, {v(vI)}")
    A(f"v_lshlrev_b32 {v(vT2)}, 4, {v(vQ)}")
    A(f"v_sub_u32 {v(vK)}, {v(vT2)}, {v(vT)}")
    A(f"s_lshl_b32 {sT0}, {sHF}, 8")
    A(f"s_add_u32 {sT1}, {sT0}, {sKR}")
    A(f"s_add_u32 {sT1}, {sT1}, 480")
    A(f"v_add_u32 {v(vK)}, {sT1}, {v(vK)}")
    A(f"s_add_u32 {sT0}, {sT0}, {sUC}")
    A(f"v_lshlrev_b32 {v(vT)}, 1, {v(vI)}")
    A(f"v_add_u32 {v(vT)}, {v(vT)}, {v(vT2)}")
    A(f"v_and_b32 {v(vT2)}, 1, {v(vI)}")
    A(f"v_cmp_eq_u32 vcc, 0, {v(vT2)}")
    A(f"v_mov_b32 {v(vU[0])}, {C0 + 2}")
    A(f"v_mov_b32 {v(vU[1])}, {C1}")
    A(f"v_cndmask_b32 {v(vU[0])}, {v(vU[0])}, {v(vU[1])}, vcc")
    A(f"v_add3_u32 {v(vU[0])}, {v(vU[0])}, {v(vT)}, {sT0}")
    for k in range(1, 4):
        A(f"v_add_u32 {v(vU[k])}, {1024*k}, {v(vU[0])}")
    UO = [R.alloc(4, 4) for _ in range(2)]
    A(f"v_cmp_eq_u32 vcc, 0, {v(vTAU)}")
    A(f"v_lshl_add_u32 {v(vT)}, {v(vTAU)}, 5, {sUC}")
    A("s_waitcnt vmcnt(0)")
    A(f"v_cndmask_b32 {v(UP)}, {v(UP)}, 0, vcc")
    A(f"ds_write_b128 {v(vT)}, {v(UD[0],4)} offset:{C0 + 32}")
    A(f"ds_write_b128 {v(vT)}, {v(UD[1],4)} offset:{C0 + 48}")
    seq = [UP] + [UD[0] + k for k in range(4)] + [UD[1] + k for k in range(4)]
    for k in range(8):
        A(f"v_alignbit_b32 {v(UO[k//4] + k%4)}, {v(seq[k+1])}, {v(seq[k])}, 16")
    A(f"ds_write_b128 {v(vT)}, {v(UO[0],4)} offset:{C1 + 28}")
    A(f"ds_write_b128 {v(vT)}, {v(UO[1],4)} offset:{C1 + 44}")
    A("s_waitcnt lgkmcnt(0)")
    sig(vT, vT2)
    for k in range(2): R.rel(UO[k], 4)
    extra_ops = []
    if extra is not None:
        amt = [R.alloc() for _ in range(9)]
        extra_ops = extra(amt)
    if stamp: stamp()
    ACC = [R.alloc(4, 4) for _ in range(8)]
    NKS = 9; NUS = 5
    KS = [R.alloc(4, 4) for _ in range(NKS)]
    US = [R.alloc(4, 4) for _ in range(NUS)]
    ops = []
    for rr in range(4):
        if rr % 2 == 1:
            for m in range(8):
                for phi in range(8 - m): ops.append((rr, m, phi))
        else:
            for m in range(7, -1, -1):
                for phi in range(8 - m): ops.append((rr, m, phi))
    first = {}; last = {}
    for idx, (rr, m, phi) in enumerate(ops):
        for key in (("K", rr, phi), ("U", rr, m)):
            first.setdefault(key, idx); last[key] = idx
    LEAD = 10
    loads = []
    for kind, nslots in (("K", NKS), ("U", NUS)):
        keys = sorted([k for k in first if k[0] == kind], key=lambda k: first[k])
        freeat = [-1] * nslots
        for k in keys:
            s = min(range(nslots), key=lambda s: freeat[s])
            assert freeat[s] < first[k]
            issue = max(freeat[s] + 1, first[k] - LEAD, 0)
            loads.append((issue, first[k], k, s))
            freeat[s] = last[k]
    loads.sort()
    slot = {k: s for (_, _, k, s) in loads}
    issued = []; done_upto = [0]; li = 0; started = set()
    for idx, (rr, m, phi) in enumerate(ops):
        while li < len(loads) and loads[li][0] <= idx:
            _, _, k, s = loads[li]; li += 1
            if k[0] == "K":
                A(f"ds_read_b128 {v(KS[s],4)}, {v(vK)} offset:{64*k[1] + 512*(7-k[2])}")
                issued.append(k)
            else:
                o = 16 * k[1] + 128 * (k[2] & 1)
                A(f"ds_read2_b32 {v(US[s],2)}, {v(vU[k[2]>>1])} offset0:{o} offset1:{o+1}")
                A(f"ds_read2_b32 {v(US[s]+2,2)}, {v(vU[k[2]>>1])} offset0:{o+2} offset1:{o+3}")
                issued.append(k); issued.append(k)
        needpos = max(len(issued) - 1 - issued[::-1].index(k) for k in (("K", rr, phi), ("U", rr, m)))
        if needpos + 1 > done_upto[0]:
            N = min(len(issued) - (needpos + 1), 15)
            A(f"s_waitcnt lgkmcnt({N})")
            done_upto[0] = len(issued) - N
        c = m + phi
        cc = v(ACC[c], 4) if c in started else "0"
        started.add(c)
        A(f"v_mfma_f32_16x16x32_bf16 {v(ACC[c],4)}, {v(US[slot[('U',rr,m)]],4)}, {v(KS[slot[('K',rr,phi)]],4)}, {cc}")
        if extra_ops and idx % 5 == 4: extra_ops.pop(0)()
    if stamp: stamp()
    Xr = [KS[k] for k in range(4)]
    Ur = [US[k] for k in range(4)]
    vX = R.alloc(); vXp = R.alloc()
    A(f"s_lshl_b32 {sT0}, s28, 12")
    A(f"v_lshl_add_u32 {v(vX)}, {v(vLane)}, 4, {sT0}")
    A(f"v_xor_b32 {v(vXp)}, 4096, {v(vX)}")
    A(f"v_add_u32 {v(vX)}, {SB + CX}, {v(vX)}")
    A(f"v_add_u32 {v(vXp)}, {SB + CX}, {v(vXp)}")
    A(f"v_lshlrev_b32 {v(vT)}, 5, {v(vI)}")
    A(f"v_lshl_add_u32 {v(vT)}, {v(vQ)}, 3, {v(vT)}")
    A(f"s_lshl_b32 {sT0}, {sHF}, 11")
    A(f"s_add_u32 {sT1}, {sT0}, {sUC}")
    A(f"v_add_u32 {v(vT2)}, {sT1}, {v(vT)}")
    A(f"s_lshl_b32 {sT1}, {sD}, 12")
    A(f"s_add_u32 {sT1}, {sT1}, {sT0}")
    A(f"v_add_u32 {v(vT)}, {sT1}, {v(vT)}")
    for k in range(4):
        A(f"ds_read_b64 {v(Ur[k],2)}, {v(vT2)} offset:{C0 + 32 + 512*k}")
    lh1 = A.newlabel("L_c_e1"); lj = A.newlabel("L_c_ej")
    A(f"s_cmp_eq_u32 {sHF}, 1")
    A.fence()
    A(f"s_cbranch_scc1 {lh1}")
    for k in range(4):
        A(f"ds_write_b128 {v(vX)}, {v(ACC[4+k],4)} offset:{1024*k}")
    A(f"s_branch {lj}")
    A.label(lh1)
    for k in range(4):
        A(f"ds_write_b128 {v(vX)}, {v(ACC[k],4)} offset:{1024*k}")
    A("s_waitcnt lgkmcnt(0)")
    for k in range(4):
        for j in range(2):
            A(f"v_pk_mov_b32 {v(ACC[k]+2*j,2)}, {v(ACC[4+k]+2*j,2)}, {v(ACC[4+k]+2*j,2)} op_sel:[0,1]")
    A.label(lj)
    A("s_waitcnt lgkmcnt(0)")
    A("s_barrier")
    for k in range(4):
        A(f"ds_read_b128 {v(Xr[k],4)}, {v(vXp)} offset:{1024*k}")
    DS2 = R.alloc(2, 2)
    A(f"v_mov_b32 {v(DS2)}, {v(vDSK)}")
    A(f"v_mov_b32 {v(DS2+1)}, {v(vDSK)}")
    T4 = [KS[4], KS[5]]
    for k in range(4):
        t = T4[k & 1]; u = Ur[k]; x = Xr[k]
        A(f"v_lshlrev_b32 {v(t)}, 16, {v(u)}")
        A(f"v_and_b32 {v(t+1)}, 0xffff0000, {v(u)}")
        A(f"v_lshlrev_b32 {v(t+2)}, 16, {v(u+1)}")
        A(f"v_and_b32 {v(t+3)}, 0xffff0000, {v(u+1)}")
        A(f"v_pk_fma_f32 {v(t,2)}, {v(t,2)}, {v(DS2,2)}, {v(ACC[k],2)}")
        A(f"v_pk_fma_f32 {v(t+2,2)}, {v(t+2,2)}, {v(DS2,2)}, {v(ACC[k]+2,2)}")
        A(f"s_waitcnt lgkmcnt({3-k})")
        A(f"v_pk_add_f32 {v(x,2)}, {v(x,2)}, {v(t,2)}")
        A(f"v_pk_add_f32 {v(x+2,2)}, {v(x+2,2)}, {v(t+2,2)}")
        A(f"v_cvt_pk_bf16_f32 {v(u)}, {v(x)}, {v(x+1)}")
        A(f"v_cvt_pk_bf16_f32 {v(u+1)}, {v(x+2)}, {v(x+3)}")
        A(f"global_store_dwordx2 {v(vT)}, {v(u,2)}, s[50:51] offset:{WS_AT + 512*k} {sc}")
```

```python
import sys, os
AB = set(os.environ.get('AB', '').split(','))
from asmlib import *
TIMER = os.environ.get('TIMER', 's_memtime')
from s4 import v
import s4c, s4g, gemm3, final4
from gemm import gen_zero
from s4b import WS_FLAG, WS_STAMP
from build3 import get_nonce, signal, F_KV, F_PQ, F_AT, F_G, SC, NAME
from build8 import gen_touch, gen_touch_wo, make_wait

NWG = 256

def build(stamp=False, code_bytes=35000):
    A = Asm()
    A.raw(kernel_header(NAME))
    A(f"s_cmp_ge_u32 s2, {NWG}")
    A("s_cbranch_scc1 L_end")
    A("s_mov_b32 s93, 0")
    if "nocodepf" not in AB:
        A("s_getpc_b64 s[76:77]")
        A("s_lshr_b32 s6, s2, 3")
        A("s_cmp_ge_u32 s6, 2")
        A("s_cbranch_scc1 L_nocp")
        A("s_lshl_b32 s6, s6, 15")
        A("v_lshlrev_b32 v250, 7, v0")
        A("v_add_u32 v250, s6, v250")
        A("v_min_u32 v250, CODE_BYTES, v250")
        A("global_load_dword v251, v250, s[76:77]")
        A.label("L_nocp")
    s4g.gen_params1(A)
    A("s_and_b32 s5, s2, 7")
    A("s_lshr_b32 s6, s2, 3")
    A("s_mov_b32 s89, s5")
    A("s_mov_b32 s87, s6")
    A("s_cmp_lt_u32 s6, 8")
    A("s_cbranch_scc1 L_help")
    A("s_sub_u32 s6, s6, 8")
    A("s_and_b32 s7, s6, 3")
    A("s_lshr_b32 s4, s6, 2")
    A("s_lshr_b32 s3, s5, 1")
    A("s_lshl_b32 s3, s3, 2")
    A("s_add_u32 s3, s3, s7")
    A("s_and_b32 s5, s5, 1")
    A("s_mul_i32 s5, s5, 6")
    A("s_add_u32 s4, s4, s5")
    A("s_mul_i32 s92, s3, 12")
    A("s_add_u32 s92, s92, s4")
    A("s_add_u32 s90, s92, 128")
    A("s_mov_b32 s91, 1")
    def pre():
        s4g.gen_params2(A, "s90")
        gen_touch(A, "s89", "s87")
        s4g.gen_kgen(A, "s90", lambda: A("s_waitcnt vmcnt(2)"))
    mid = None
    nv1, lds1 = gemm3.gen_gemm(A, "s3", "s4", sc=SC, stamp_task="s92" if stamp else None, pre=pre, mid=mid,
                               post=lambda: s4g.gen_flag_issue(A, "s90"), post2=lambda n: s4g.gen_flag_check(A, n))
    A("s_lshl_b32 s88, s3, 3")
    A("s_add_u32 s88, s88, s4")
    A("s_lshl_b32 s88, s88, 2")
    A(f"s_add_u32 s88, s88, {F_KV}")
    A("s_lshl_b32 s30, s3, 2")
    A("s_add_u32 s30, s30, s4")
    A("s_lshl_b32 s30, s30, 2")
    A(f"s_add_u32 s30, s30, {F_PQ - 32}")
    A("s_cmp_ge_u32 s4, 8")
    A("s_cselect_b32 s88, s30, s88")
    A.fence()
    A("s_branch L_conv")
    A.label("L_help")
    if stamp: A(f"{TIMER} s[64:65]")
    A("s_load_dwordx2 s[8:9], s[0:1], 0")
    A("s_load_dwordx2 s[12:13], s[0:1], 80")
    A("s_load_dwordx4 s[48:51], s[0:1], 112")
    A("v_lshrrev_b32 v1, 6, v0")
    A("v_readfirstlane_b32 s28, v1")
    A("s_lshl_b32 s3, s6, 3")
    A("s_add_u32 s3, s3, s5")
    A("s_lshl_b32 s90, s3, 1")
    A("s_mov_b32 s91, 2")
    A("s_waitcnt lgkmcnt(0)")
    A(f"""
    s_mov_b32 s10, 2621440
    s_mov_b32 s11, 0x20000
    s_mov_b32 s14, 2457600
    s_mov_b32 s15, 0x20000
    """)
    A("s_cmp_lg_u32 s3, 0")
    A("s_cbranch_scc1 L_pf")
    s4c.gen_nonce(A)
    A.label("L_pf")
    A("s_lshr_b32 s86, s5, 1")
    A("s_lshl_b32 s86, s86, 2")
    A("s_lshr_b32 s29, s6, 1")
    A("s_add_u32 s86, s86, s29")
    A("s_and_b32 s83, s5, 1")
    A("s_lshl_b32 s83, s83, 1")
    A("s_and_b32 s29, s6, 1")
    A("s_add_u32 s83, s83, s29")
    def between():
        s4g.gen_params2(A, "s90")
        A("s_add_u32 s29, s90, 1")
        s4g.gen_params2(A, "s29", PREG=list(range(224, 232)))
        gen_touch(A, "s89", "s87", rb=120)
        return 18
    def after_store():
        if stamp: A(f"{TIMER} s[66:67]")
        A("s_lshl_b32 s88, s83, 6")
        A("s_lshl_b32 s30, s86, 2")
        A("s_add_u32 s88, s88, s30")
        A(f"s_add_u32 s88, s88, {WS_FLAG}")
        signal(A, "s88", 120, 121)
        if stamp: A(f"{TIMER} s[68:69]")
    s4g.gen_transpose(A, "s86", "s83", between=between, after_store=after_store)
    A(f"s_add_u32 s88, s88, {F_G - WS_FLAG}")
    A("s_cmp_lg_u32 s3, 63")
    A("s_cbranch_scc1 L_kc")
    gen_zero(A)
    A.label("L_kc")
    if stamp: A(f"{TIMER} s[70:71]")
    s4g.gen_kgen(A, "s90", lambda: None)
    if stamp:
        A(f"{TIMER} s[72:73]")
        A("s_waitcnt lgkmcnt(0)")
        A(f"s_lshl_b32 s36, s90, 3")
        A(f"s_add_u32 s36, s36, s28")
        A(f"s_lshl_b32 s36, s36, 6")
        A(f"s_add_u32 s36, s36, {WS_STAMP + 0x200000 + 32}")
        A(f"v_mov_b32 v1, s36")
        for k in range(5):
            A(f"v_mov_b32 v2, s{64+2*k}")
            A(f"global_store_dword v1, v2, s[50:51] offset:{4*k}")
    s4g.gen_flag_issue(A, "s90")
    s4g.gen_flag_check(A, 0)
    A.label("L_conv")
    stamps = []
    def cstamp():
        k = len(stamps); stamps.append(k)
        A(f"{TIMER} s[{64+2*k}:{65+2*k}]")
        A("s_waitcnt lgkmcnt(0)")
    if stamp: cstamp()
    def extra(T):
        A("s_lshr_b32 s29, s2, 3")
        A("s_and_b32 s83, s29, 7")
        return final4.gen_wdma(A, "s83", T)
    s4g.gen_conv(A, sc=SC, sig=lambda va, vb: signal(A, "s88", va, vb, have_nonce=True), extra=extra, stamp=cstamp if stamp else None)
    if stamp:
        cstamp()
        A(f"s_lshl_b32 s36, s90, 3")
        A(f"s_add_u32 s36, s36, s28")
        A(f"s_lshl_b32 s36, s36, 6")
        A(f"s_add_u32 s36, s36, {WS_STAMP + 0x200000}")
        A(f"v_mov_b32 v1, s36")
        for k in stamps:
            A(f"v_mov_b32 v2, s{64+2*k}")
            A(f"global_store_dword v1, v2, s[50:51] offset:{4*k}")
    A("s_lshl_b32 s88, s90, 2")
    A(f"s_add_u32 s88, s88, {F_AT}")
    A("s_add_u32 s90, s90, 1")
    A("s_sub_u32 s91, s91, 1")
    A("s_cmp_eq_u32 s91, 0")
    A("s_cbranch_scc1 L_final")
    for k in range(8): A(f"v_mov_b32 v{232+k}, v{224+k}")
    gen_touch_wo(A, "s87")
    A("s_barrier")
    A("s_branch L_kc")
    A.label("L_final")
    A("v_mbcnt_lo_u32_b32 v0, -1, 0")
    A("v_mbcnt_hi_u32_b32 v0, -1, v0")
    A("s_lshl_b32 s29, s28, 6")
    A("v_add_u32 v0, s29, v0")
    A("s_and_b32 s5, s2, 7")
    A("s_lshr_b32 s6, s2, 3")
    A("s_lshr_b32 s3, s6, 3")
    A("s_lshl_b32 s5, s5, 2")
    A("s_add_u32 s3, s3, s5")
    A("s_and_b32 s4, s6, 7")
    nv4, lds4 = final4.gen_final(A, "s3", "s4", sc="sc1", wait=make_wait(A), stamp_task="s2" if stamp else None)
    A.label("L_end")
    A("s_endpgm")
    lds = 163840
    hdr = open("gated_mix__ssm_conv_s4__linear_attn_block__prompt.s.ref").read().split("; Override launch geometry")[0]
    out = hdr
    out += f"; @launch grid=({NWG},1,1) block=(256,1,1) lds={lds}\n"
    out += '.amdgcn_target "amdgcn-amd-amdhsa--gfx950"\n.text\n' + A.text().replace("CODE_BYTES", str(code_bytes))
    out += '.section .rodata,"a"\n' + kernel_desc(NAME, 256, 102, agpr=final4.NAG)
    print("vgpr", nv1, nv4, "lines", len(A.lines))
    return out

if __name__ == "__main__":
    open(sys.argv[1], "w").write(build(len(sys.argv) > 2))
```

```python
import numpy as np, os
from asmlib import *
TIMER = os.environ.get('TIMER', 's_memtime')
from s4 import Regs, v, f2u
from s4b import WS_AT, WS_G, WS_KV, WS_STAMP, WS_FLAG
from final import WS_PQF, PAIR
from final2 import Track
from final4 import WL, WGRP, ATB, NAG, a_, gen_wdma
from build3 import F_KV, F_PQ, F_AT

PADZERO = True
FA0, FA1, FD0, FD1, FD2 = 244, 245, 246, 247, 248

def gen_kvpq_issue(A):
    lsk = A.newlabel("L_kqi")
    A(f"v_mbcnt_lo_u32_b32 {v(FA1)}, -1, 0")
    A(f"v_mbcnt_hi_u32_b32 {v(FA1)}, -1, {v(FA1)}")
    A(f"v_lshlrev_b32 {v(FA0)}, 2, {v(FA1)}")
    A(f"v_add_u32 {v(FA0)}, {F_KV}, {v(FA0)}")
    A("s_and_b32 s29, s2, 7")
    A("s_lshl_b32 s29, s29, 1")
    A("s_lshr_b32 s30, s2, 7")
    A("s_add_u32 s29, s29, s30")
    A("s_lshl_b32 s29, s29, 4")
    A(f"s_add_u32 s29, s29, {F_PQ}")
    A(f"v_and_b32 {v(FA1)}, 3, {v(FA1)}")
    A(f"v_lshl_add_u32 {v(FA1)}, {v(FA1)}, 2, s29")
    A("s_cmp_lg_u32 s28, 0")
    A(f"s_cbranch_scc1 {lsk}")
    A("s_cmp_lg_u32 s91, 1")
    A(f"s_cbranch_scc1 {lsk}")
    kvpq_loads(A)
    A.label(lsk)

def kvpq_loads(A):
    A(f"global_load_dword {v(FD0)}, {v(FA0)}, s[50:51] sc1")
    A(f"global_load_dword {v(FD1)}, {v(FA0)}, s[50:51] offset:256 sc1")
    A(f"global_load_dword {v(FD2)}, {v(FA1)}, s[50:51] sc1")

def check_loop(A, regs, reload):
    l = A.newlabel("L_ck"); lo = A.newlabel("L_cko")
    A("s_cmp_lg_u32 s28, 0")
    A(f"s_cbranch_scc1 {lo}")
    A.label(l)
    A(f"v_cmp_ne_u32 vcc, s52, {v(regs[0])}")
    for r in regs[1:]:
        A(f"v_cmp_ne_u32 s[30:31], s52, {v(r)}")
        A("s_or_b64 vcc, vcc, s[30:31]")
    A("s_cmp_eq_u64 vcc, 0")
    A(f"s_cbranch_scc1 {lo}")
    A("s_sleep 2")
    A("s_add_u32 s93, s93, 1")
    A("s_cmp_gt_u32 s93, 300000")
    A(f"s_cbranch_scc1 {lo}")
    reload()
    A("s_waitcnt vmcnt(0)")
    A(f"s_branch {l}")
    A.label(lo)
    A("s_barrier")

def gen_final(A, rb="s3", cb="s4", sc="sc1", nlater=4, stamp_task=None):
    stamps = []
    def stamp():
        if stamp_task is None: return
        k = len(stamps); stamps.append(k)
        A(f"{TIMER} s[{64+2*k}:{65+2*k}]")
        A("s_waitcnt lgkmcnt(0)"); L.done = len(L.log)
    R = Regs(1, 244)
    L = Track(A, "lgkmcnt", 15); V = Track(A, "vmcnt", 63)
    A("s_load_dwordx2 s[16:17], s[0:1], 104")
    stamp()
    lane = R.alloc(); vi = R.alloc(); vq = R.alloc(); t1 = R.alloc(); t2 = R.alloc(); t3 = R.alloc()
    vPQ = R.alloc(); vMask = R.alloc(); vKW = R.alloc()
    A(f"v_and_b32 {v(lane)}, 63, v0")
    A(f"v_lshlrev_b32 {v(vPQ)}, 4, {v(lane)}")
    A(f"s_mul_i32 s35, s28, {WGRP}")
    A(f"s_add_u32 s35, s35, {WL}")
    A(f"s_mul_i32 s29, {rb}, {4*32*768}")
    A(f"s_mul_i32 s30, s28, {8*768}")
    A(f"s_add_u32 s29, s29, s30")
    A(f"s_add_u32 s29, s29, {WS_PQF}")
    A(f"s_add_u32 s20, s50, s29")
    A(f"s_addc_u32 s21, s51, 0")
    A(f"s_mov_b32 s22, {4*32*768}")
    A(f"s_mov_b32 s23, 0x20000")
    for k in range(4):
        A(f"s_add_u32 s29, s28, {k+1}")
        A(f"s_and_b32 s29, s29, 3")
        A(f"s_mul_i32 s{40+k}, s29, {32*768}")
        A(f"s_add_u32 s{24+k}, s{40+k}, 3072")
    A(f"s_mul_i32 s29, s28, {8*420*4}")
    A(f"s_add_u32 s29, s29, {WS_KV}")
    A(f"s_add_u32 s44, s50, s29")
    A(f"s_addc_u32 s45, s51, 0")
    A(f"s_mov_b32 s46, {8*420*4}")
    A(f"s_mov_b32 s47, 0x20000")
    A("s_mov_b32 s62, -1")
    A("s_mov_b32 s63, 0xffff")
    NPQ = 16
    PQ = [R.alloc(4, 4) for _ in range(NPQ)]
    A("s_mov_b32 exec_lo, 0")
    A("s_mov_b32 exec_hi, 0xffff0000")
    for p in PQ:
        A(f"v_mov_b64 {v(p,2)}, 0")
        A(f"v_mov_b64 {v(p+2,2)}, 0")
    A("s_mov_b64 exec, -1")
    A(f"s_waitcnt vmcnt({nlater})")
    check_loop(A, [FD0, FD1, FD2], lambda: kvpq_loads(A))
    stamp()
    KL = [R.alloc(4, 4) for _ in range(14)]
    for m in range(14):
        if m % 4 == 0: A(f"s_mov_b32 s29, {1024*m}")
        A(f"buffer_load_dwordx4 {v(KL[m],4)}, {v(vPQ)}, s[44:47], s29 offen offset:{1024*(m%4)}")
        V.issue(("KL", m))
    def ldpq(n):
        k, h = divmod(n, 8)
        so = f"s{40+k}" if h < 4 else f"s{24+k}"
        A(f"buffer_load_dwordx4 {v(PQ[n % NPQ],4)}, {v(vPQ)}, s[20:23], {so} offen offset:{768*(h%4)}")
        V.issue(("PQ", n))
    A("s_mov_b64 exec, s[62:63]")
    for n in range(16): ldpq(n)
    A("s_mov_b64 exec, -1")
    A(f"v_and_b32 {v(vi)}, 15, {v(lane)}")
    A(f"v_lshrrev_b32 {v(vq)}, 4, {v(lane)}")
    vr = R.alloc(); vc8 = R.alloc(); VWt = [R.alloc() for _ in range(2)]
    A(f"v_lshrrev_b32 {v(vr)}, 2, {v(vi)}")
    A(f"v_and_b32 {v(vc8)}, 3, {v(vi)}")
    A(f"v_lshl_add_u32 {v(vc8)}, {v(vc8)}, 3, s35")
    A(f"v_lshlrev_b32 {v(t3)}, 3, {v(vr)}")
    WR = [[4 * (5 * f + nt) for nt in range(5)] for f in range(5)]
    for f in range(5):
        for hf in range(2):
            bases = 0; mults = 0
            for rp in range(4):
                idx = 8 * f + 4 * hf + rp
                ho, r = PAIR[idx % 10]
                head = 2 * (idx // 10) + ho
                base = 20 * head + (r if r < 3 else 12 + r - 3)
                mult = 3 if r < 3 else 2
                bases |= base << (8 * rp); mults |= mult << (8 * rp)
            A(f"s_mov_b32 s29, {bases}")
            A(f"s_mov_b32 s30, {mults}")
            A(f"v_bfe_u32 {v(t1)}, s29, {v(t3)}, 8")
            A(f"v_bfe_u32 {v(t2)}, s30, {v(t3)}, 8")
            A(f"v_mad_u32_u24 {v(t1)}, {v(t2)}, {v(vq)}, {v(t1)}")
            A(f"v_mul_u32_u24 {v(t1)}, 160, {v(t1)}")
            A(f"v_add_u32 {v(VWt[hf])}, {v(t1)}, {v(vc8)}")
            for nt in range(5):
                A(f"ds_read_b64_tr_b16 {a_(WR[f][nt] + 2*hf, 2)}, {v(VWt[hf])} offset:{32*nt}")
    R.rel(vr); R.rel(vc8); R.rel(VWt[0]); R.rel(VWt[1])
    vK0 = R.alloc(); vK1 = R.alloc()
    A(f"v_lshrrev_b32 {v(t1)}, 2, {v(vi)}")
    A(f"v_and_b32 {v(t2)}, 3, {v(vi)}")
    A(f"v_min_u32 {v(t3)}, 2, {v(vq)}")
    A(f"v_lshl_add_u32 {v(t3)}, {v(t3)}, 4, s35")
    A(f"v_mad_u32_u24 {v(vK0)}, {v(t1)}, 3, {v(t2)}")
    A(f"v_cmp_eq_u32 vcc, 3, {v(t2)}")
    A(f"v_cndmask_b32 {v(vK0)}, {v(vK0)}, 20, vcc")
    A(f"v_mad_u32_u24 {v(vK0)}, {v(vK0)}, 40, {v(t3)}")
    A(f"v_lshl_add_u32 {v(vK1)}, {v(t1)}, 1, {v(t2)}")
    A(f"v_add_u32 {v(vK1)}, 12, {v(vK1)}")
    A(f"v_cmp_lt_u32 vcc, 1, {v(t2)}")
    A(f"v_cndmask_b32 {v(vK1)}, {v(vK1)}, 20, vcc")
    A(f"v_mad_u32_u24 {v(vK1)}, {v(vK1)}, 40, {v(t3)}")
    A(f"v_cmp_gt_u32 vcc, 2, {v(vq)}")
    A(f"v_cndmask_b32 {v(vMask)}, 0, -1, vcc")
    A(f"v_lshl_add_u32 {v(vKW)}, {v(lane)}, 3, s35")
    A(f"s_mov_b32 s58, {f2u(1e-6)}")
    A("s_waitcnt lgkmcnt(0)")
    for m in range(14):
        V.wait([("KL", m)])
        if m == 0:
            lsg = A.newlabel("L_f_sg")
            A("s_barrier")
            A("s_cmp_lg_u32 s28, 0")
            A(f"s_cbranch_scc1 {lsg}")
            A(f"v_mov_b32 {v(t1)}, s88")
            A(f"v_mov_b32 {v(t2)}, s52")
            A("s_mov_b64 exec, 1")
            A(f"global_store_dword {v(t1)}, {v(t2)}, s[50:51] sc0 sc1")
            A("s_mov_b64 exec, -1")
            A.label(lsg)
        A(f"v_cvt_pk_bf16_f32 {v(KL[m])}, {v(KL[m])}, {v(KL[m]+1)}")
        A(f"v_cvt_pk_bf16_f32 {v(KL[m]+1)}, {v(KL[m]+2)}, {v(KL[m]+3)}")
        A(f"ds_write_b64 {v(vKW)}, {v(KL[m],2)} offset:{512*m}")
        L.issue(("kw", m))
    for k in KL: R.rel(k, 4)
    KF = [[R.alloc(4, 4) for _ in range(2)] for _ in range(8)]
    for h in range(8):
        o = 105 * (h & 1)
        A(f"ds_read2_b64 {v(KF[h][0],4)}, {v(vK0)} offset0:{o} offset1:{o+1}"); L.issue(("K", h))
        A(f"ds_read2_b64 {v(KF[h][1],4)}, {v(vK1)} offset0:{o} offset1:{o+1}"); L.issue(("K", h))
        if h & 1 and h < 7:
            A(f"v_add_u32 {v(vK0)}, 1680, {v(vK0)}")
            A(f"v_add_u32 {v(vK1)}, 1680, {v(vK1)}")
    stamp()
    D = [[R.alloc(4, 4) for _ in range(2)] for _ in range(2)]
    OF = [[R.alloc(4, 4) for _ in range(5)] for _ in range(2)]
    ACC = [R.alloc(4, 4) for _ in range(5)]
    RC = [R.alloc(2, 2) for _ in range(2)]
    vG = R.alloc(); GP = R.alloc(4, 4)
    vATr = R.alloc(); vO8 = R.alloc(); vO16 = R.alloc(); vATg = R.alloc(); vATW = R.alloc(); vGa = R.alloc(); vPW = R.alloc()
    fill = []
    F = fill.append
    F(f"v_lshl_add_u32 {v(vPW)}, {v(lane)}, 4, s35")
    F(f"s_mul_i32 s29, {cb}, 160")
    F(f"s_add_u32 s29, s29, {F_AT}")
    F(f"v_min_u32 {v(FA0)}, 39, {v(lane)}")
    F(f"v_lshl_add_u32 {v(FA0)}, {v(FA0)}, 2, s29")
    F(f"s_lshr_b32 s29, {rb}, 1")
    F(f"s_lshl_b32 s29, s29, 2")
    F(f"s_add_u32 s29, s29, {WS_FLAG}")
    F(f"v_and_b32 {v(FA1)}, 3, {v(lane)}")
    F(f"v_lshl_add_u32 {v(FA1)}, {v(FA1)}, 6, s29")
    F(f"v_lshrrev_b32 {v(t1)}, 2, {v(vi)}")
    F(f"v_lshl_add_u32 {v(t1)}, {v(vq)}, 2, {v(t1)}")
    F(f"v_lshlrev_b32 {v(t1)}, 7, {v(t1)}")
    F(f"v_and_b32 {v(t2)}, 3, {v(vi)}")
    F(f"v_lshl_add_u32 {v(t1)}, {v(t2)}, 3, {v(t1)}")
    F(f"s_lshl_b32 s29, s28, 5")
    F(f"s_add_u32 s29, s29, {ATB}")
    F(f"v_add_u32 {v(vATr)}, s29, {v(t1)}")
    F(f"s_lshl_b32 s29, {rb}, 6")
    F(f"s_lshl_b32 s30, s28, 4")
    F(f"s_add_u32 s29, s29, s30")
    F(f"v_add_u32 {v(t2)}, s29, {v(vi)}")
    F(f"v_lshlrev_b32 {v(vGa)}, 2, {v(t2)}")
    F(f"v_add_u32 {v(vGa)}, {WS_G}, {v(vGa)}")
    F(f"v_mul_u32_u24 {v(t2)}, 1280, {v(t2)}")
    F(f"s_mul_i32 s29, {cb}, 160")
    F(f"v_lshl_add_u32 {v(vO8)}, {v(vq)}, 3, {v(t2)}")
    F(f"v_add_u32 {v(vO8)}, s29, {v(vO8)}")
    F(f"v_and_b32 {v(t1)}, 1, {v(vq)}")
    F(f"v_lshl_add_u32 {v(t2)}, {v(t1)}, 5, {v(t2)}")
    F(f"v_lshrrev_b32 {v(t1)}, 1, {v(vq)}")
    F(f"v_lshl_add_u32 {v(t2)}, {v(t1)}, 4, {v(t2)}")
    F(f"v_add_u32 {v(vO16)}, s29, {v(t2)}")
    F(f"s_mul_i32 s29, s28, 160")
    F(f"v_add_u32 {v(t1)}, s29, {v(lane)}")
    F(f"v_lshrrev_b32 {v(t2)}, 3, {v(t1)}")
    F(f"v_and_b32 {v(t1)}, 7, {v(t1)}")
    F(f"v_lshlrev_b32 {v(t2)}, 12, {v(t2)}")
    F(f"v_lshl_add_u32 {v(t1)}, {v(t1)}, 4, {v(t2)}")
    F(f"s_mul_i32 s29, {cb}, {80*4096}")
    F(f"s_lshl_b32 s30, {rb}, 7")
    F(f"s_add_u32 s29, s29, s30")
    F(f"s_add_u32 s29, s29, {WS_AT}")
    F(f"v_add_u32 {v(vATg)}, s29, {v(t1)}")
    F(f"s_mul_i32 s30, s28, 2560")
    F(f"s_add_u32 s30, s30, {ATB}")
    F(f"v_lshl_add_u32 {v(vATW)}, {v(lane)}, 4, s30")
    def filler(n):
        for _ in range(n):
            if fill: A(fill.pop(0))
    def at_loads():
        A(f"global_load_dword {v(FD0)}, {v(FA0)}, s[50:51] sc1")
        A(f"global_load_dword {v(FD1)}, {v(FA1)}, s[50:51] sc1")
    def O_a(P):
        k, hp = divmod(P, 4)
        V.wait([("PQ", 2 * P + 1)])
        for ho in range(2):
            p = PQ[(2 * P + ho) % NPQ]
            if not PADZERO:
                A(f"v_and_b32 {v(p+2)}, {v(vMask)}, {v(p+2)}")
                A(f"v_and_b32 {v(p+3)}, {v(vMask)}, {v(p+3)}")
        L.wait([("K", 2 * hp + 1)])
        for ho in range(2):
            p = PQ[(2 * P + ho) % NPQ]
            A(f"v_mfma_f32_16x16x32_bf16 {v(D[ho][0],4)}, {v(KF[2*hp+ho][0],4)}, {v(p,4)}, 0")
            A(f"v_mfma_f32_16x16x32_bf16 {v(D[ho][1],4)}, {v(KF[2*hp+ho][1],4)}, {v(p,4)}, 0")
        if 2 * P + 16 < 32:
            A("s_mov_b64 exec, s[62:63]")
            ldpq(2 * P + 16); ldpq(2 * P + 17)
            A("s_mov_b64 exec, -1")
    def O_b(P, ho):
        d0 = D[ho][0]; d1 = D[ho][1]; rc = RC[ho]
        A(f"v_add_f32 {v(rc)}, s58, {v(d0+3)}")
        A(f"v_rcp_f32 {v(rc)}, {v(rc)}")
        A(f"v_pk_mul_f32 {v(d0,2)}, {v(d0,2)}, {v(rc,2)} op_sel:[0,0] op_sel_hi:[1,0]")
        A(f"v_mul_f32 {v(d0+2)}, {v(d0+2)}, {v(rc)}")
        A(f"v_pk_mul_f32 {v(d1,2)}, {v(d1,2)}, {v(rc,2)} op_sel:[0,0] op_sel_hi:[1,0]")
        hp = P % 4; of = OF[(P // 4) & 1]
        dw = lambda k: of[(5 * hp + k) // 4] + (5 * hp + k) % 4
        if ho == 0:
            A(f"v_cvt_pk_bf16_f32 {v(dw(0))}, {v(D[0][0])}, {v(D[0][0]+1)}")
            A(f"v_cvt_pk_bf16_f32 {v(dw(1))}, {v(D[0][1])}, {v(D[0][1]+1)}")
        else:
            A(f"v_cvt_pk_bf16_f32 {v(dw(2))}, {v(D[0][0]+2)}, {v(D[1][0]+2)}")
            A(f"v_cvt_pk_bf16_f32 {v(dw(3))}, {v(D[1][0])}, {v(D[1][0]+1)}")
            A(f"v_cvt_pk_bf16_f32 {v(dw(4))}, {v(D[1][1])}, {v(D[1][1]+1)}")
    def P_step(k, n):
        nt, f = divmod(n, 5)
        c = v(ACC[nt], 4) if f else "0"
        A(f"v_mfma_f32_16x16x32_bf16 {v(ACC[nt],4)}, {a_(WR[f][nt],4)}, {v(OF[k&1][f],4)}, {c}")
        if k < 3 and f == 2 and nt >= 1:
            A(f"ds_write_b128 {v(vPW)}, {v(ACC[nt-1],4)} offset:{8192 + 5120*k + 1024*(nt-1)}"); L.issue(("pw", k, nt - 1))
    for P in range(4):
        O_a(P); filler(12); O_b(P, 0); O_b(P, 1)
    filler(100)
    ATR = [KF[0][0], KF[0][1], KF[1][0]]
    for k in range(4):
        if k == 2:
            V.all()
            lal = A.newlabel("L_al")
            A("s_cmp_lg_u32 s28, 0")
            A(f"s_cbranch_scc1 {lal}")
            at_loads()
            A.label(lal)
        if k == 3:
            A("s_waitcnt vmcnt(0)")
            check_loop(A, [FD0, FD1], at_loads)
            for j in range(3):
                if j == 2: A("s_mov_b64 exec, 0xffffffff")
                A(f"global_load_dwordx4 {v(ATR[j],4)}, {v(vATg)}, s[50:51] {sc}"); V.issue(("AT", j))
                if j < 2: A(f"v_add_u32 {v(vATg)}, {8*4096}, {v(vATg)}")
            A("s_mov_b64 exec, -1")
            for kk in range(4):
                A(f"global_load_dword {v(GP+kk)}, {v(vGa)}, s[50:51] {sc}"); V.issue(("AT", 3 + kk))
                if kk < 3: A(f"v_add_u32 {v(vGa)}, 8192, {v(vGa)}")
        n = 0
        for hp in range(4):
            P = 4 * (k + 1) + hp
            if k < 3: O_a(P)
            for _ in range(3): P_step(k, n); n += 1
            if k < 3: O_b(P, 0)
            for _ in range(2): P_step(k, n); n += 1
            if k < 3: O_b(P, 1)
            for _ in range(1 if hp < 3 else 2): P_step(k, n); n += 1
        if k < 3:
            A(f"ds_write_b128 {v(vPW)}, {v(ACC[4],4)} offset:{8192 + 5120*k + 4096}"); L.issue(("pw", k, 4))
    stamp()
    VR = [t1, t2, t3]
    for o in range(1, 4):
        A(f"s_add_u32 s29, s28, {o}")
        A(f"s_and_b32 s29, s29, 3")
        A(f"s_mul_i32 s29, s29, {WGRP}")
        A(f"s_add_u32 s29, s29, {WL + 8192 + 5120*(3-o)}")
        A(f"v_add_u32 {v(VR[o-1])}, s29, {v(vPQ)}")
    V.all()
    for j in range(3):
        if j == 2: A("s_mov_b64 exec, 0xffffffff")
        A(f"ds_write_b128 {v(vATW)}, {v(ATR[j],4)} offset:{1024*j}")
    A("s_mov_b64 exec, -1")
    A("s_waitcnt lgkmcnt(0)")
    A("s_barrier")
    XP = [[PQ[5 * o + nt] for nt in range(5)] for o in range(3)]
    AT = [KF[2 + nt][0] for nt in range(5)]
    L.log = []; L.done = 0
    for nt in range(5):
        for o in range(3):
            A(f"ds_read_b128 {v(XP[o][nt],4)}, {v(VR[o])} offset:{1024*nt}"); L.issue(("x", nt))
        A(f"ds_read_b64_tr_b16 {v(AT[nt],2)}, {v(vATr)} offset:{2048*nt}"); L.issue(("x", nt))
    G2 = RC[0]; M2 = RC[1]
    A(f"v_add_f32 {v(GP)}, {v(GP)}, {v(GP+1)}")
    A(f"v_add_f32 {v(GP+2)}, {v(GP+2)}, {v(GP+3)}")
    A(f"v_add_f32 {v(vG)}, {v(GP)}, {v(GP+2)}")
    A(f"v_cvt_pk_bf16_f32 {v(vG)}, {v(vG)}, {v(vG)}")
    A(f"v_lshlrev_b32 {v(vG)}, 16, {v(vG)}")
    A(f"v_mul_f32 {v(vG)}, {f2u(-1.4426950408889634)}, {v(vG)}")
    A(f"v_exp_f32 {v(vG)}, {v(vG)}")
    A(f"v_add_f32 {v(vG)}, 1.0, {v(vG)}")
    A(f"v_rcp_f32 {v(vG)}, {v(vG)}")
    A(f"v_cvt_pk_bf16_f32 {v(vG)}, {v(vG)}, {v(vG)}")
    A(f"v_lshlrev_b32 {v(vG)}, 16, {v(vG)}")
    A(f"v_mov_b32 {v(G2)}, {v(vG)}")
    A(f"v_sub_f32 {v(M2)}, 1.0, {v(vG)}")
    A(f"v_cvt_pk_bf16_f32 {v(M2)}, {v(M2)}, {v(M2)}")
    A(f"v_lshlrev_b32 {v(M2)}, 16, {v(M2)}")
    OUT = [OF[0][0], OF[0][1], OF[0][2]]
    for nt in range(5):
        a = ACC[nt]; at = AT[nt]; X = D[nt & 1][0]
        o = OUT[nt // 2] + 2 * (nt % 2)
        L.wait([("x", nt)])
        for j in range(2):
            A(f"v_pk_add_f32 {v(a+2*j,2)}, {v(a+2*j,2)}, {v(XP[0][nt]+2*j,2)}")
            A(f"v_pk_add_f32 {v(XP[1][nt]+2*j,2)}, {v(XP[1][nt]+2*j,2)}, {v(XP[2][nt]+2*j,2)}")
            A(f"v_pk_add_f32 {v(a+2*j,2)}, {v(a+2*j,2)}, {v(XP[1][nt]+2*j,2)}")
            A(f"v_pk_mul_f32 {v(a+2*j,2)}, {v(a+2*j,2)}, {v(M2,2)} op_sel:[0,0] op_sel_hi:[1,0]")
        A(f"v_lshlrev_b32 {v(X)}, 16, {v(at)}")
        A(f"v_and_b32 {v(X+1)}, 0xffff0000, {v(at)}")
        A(f"v_lshlrev_b32 {v(X+2)}, 16, {v(at+1)}")
        A(f"v_and_b32 {v(X+3)}, 0xffff0000, {v(at+1)}")
        A(f"v_pk_fma_f32 {v(a,2)}, {v(X,2)}, {v(G2,2)}, {v(a,2)} op_sel:[0,0,0] op_sel_hi:[1,0,1]")
        A(f"v_pk_fma_f32 {v(a+2,2)}, {v(X+2,2)}, {v(G2,2)}, {v(a+2,2)} op_sel:[0,0,0] op_sel_hi:[1,0,1]")
        A(f"v_cvt_pk_bf16_f32 {v(o)}, {v(a)}, {v(a+1)}")
        A(f"v_cvt_pk_bf16_f32 {v(o+1)}, {v(a+2)}, {v(a+3)}")
        if nt % 2 == 1:
            ob = OUT[nt // 2]
            A(f"v_permlane16_swap_b32 {v(ob)}, {v(ob+2)}")
            A(f"v_permlane16_swap_b32 {v(ob+1)}, {v(ob+3)}")
            A(f"global_store_dwordx4 {v(vO16)}, {v(ob,4)}, s[16:17] offset:{64*(nt//2)}")
        elif nt == 4:
            A(f"global_store_dwordx2 {v(vO8)}, {v(o,2)}, s[16:17] offset:128")
    if stamp_task is not None:
        stamp()
        A("s_waitcnt vmcnt(0)")
        stamp()
        A(f"s_lshl_b32 s36, {stamp_task}, 3")
        A(f"s_add_u32 s36, s36, s28")
        A(f"s_lshl_b32 s36, s36, 6")
        A(f"s_add_u32 s36, s36, {WS_STAMP + 0x100000}")
        A(f"v_mov_b32 v1, s36")
        for k in stamps:
            A(f"v_mov_b32 v2, s{64+2*k}")
            A(f"global_store_dword v1, v2, s[50:51] offset:{4*k}")
    return R.hi
```

```python
import numpy as np, os
from asmlib import *
TIMER = os.environ.get('TIMER', 's_memtime')
from s4 import Regs, v, f2u
from s4b import WS_KV, WS_STAMP
from final import WS_PQF
from gemm2 import phi_pair

SLOT = 18432
BOFF = 8192
NSLOT = 4
GEMM_LDS = SLOT * NSLOT
ABL = set(os.environ.get('GABL', '').split(','))
KVPOS = [0, 1, 2, 5, 6, 3, 4, 7, 8, 9]

def gen_gemm(A, rb="s3", ct="s4", sc="", stamp_task=None, pre=None, post=None, mid=None, post2=None):
    stamps = []
    def stamp():
        if stamp_task is None: return
        k = len(stamps); stamps.append(k)
        A(f"{TIMER} s[{64+2*k}:{65+2*k}]")
    A(f"""
    s_load_dwordx2 s[8:9], s[0:1], 0
    s_load_dwordx2 s[12:13], s[0:1], 80
    s_load_dwordx4 s[48:51], s[0:1], 112
    """)
    stamp()
    ACC = [[4 * (4 * nt + rt) for rt in range(4)] for nt in range(5)]
    AF = [[80 + 36 * p + 4 * rt for rt in range(4)] for p in range(2)]
    BF = [[96 + 36 * p + 4 * nt for nt in range(5)] for p in range(2)]
    vDA = [152, 153]; vDB = [154, 155, 156]; vBe, vBo, vAr = 157, 158, 159
    NV = 160
    lane = 11; t1 = 12; t2 = 13; t3 = 14; vi = 15; vq = 16; t4 = 17; t5 = 18
    A(f"v_and_b32 {v(lane)}, 63, v0")
    A(f"v_lshrrev_b32 {v(t1)}, 6, v0")
    A(f"v_readfirstlane_b32 s28, {v(t1)}")
    A(f"v_and_b32 {v(vi)}, 15, {v(lane)}")
    A(f"v_lshrrev_b32 {v(vq)}, 4, {v(lane)}")
    A(f"s_lshr_b32 s53, s28, 1")
    A(f"s_and_b32 s54, s28, 1")
    A(f"s_mul_i32 s30, {ct}, 160")
    A(f"s_add_u32 s31, s30, {2560 - 160}")
    A(f"s_add_u32 s30, s30, 1280")
    A(f"s_sub_u32 s32, {ct}, 8")
    A(f"s_mul_i32 s32, s32, 320")
    A(f"s_cmp_ge_u32 {ct}, 8")
    A(f"s_cselect_b32 s30, s32, s30")
    A(f"s_cselect_b32 s31, s32, s31")
    kvtab = sum(t << (4 * p) for p, t in enumerate(KVPOS))
    idtab = sum(p << (4 * p) for p in range(10))
    A(f"s_mov_b32 s44, {kvtab & 0xffffffff}")
    A(f"s_mov_b32 s45, {kvtab >> 32}")
    A(f"s_mov_b32 s46, {idtab & 0xffffffff}")
    A(f"s_cselect_b32 s44, s46, s44")
    A(f"s_lshl_b32 s33, {rb}, 7")
    A("s_mov_b32 s47, 0x78")
    A(f"v_lshrrev_b32 {v(t1)}, 2, {v(lane)}")
    A(f"v_lshrrev_b32 {v(t2)}, 4, {v(lane)}")
    A(f"v_lshlrev_b32 {v(t2)}, 1, {v(t2)}")
    A(f"v_lshrrev_b32 {v(t2)}, {v(t2)}, s47")
    A(f"v_xor_b32 {v(t2)}, {v(t2)}, {v(lane)}")
    A(f"v_and_b32 {v(t2)}, 3, {v(t2)}")
    A(f"s_lshl_b32 s34, s28, 5")
    A(f"s_add_u32 s34, s34, s33")
    A(f"v_add_u32 {v(t1)}, s34, {v(t1)}")
    A(f"v_mul_u32_u24 {v(t1)}, 1280, {v(t1)}")
    A(f"v_lshl_add_u32 {v(vDA[0])}, {v(t2)}, 4, {v(t1)}")
    A(f"v_add_u32 {v(vDA[1])}, 20480, {v(vDA[0])}")
    A(f"v_lshrrev_b32 {v(t2)}, 2, {v(vi)}")
    A(f"v_lshlrev_b32 {v(t2)}, 1, {v(t2)}")
    A(f"v_lshrrev_b32 {v(t2)}, {v(t2)}, s47")
    A(f"v_xor_b32 {v(t2)}, {v(t2)}, {v(vq)}")
    A(f"v_and_b32 {v(t2)}, 3, {v(t2)}")
    A(f"v_lshlrev_b32 {v(t1)}, 6, {v(vi)}")
    A(f"v_lshl_add_u32 {v(t1)}, {v(t2)}, 4, {v(t1)}")
    A(f"s_lshl_b32 s34, s53, 12")
    A(f"v_add_u32 {v(vAr)}, s34, {v(t1)}")
    A(f"s_mul_i32 s34, s28, 160")
    for j in range(3):
        A(f"v_add_u32 {v(t1)}, s34, {v(lane)}")
        if j: A(f"v_add_u32 {v(t1)}, {64*j}, {v(t1)}")
        A(f"v_mul_u32_u24 {v(t2)}, 3277, {v(t1)}")
        A(f"v_lshrrev_b32 {v(t2)}, 16, {v(t2)}")
        A(f"v_mul_u32_u24 {v(t3)}, 20, {v(t2)}")
        A(f"v_sub_u32 {v(t1)}, {v(t1)}, {v(t3)}")
        A(f"v_lshrrev_b32 {v(t3)}, 3, {v(t2)}")
        A(f"v_and_b32 {v(t3)}, 1, {v(t3)}")
        A(f"v_lshrrev_b32 {v(t4)}, 1, {v(t1)}")
        A(f"v_xor_b32 {v(t4)}, {v(t4)}, {v(t3)}")
        A(f"v_lshlrev_b32 {v(t4)}, 2, {v(t4)}")
        A(f"v_lshrrev_b64 {v(20,2)}, {v(t4)}, s[44:45]")
        A(f"v_and_b32 {v(t4)}, 15, {v(20)}")
        A(f"v_and_b32 {v(t1)}, 1, {v(t1)}")
        A(f"v_lshl_add_u32 {v(t1)}, {v(t4)}, 1, {v(t1)}")
        A(f"v_cmp_gt_u32 vcc, 10, {v(t1)}")
        A(f"v_mov_b32 {v(t3)}, s31")
        A(f"v_mov_b32 {v(t4)}, s30")
        A(f"v_cndmask_b32 {v(t3)}, {v(t3)}, {v(t4)}, vcc")
        A(f"v_lshl_add_u32 {v(t3)}, {v(t1)}, 4, {v(t3)}")
        A(f"v_mul_u32_u24 {v(t2)}, 3840, {v(t2)}")
        A(f"v_add_u32 {v(vDB[j])}, {v(t2)}, {v(t3)}")
    A(f"v_lshrrev_b32 {v(t1)}, 2, {v(vi)}")
    A(f"v_lshl_add_u32 {v(t1)}, {v(vq)}, 3, {v(t1)}")
    A(f"v_mul_u32_u24 {v(t1)}, 320, {v(t1)}")
    A(f"v_and_b32 {v(t2)}, 3, {v(vi)}")
    A(f"v_lshl_add_u32 {v(t1)}, {v(t2)}, 3, {v(t1)}")
    A(f"s_mul_i32 s34, s54, 160")
    A(f"v_add_u32 {v(t1)}, s34, {v(t1)}")
    A(f"v_and_b32 {v(t2)}, 1, {v(vq)}")
    A(f"v_lshlrev_b32 {v(t2)}, 5, {v(t2)}")
    A(f"v_sub_u32 {v(t3)}, 0, {v(t2)}")
    A("s_cmp_eq_u32 s54, 0")
    A("s_cselect_b64 vcc, -1, 0")
    A(f"v_cndmask_b32 {v(t4)}, {v(t3)}, {v(t2)}, vcc")
    A(f"v_add_u32 {v(vBe)}, {v(t1)}, {v(t4)}")
    A(f"v_sub_u32 {v(vBo)}, {v(t1)}, {v(t4)}")
    A(f"s_lshl_b32 s35, s28, 11")
    A(f"s_mul_i32 s36, s28, 2560")
    A(f"s_add_u32 s36, s36, {BOFF}")
    A("s_waitcnt lgkmcnt(0)")
    A(f"""
    s_mov_b32 s10, 2621440
    s_mov_b32 s11, 0x20000
    s_mov_b32 s14, 2457600
    s_mov_b32 s15, 0x20000
    s_mov_b32 s37, 0
    s_mov_b32 s38, 0
    """)
    def dma(slot, k):
        if k < 2:
            if "A" in ABL: return
            A(f"s_add_u32 m0, s35, {slot*SLOT + 1024*k}")
            A(f"buffer_load_dwordx4 {v(vDA[k])}, s[8:11], s37 offen lds")
            if k == 1: A("s_add_u32 s37, s37, 64")
        else:
            if "B" in ABL: return
            j = k - 2
            A(f"s_add_u32 m0, s36, {slot*SLOT + 1024*j}")
            if j == 2: A("s_mov_b64 exec, 0xffffffff")
            A(f"buffer_load_dwordx4 {v(vDB[j])}, s[12:15], s38 offen lds")
            if j == 2:
                A("s_mov_b64 exec, -1")
                A(f"s_add_u32 s38, s38, {32*3840}")
    def rd(par, slot, k):
        if "rd" in ABL: return
        if k < 4:
            A(f"ds_read_b128 {v(AF[par][k],4)}, {v(vAr)} offset:{slot*SLOT + 1024*k}")
        else:
            nt = k - 4
            base = vBe if nt % 2 == 0 else vBo
            o = slot * SLOT + BOFF + nt * 32
            A(f"ds_read_b64_tr_b16 {v(BF[par][nt],2)}, {v(base)} offset:{o}")
            A(f"ds_read_b64_tr_b16 {v(BF[par][nt]+2,2)}, {v(base)} offset:{o+1280}")
    NV1 = 5 - (2 if "A" in ABL else 0) - (3 if "B" in ABL else 0)
    issued = []
    def prologue_dma():
        issued.append(1)
        for s_ in range(3):
            for k in range(5): dma(s_, k)
    if pre is not None: pre(prologue_dma)
    if not issued: prologue_dma()
    if mid is not None: mid()
    for r in range(80):
        A(f"v_mov_b32 {v(r)}, 0")
    if not os.environ.get("NOPRIO"): A("s_setprio 3")
    A("s_mov_b32 s41, 0")
    A(f"s_waitcnt vmcnt({2*NV1})")
    A("s_barrier")
    for k in range(9): rd(0, 0, k)
    stamp()
    lq = A.newlabel("L_g_q")
    A(f"s_cmp_ge_u32 {ct}, 8")
    A(f"s_cbranch_scc1 {lq}")
    fin = A.newlabel("L_g_fin")
    ns0 = len(stamps)
    for variant in ("kv", "q"):
        del stamps[ns0:]
        if variant == "q": A.label(lq)
        loop = A.newlabel("L_g_loop")
        A.label(loop)
        def mf(nt, rt, par):
            if "mfma" in ABL: return
            a = v(AF[par][rt], 4); b = v(BF[par][nt], 4); c = v(ACC[nt][rt], 4)
            if variant == "kv": A(f"v_mfma_f32_16x16x32_bf16 {c}, {a}, {b}, {c}")
            else: A(f"v_mfma_f32_16x16x32_bf16 {c}, {b}, {a}, {c}")
        for st in range(4):
            par = st & 1; nx = (st + 1) % 4
            A(f"s_waitcnt vmcnt({NV1})")
            A("s_barrier")
            A("s_waitcnt lgkmcnt(0)")
            idx = 0
            extra = {1: [("r", 0)], 2: [("r", 1)], 3: [("r", 4)], 4: [("d", 0)], 5: [("r", 2)], 6: [("r", 3)], 7: [("r", 5)], 8: [("d", 2)],
                     9: [("r", 6)], 10: [("d", 1)], 11: [("r", 7)], 12: [("d", 3)], 13: [("r", 8)], 15: [("d", 4)]}
            for nt in range(5):
                for rt in range(4):
                    mf(nt, rt, par)
                    idx += 1
                    for kind, k in extra.get(idx, []):
                        if kind == "r": rd(par ^ 1, nx, k)
                        else: dma((st + 3) % 4, k)
        A("s_add_u32 s41, s41, 1")
        A("s_cmp_lt_u32 s41, 5")
        A(f"s_cbranch_scc1 {loop}")
        A.fence()
        stamp()
        A(f"s_mov_b32 s56, {f2u(1.4426950408889634)}")
        A(f"s_mov_b32 s57, {f2u(1.4426950408889634)}")
        A(f"s_mov_b32 s58, {f2u(1e-6)}")
        A(f"s_mov_b32 s59, {f2u(1e-6)}")
        A("s_waitcnt lgkmcnt(0)")
        lane = 152; vi = 153; vq = 154; vO = 155
        A(f"v_mbcnt_lo_u32_b32 {v(lane)}, -1, 0")
        A(f"v_mbcnt_hi_u32_b32 {v(lane)}, -1, {v(lane)}")
        A(f"v_and_b32 {v(vi)}, 15, {v(lane)}")
        A(f"v_lshrrev_b32 {v(vq)}, 4, {v(lane)}")
        if variant == "q":
            A("s_waitcnt vmcnt(0)")
            if post is not None: post()
            T = 120
            VO = [124 + k for k in range(5)]
            A(f"s_lshr_b32 s34, s33, 4")
            A(f"s_lshl_b32 s36, s53, 2")
            A(f"s_add_u32 s34, s34, s36")
            A(f"s_lshl_b32 s34, s34, 5")
            A(f"s_sub_u32 s36, {ct}, 8")
            A(f"s_lshl_b32 s36, s36, 3")
            A(f"s_add_u32 s34, s34, s36")
            A(f"s_lshl_b32 s36, s54, 2")
            A(f"s_add_u32 s34, s34, s36")
            A(f"s_mul_i32 s34, s34, 768")
            A(f"s_add_u32 s34, s34, {WS_PQF}")
            A(f"v_lshl_add_u32 {v(vO)}, {v(vi)}, 4, s34")
            for k in range(5):
                A(f"v_add_u32 {v(T)}, {4*k}, {v(vq)}")
                A(f"v_mul_u32_u24 {v(T+1)}, 13108, {v(T)}")
                A(f"v_lshrrev_b32 {v(T+1)}, 16, {v(T+1)}")
                A(f"v_mul_u32_u24 {v(T+2)}, 5, {v(T+1)}")
                A(f"v_sub_u32 {v(T)}, {v(T)}, {v(T+2)}")
                A(f"v_mul_u32_u24 {v(T+1)}, 768, {v(T+1)}")
                A(f"v_lshrrev_b32 {v(T+2)}, 1, {v(T)}")
                A(f"v_lshl_add_u32 {v(T+1)}, {v(T+2)}, 8, {v(T+1)}")
                A(f"v_and_b32 {v(T)}, 1, {v(T)}")
                A(f"v_lshl_add_u32 {v(T+1)}, {v(T)}, 3, {v(T+1)}")
                A(f"v_add_u32 {v(VO[k])}, {v(T+1)}, {v(vO)}")
            vG_ = 130; vL_ = 131; zz = 132
            A(f"v_lshl_add_u32 {v(vG_)}, {v(lane)}, 4, s34")
            A(f"s_mul_i32 s36, s28, 12288")
            A(f"s_sub_u32 s37, s36, s34")
            for k in range(5): A(f"v_add_u32 {v(VO[k])}, s37, {v(VO[k])}")
            A(f"v_lshl_add_u32 {v(vL_)}, {v(lane)}, 4, s36")
            A(f"v_mov_b32 {v(zz)}, 0")
            A(f"v_mov_b32 {v(zz+1)}, 0")
            A(f"v_mul_u32_u24 {v(T)}, 768, {v(vq)}")
            A(f"v_lshl_add_u32 {v(T)}, {v(vi)}, 4, {v(T)}")
            A(f"v_add_u32 {v(T)}, s36, {v(T)}")
            A("s_barrier")
            for rt in range(4):
                A(f"ds_write_b64 {v(T)}, {v(zz,2)} offset:{3072*rt + 520}")
            A("s_mov_b32 s44, s50")
            A("s_mov_b32 s45, s51")
            k = 0
            for rt in range(4):
                for nt in range(5):
                    o = 80 + 2 * (k % 8); tt = 100 + 2 * (k % 4); k += 1
                    a0 = ACC[nt][rt]
                    phi_pair(A, a0, a0 + 1, tt, "s[56:57]", o)
                    phi_pair(A, a0 + 2, a0 + 3, tt, "s[56:57]", o + 1)
                    A(f"ds_write_b64 {v(VO[nt])}, {v(o,2)} offset:{3072*rt}")
                    if rt >= 1 and nt == 1:
                        A("s_waitcnt lgkmcnt(2)")
                        for j in range(3):
                            A(f"global_store_dwordx4 {v(vG_)}, {v(136+4*j,4)}, s[44:45] offset:{1024*j} {sc}")
                        A(f"s_add_u32 s44, s44, {32*768}")
                        A(f"s_addc_u32 s45, s45, 0")
                for j in range(3):
                    A(f"ds_read_b128 {v(136+4*j,4)}, {v(vL_)} offset:{3072*rt + 1024*j}")
                if rt == 1 and post2 is not None: post2(3)
            A("s_waitcnt lgkmcnt(0)")
            for j in range(3):
                A(f"global_store_dwordx4 {v(vG_)}, {v(136+4*j,4)}, s[44:45] offset:{1024*j} {sc}")
            A(f"s_branch {fin}")
        else:
            A("s_waitcnt vmcnt(0)")
            if post is not None: post()
            A("s_barrier")
            if stamp_task is not None: A(f"{TIMER} s[78:79]")
            A(f"s_mul_i32 s34, s53, 20480")
            A(f"v_lshl_add_u32 {v(vO)}, {v(lane)}, 4, s34")
            A(f"v_mov_b32 {v(130)}, 4")
            A(f"global_load_dword {v(131)}, {v(130)}, s[48:49] sc1")
            lw1 = A.newlabel("L_g_wc1"); lwj = A.newlabel("L_g_wcj")
            A("s_cmp_eq_u32 s54, 1")
            A(f"s_cbranch_scc1 {lw1}")
            for wc in range(2):
                if wc: A.label(lw1)
                k = 0
                for nt in (4, 3, 2, 1, 0):
                    src = KVPOS[5 * wc + nt]
                    for rp in range(2):
                        o = 80 + 4 * (k % 4); tt = 100 + 2 * (k % 4); k += 1
                        for h in range(2):
                            a = ACC[nt][2 * rp + h]
                            if src < 5:
                                phi_pair(A, a, a + 1, tt, "s[56:57]", o + 2 * h)
                                phi_pair(A, a + 2, a + 3, tt, "s[56:57]", o + 2 * h + 1)
                            else:
                                A(f"v_cvt_pk_bf16_f32 {v(o+2*h)}, {v(a)}, {v(a+1)}")
                                A(f"v_cvt_pk_bf16_f32 {v(o+2*h+1)}, {v(a+2)}, {v(a+3)}")
                        A(f"ds_write_b128 {v(vO)}, {v(o,4)} offset:{10240*rp + 1024*src}")
                if wc == 0: A(f"s_branch {lwj}")
            A.label(lwj)
            if post2 is not None: post2(1)
            hd = [40, 41]; cp = [42, 43]
            he = [[44 + 4 * j + r for r in range(4)] for j in range(2)]
            rp_ = [[52 + 4 * j + r for r in range(4)] for j in range(2)]
            T = 60
            A(f"s_lshl_b32 s34, s28, 10")
            A(f"v_lshl_add_u32 {v(vO)}, {v(lane)}, 4, s34")
            A("s_waitcnt lgkmcnt(0)")
            A("s_barrier")
            P = [[0, 4], [8, 12]]; Z = [16, 20]
            F = lambda ks, t: 80 + 16 * (ks % 2) + 4 * t
            def rdf(ks):
                A(f"ds_read_b128 {v(F(ks,0),4)}, {v(vO)} offset:{10240*ks}")
                A(f"ds_read_b128 {v(F(ks,1),4)}, {v(vO)} offset:{10240*ks + 1024}")
                A(f"ds_read_b128 {v(F(ks,2),4)}, {v(vO)} offset:{10240*ks + 5120}")
                A(f"ds_read_b128 {v(F(ks,3),4)}, {v(vO)} offset:{10240*ks + 6144}")
            rdf(0); rdf(1)
            ones = 64
            for r in range(4): A(f"v_mov_b32 {v(ones+r)}, 0x3f803f80")
            for ks in range(4):
                A(f"s_waitcnt lgkmcnt({4 if ks < 3 else 0})")
                for a in range(2):
                    for b in range(2):
                        c = v(P[a][b], 4) if ks else "0"
                        A(f"v_mfma_f32_16x16x32_bf16 {v(P[a][b],4)}, {v(F(ks,2+a),4)}, {v(F(ks,b),4)}, {c}")
                for b in range(2):
                    c = v(Z[b], 4) if ks else "0"
                    A(f"v_mfma_f32_16x16x32_bf16 {v(Z[b],4)}, {v(ones,4)}, {v(F(ks,b),4)}, {c}")
                if ks + 2 < 4: rdf(ks + 2)
            KB = 40960
            A(f"s_lshl_b32 s34, s28, 4")
            for j in range(2):
                A(f"v_add_u32 {v(T)}, s34, {v(vi)}")
                if j: A(f"v_add_u32 {v(T)}, 16, {v(T)}")
                A(f"v_mul_u32_u24 {v(hd[j])}, 3277, {v(T)}")
                A(f"v_lshrrev_b32 {v(hd[j])}, 16, {v(hd[j])}")
                A(f"v_mul_u32_u24 {v(T+1)}, 20, {v(hd[j])}")
                A(f"v_sub_u32 {v(T)}, {v(T)}, {v(T+1)}")
                A(f"v_lshlrev_b32 {v(cp[j])}, 2, {v(T)}")
                for r in range(4):
                    A(f"v_lshl_add_u32 {v(T)}, {v(vq)}, 2, s34")
                    A(f"v_add_u32 {v(T)}, {16*j + r}, {v(T)}")
                    A(f"v_mul_u32_u24 {v(he[j][r])}, 3277, {v(T)}")
                    A(f"v_lshrrev_b32 {v(he[j][r])}, 16, {v(he[j][r])}")
                    A(f"v_add_u32 {v(T)}, {v(T)}, {v(he[j][r])}")
                    A(f"v_mul_u32_u24 {v(rp_[j][r])}, 80, {v(T)}")
            A(f"v_mov_b32 {v(T+2)}, 6720")
            A(f"v_mov_b32 {v(T+3)}, 1600")
            lsk = A.newlabel("L_g_sk")
            def put(a, b):
                for r in range(4):
                    tt = 68 + (r % 4)
                    A(f"v_cmp_eq_u32 vcc, {v(he[a][r])}, {v(hd[b])}")
                    A(f"v_add_u32 {v(tt)}, {v(rp_[a][r])}, {v(cp[b])}")
                    A(f"v_cndmask_b32 {v(tt)}, {v(T+2)}, {v(tt)}, vcc")
                    A(f"ds_write_b32 {v(tt)}, {v(P[a][b]+r)} offset:{KB}")
            def putz(b):
                tt = 72 + b
                A(f"v_mul_u32_u24 {v(tt)}, {21*80}, {v(hd[b])}")
                A(f"v_add3_u32 {v(tt)}, {v(tt)}, {v(cp[b])}, {v(T+3)}")
                A(f"ds_write_b32 {v(tt)}, {v(Z[b])} offset:{KB}")
            put(0, 1); put(1, 0); put(1, 1); putz(1)
            A("s_cmp_lg_u32 s28, 0")
            A(f"s_cbranch_scc1 {lsk}")
            put(0, 0); putz(0)
            A.label(lsk)
            A(f"s_mul_i32 s34, {ct}, {4*21*20*4}")
            A(f"s_add_u32 s34, s34, {WS_KV}")
            A(f"s_add_u32 s44, s50, s34")
            A(f"s_addc_u32 s45, s51, 0")
            A(f"s_mov_b32 s46, {4*21*20*4}")
            A(f"s_mov_b32 s47, 0x20000")
            A(f"s_lshl_b32 s34, s28, 8")
            A(f"v_lshl_add_u32 {v(vO)}, {v(lane)}, 2, s34")
            A("s_waitcnt lgkmcnt(0)")
            A("s_barrier")
            for m in range(7):
                A(f"ds_read_b32 {v(80+m)}, {v(vO)} offset:{KB + 1024*m}")
            lz = A.newlabel("L_g_z"); lzo = A.newlabel("L_g_zo")
            if stamp_task is not None: A(f"{TIMER} s[74:75]")
            A.label(lz)
            A("s_waitcnt vmcnt(0)")
            A(f"v_readfirstlane_b32 s34, {v(131)}")
            A("s_cmp_lg_u32 s34, 0")
            A(f"s_cbranch_scc1 {lzo}")
            A("s_sleep 2")
            A("s_add_u32 s93, s93, 1")
            A("s_cmp_gt_u32 s93, 300000")
            A(f"s_cbranch_scc1 {lzo}")
            A(f"global_load_dword {v(131)}, {v(130)}, s[48:49] sc1")
            A(f"s_branch {lz}")
            A.label(lzo)
            if stamp_task is not None: A(f"{TIMER} s[76:77]")
            A("s_waitcnt lgkmcnt(0)")
            for m in range(7):
                if m < 4:
                    A(f"buffer_atomic_add_f32 {v(80+m)}, {v(vO)}, s[44:47], 0 offen offset:{1024*m}")
                else:
                    if m == 4: A("s_mov_b32 s34, 4096")
                    A(f"buffer_atomic_add_f32 {v(80+m)}, {v(vO)}, s[44:47], s34 offen offset:{1024*(m-4)}")
            A(f"s_branch {fin}")
    A.label(fin)
    if stamp_task is not None:
        stamp()
        A("s_waitcnt vmcnt(0)")
        stamp()
        A("s_waitcnt lgkmcnt(0)")
        A(f"s_lshl_b32 s36, {stamp_task}, 3")
        A(f"s_add_u32 s36, s36, s28")
        A(f"s_lshl_b32 s36, s36, 6")
        A(f"s_add_u32 s36, s36, {WS_STAMP}")
        A(f"v_mov_b32 v1, s36")
        for k in stamps + [5, 6, 7]:
            A(f"v_mov_b32 v2, s{64+2*k}")
            A(f"global_store_dword v1, v2, s[50:51] offset:{4*k}")
        A(f"s_getreg_b32 s36, hwreg(HW_REG_HW_ID)")
        A(f"v_mov_b32 v2, s36")
        A(f"global_store_dword v1, v2, s[50:51] offset:56")
        A(f"s_getreg_b32 s36, hwreg(HW_REG_XCC_ID)")
        A(f"v_mov_b32 v2, s36")
        A(f"global_store_dword v1, v2, s[50:51] offset:60")
    return NV, GEMM_LDS
```

```python
import numpy as np, os
from asmlib import *
TIMER = os.environ.get('TIMER', 's_memtime')
from s4 import Regs, v, f2u
from s4b import WS_AT, WS_UT, WS_FLAG, WS_STAMP
from s4f import PREG, gen_params1, gen_params2, gen_transpose

KRS = 4576
KX = 9152
XB = 17344
C0 = 0
C1 = 4164
UCS = 8288
CX = XB + 2 * UCS
ST_ROW = 288
ST_SIZE = 16 * ST_ROW
S4_SIZE = CX + 4 * 4096
SB = 163840 - S4_SIZE
assert SB % 64 == 0
sKR, sST, sUC, sCH, sHF, sD, sT0, sT1 = "s94", "s95", "s96", "s97", "s98", "s99", "s100", "s101"
sSB = "s85"
SB2 = SB - S4_SIZE
vDSK = 239
UD = [160, 164]; UP = 168; vFA = 169; vFD = 170; vN0 = 171; vN = 172; vUA = 173; vTAU = 174

def setup_sregs(A, task):
    A(f"s_lshr_b32 {sCH}, s28, 1")
    A(f"s_and_b32 {sHF}, s28, 1")
    A(f"s_lshl_b32 {sD}, {task}, 1")
    A(f"s_add_u32 {sD}, {sD}, {sCH}")
    A(f"s_mul_i32 {sST}, s28, {ST_SIZE}")
    A(f"s_add_u32 {sST}, {sST}, {XB}")
    A(f"s_add_u32 {sST}, {sST}, {sSB}")
    A(f"s_mul_i32 {sKR}, {sCH}, {KRS}")
    A(f"s_add_u32 {sKR}, {sKR}, {sSB}")
    A(f"s_mul_i32 {sUC}, {sCH}, {UCS}")
    A(f"s_add_u32 {sUC}, {sUC}, {XB}")
    A(f"s_add_u32 {sUC}, {sUC}, {sSB}")

def gen_kgen(A, task, wait_params, hook=None):
    R = Regs(1, 152)
    L2E = f2u(1.4426950408889634)
    L2E_LO = f2u(1.4426950408889634 - float(np.float32(1.4426950408889634)))
    LN2 = f2u(0.6931471805599453)
    INV2PI = f2u(0.15915494309189535)
    setup_sregs(A, task)
    P = list(PREG)
    vLane = R.alloc(); vT = R.alloc(); vT2 = R.alloc(); vI = R.alloc(); vQ = R.alloc()
    A(f"v_mbcnt_lo_u32_b32 {v(vLane)}, -1, 0")
    A(f"v_mbcnt_hi_u32_b32 {v(vLane)}, -1, {v(vLane)}")
    A(f"v_and_b32 {v(vI)}, 15, {v(vLane)}")
    A(f"v_lshrrev_b32 {v(vQ)}, 4, {v(vLane)}")
    vZ = R.alloc(2, 2)
    A(f"v_mov_b32 {v(vZ)}, 0")
    A(f"v_mov_b32 {v(vZ+1)}, 0")
    A(f"v_min_u32 {v(vT)}, 59, {v(vLane)}")
    A(f"v_lshl_add_u32 {v(vT)}, {v(vT)}, 3, {sKR}")
    A(f"ds_write_b64 {v(vT)}, {v(vZ,2)} offset:4096")
    R.rel(vZ, 2)
    SW = [R.alloc() for _ in range(4)]
    A(f"v_lshl_add_u32 {v(SW[0])}, {v(vLane)}, 2, {sST}")
    for k in range(1, 4):
        A(f"v_add_u32 {v(SW[k])}, {4*ST_ROW*k}, {v(SW[0])}")
    vSR = R.alloc()
    A(f"v_mul_u32_u24 {v(vSR)}, {ST_ROW}, {v(vI)}")
    A(f"v_lshl_add_u32 {v(vSR)}, {v(vQ)}, 4, {v(vSR)}")
    A(f"v_add_u32 {v(vSR)}, {sST}, {v(vSR)}")
    vX = R.alloc(); vXp = R.alloc()
    A(f"s_lshl_b32 {sT0}, s28, 11")
    A(f"v_lshl_add_u32 {v(vX)}, {v(vLane)}, 4, {sT0}")
    A(f"v_xor_b32 {v(vXp)}, 2048, {v(vX)}")
    A(f"s_add_u32 {sT0}, {sSB}, {KX}")
    A(f"v_add_u32 {v(vX)}, {sT0}, {v(vX)}")
    A(f"v_add_u32 {v(vXp)}, {sT0}, {v(vXp)}")
    A(f"s_mov_b32 s44, {L2E}")
    A(f"s_mov_b32 s45, {L2E_LO}")
    A(f"s_mov_b32 s46, {LN2}")
    A(f"s_mov_b32 s47, {INV2PI}")
    wait_params()
    for k in range(8):
        A(f"v_lshlrev_b32 {v(P[k])}, 16, {v(P[k])}")
    Are, Aim, Bre, Bim, Cre, Cim, Ldt, Dsk = P
    A(f"v_mul_f32 {v(vT)}, s44, {v(Ldt)}")
    A(f"v_fma_f32 {v(vT2)}, {v(Ldt)}, s44, -{v(vT)}")
    A(f"v_fma_f32 {v(vT2)}, {v(Ldt)}, s45, {v(vT2)}")
    A(f"v_exp_f32 {v(vT)}, {v(vT)}")
    A(f"v_mul_f32 {v(vT2)}, s46, {v(vT2)}")
    A(f"v_fma_f32 {v(vT)}, {v(vT)}, {v(vT2)}, {v(vT)}")
    A(f"v_cvt_pk_bf16_f32 {v(vT)}, {v(vT)}, {v(vT)}")
    A(f"v_lshlrev_b32 {v(Ldt)}, 16, {v(vT)}")
    dt = Ldt
    A(f"v_mul_f32 {v(Are)}, {v(dt)}, {v(Are)}")
    A(f"v_mul_f32 {v(Aim)}, {v(dt)}, {v(Aim)}")
    A(f"v_mul_f32 {v(Are)}, s44, {v(Are)}")
    A(f"v_mul_f32 {v(Aim)}, s47, {v(Aim)}")
    A(f"v_mul_f32 {v(Bre)}, {v(dt)}, {v(Bre)}")
    A(f"v_mul_f32 {v(Bim)}, {v(dt)}, {v(Bim)}")
    W = R.alloc(2, 2)
    A(f"v_mul_f32 {v(W)}, {v(Cre)}, {v(Bre)}")
    A(f"v_fma_f32 {v(W)}, -{v(Cim)}, {v(Bim)}, {v(W)}")
    A(f"v_mul_f32 {v(W+1)}, {v(Cre)}, {v(Bim)}")
    A(f"v_fma_f32 {v(W+1)}, {v(Cim)}, {v(Bre)}, {v(W+1)}")
    def cexp(x, conj=False):
        z = R.alloc(2, 2)
        xs = f2u(float(x))
        if x == 1:
            A(f"v_exp_f32 {v(vT)}, {v(Are)}")
            A(f"v_fract_f32 {v(vT2)}, {v(Aim)}")
        else:
            A(f"v_mul_f32 {v(vT)}, {xs}, {v(Are)}")
            A(f"v_mul_f32 {v(vT2)}, {xs}, {v(Aim)}")
            A(f"v_exp_f32 {v(vT)}, {v(vT)}")
            A(f"v_fract_f32 {v(vT2)}, {v(vT2)}")
        A(f"v_cos_f32 {v(z)}, {v(vT2)}")
        A(f"v_sin_f32 {v(z+1)}, {v(vT2)}")
        A(f"v_mul_f32 {v(z)}, {v(vT)}, {v(z)}")
        A(f"v_mul_f32 {v(z+1)}, {'-' if conj else ''}{v(vT)}, {v(z+1)}")
        return z
    def cmul(x, y, z=None):
        if z is None: z = R.alloc(2, 2)
        assert z != x and z != y
        A(f"v_pk_mul_f32 {v(z,2)}, {v(x,2)}, {v(y,2)} op_sel:[0,0] op_sel_hi:[1,0]")
        A(f"v_pk_fma_f32 {v(z,2)}, {v(x,2)}, {v(y,2)}, {v(z,2)} op_sel:[1,1,0] op_sel_hi:[0,1,1] neg_lo:[1,0,0]")
        return z
    HL = [R.alloc() for _ in range(4)]
    cnt = [0]; pending = []; held = []
    def drain(n=1):
        for _ in range(n):
            if pending: A(pending.pop(0))
    def flush_held():
        if held:
            h, row = held.pop()
            A(f"ds_write_b32 {v(SW[row>>2])}, {v(h)} offset:{ST_ROW*(row&3)}")
    def swrite(x, row):
        hh = HL[cnt[0] % 4]; cnt[0] += 1
        A(f"v_cvt_pk_bf16_f32 {v(hh)}, {v(x)}, {v(x+1)}")
        if held and (held[0][1] >> 2) == (row >> 2):
            h0, r0 = held.pop()
            A(f"ds_write2_b32 {v(SW[row>>2])}, {v(h0)}, {v(hh)} offset0:{72*(r0&3)} offset1:{72*(row&3)}")
        else:
            flush_held()
            held.append((hh, row))
        drain(1)
    tmp = [R.alloc(2, 2) for _ in range(2)]
    def chain(base, step, rows):
        cur = base
        for k, row in enumerate(rows):
            if k > 0: cur = cmul(cur, step, tmp[k & 1])
            swrite(cur, row)
    Y1 = cexp(8, conj=True)
    one = R.alloc(2, 2)
    A(f"v_mov_b32 {v(one)}, 1.0")
    A(f"v_mov_b32 {v(one+1)}, 0")
    swrite(one, 0)
    R.rel(one, 2)
    chain(Y1, Y1, range(1, 8))
    S = cexp(64, conj=True)
    chain(S, Y1, range(8, 16))
    R.rel(Y1, 2); R.rel(S, 2)
    Bh = [R.alloc(4, 4) for _ in range(4)]
    flush_held()
    for k in range(4):
        A(f"ds_read_b128 {v(Bh[k],4)}, {v(vSR)} offset:{64*k}")
    Ah = [R.alloc(4, 4) for _ in range(4)]
    KT = [R.alloc(4, 4) for _ in range(3)]
    def tile_reads():
        flush_held()
        for k in range(4):
            A(f"ds_read_b128 {v(Ah[k],4)}, {v(vSR)} offset:{64*k}")
    def tile_mfmas(T):
        return [f"v_mfma_f32_16x16x32_bf16 {v(KT[T],4)}, {v(Ah[k],4)}, {v(Bh[k],4)}, {'0' if k == 0 else v(KT[T],4)}" for k in range(4)]
    E128 = cexp(128); E512 = cexp(512)
    V = [None] * 8
    V[0] = W
    for i in (1, 2, 3): V[i] = cmul(V[i-1], E128)
    for i in range(4, 8): V[i] = cmul(V[i-4], E512)
    V8 = cmul(V[4], E512); V12 = cmul(V8, E512)
    chain(V8, E128, (0, 1, 4, 5))
    chain(V12, E128, (8, 9, 12, 13, 2))
    for z in (V8, V12, E128, E512): R.rel(z, 2)
    tile_reads()
    E1 = cexp(1)
    E2 = cmul(E1, E1); E4 = cmul(E2, E2)
    A("s_waitcnt lgkmcnt(0)")
    pending += tile_mfmas(2)
    chain(V[2], E2, (0, 1, 4, 5))
    chain(V[3], E2, (8, 9, 12, 13))
    for q in range(4):
        chain(V[4 + q], E4, (4 * q + 2, 4 * q + 3))
    drain(100)
    if hook is not None: hook()
    tile_reads()
    z1 = cmul(V[0], E1); z2 = cmul(z1, E1)
    A("s_waitcnt lgkmcnt(0)")
    pending += tile_mfmas(1)
    swrite(V[0], 0); swrite(z1, 1)
    chain(z2, E1, range(2, 8))
    chain(V[1], E1, range(8, 16))
    drain(100)
    tile_reads()
    a0 = R.alloc(); a3 = R.alloc(); a3g = R.alloc(); a2 = R.alloc(); a1 = R.alloc(); a1s = R.alloc()
    A(f"v_lshrrev_b32 {v(vT)}, 1, {v(vQ)}")
    A(f"v_lshlrev_b32 {v(vT)}, 8, {v(vT)}")
    A(f"v_and_b32 {v(vT2)}, 1, {v(vQ)}")
    A(f"v_lshl_add_u32 {v(vT)}, {v(vT2)}, 3, {v(vT)}")
    A(f"v_lshl_add_u32 {v(vT)}, {v(vI)}, 4, {v(vT)}")
    A(f"v_sub_u32 {v(vT)}, {sKR}, {v(vT)}")
    A(f"v_add_u32 {v(a0)}, 4088, {v(vT)}")
    A(f"v_add_u32 {v(a1)}, {2*(2045-256)}, {v(vT)}")
    A(f"v_lshlrev_b32 {v(vT)}, 9, {v(vQ)}")
    A(f"v_lshl_add_u32 {v(vT)}, {v(vI)}, 4, {v(vT)}")
    A(f"v_sub_u32 {v(a3)}, {sKR}, {v(vT)}")
    A(f"v_add_u32 {v(a3)}, {2040 - 256}, {v(a3)}")
    A(f"v_and_b32 {v(vT2)}, 1, {v(vI)}")
    A(f"v_lshl_add_u32 {v(a3g)}, {v(vT2)}, 1, {v(a3)}")
    A(f"v_subrev_u32 {v(a3g)}, 2, {v(a3g)}")
    A(f"v_lshlrev_b32 {v(vT)}, 8, {v(vQ)}")
    A(f"v_lshl_add_u32 {v(vT)}, {v(vI)}, 4, {v(vT)}")
    A(f"v_sub_u32 {v(a2)}, {sKR}, {v(vT)}")
    A(f"v_add_u32 {v(a2)}, 3060, {v(a2)}")
    A(f"v_cmp_eq_u32 vcc, 0, {v(vLane)}")
    A(f"v_add_u32 {v(a1s)}, 6, {v(a1)}")
    A(f"v_add_u32 {v(vT)}, 2, {v(a1)}")
    A(f"v_cndmask_b32 {v(a1s)}, {v(a1s)}, {v(vT)}, vcc")
    A("s_waitcnt lgkmcnt(0)")
    for s in tile_mfmas(0): A(s)
    X1 = Ah[0]; X2 = Ah[1]
    lh1 = A.newlabel("L_k_h1"); lj = A.newlabel("L_k_j")
    A(f"s_cmp_eq_u32 {sHF}, 1")
    A.fence()
    A(f"s_cbranch_scc1 {lh1}")
    A(f"ds_write_b128 {v(vX)}, {v(KT[1],4)}")
    A(f"ds_write_b128 {v(vX)}, {v(KT[2],4)} offset:1024")
    A("s_waitcnt lgkmcnt(0)")
    A("s_barrier")
    A(f"ds_read_b128 {v(X1,4)}, {v(vXp)}")
    A("s_waitcnt lgkmcnt(0)")
    A(f"v_pk_add_f32 {v(X1,2)}, {v(X1,2)}, {v(KT[0],2)}")
    A(f"v_pk_add_f32 {v(X1+2,2)}, {v(X1+2,2)}, {v(KT[0]+2,2)}")
    A(f"v_cvt_pk_bf16_f32 {v(X2)}, {v(X1+3)}, {v(X1+2)}")
    A(f"v_cvt_pk_bf16_f32 {v(X2+1)}, {v(X1+1)}, {v(X1)}")
    A(f"ds_write_b64 {v(a0)}, {v(X2,2)}")
    A(f"s_branch {lj}")
    A.label(lh1)
    A(f"ds_write_b128 {v(vX)}, {v(KT[0],4)}")
    A("s_waitcnt lgkmcnt(0)")
    A("s_barrier")
    A(f"ds_read_b128 {v(X1,4)}, {v(vXp)}")
    A(f"ds_read_b128 {v(X2,4)}, {v(vXp)} offset:1024")
    A("s_waitcnt lgkmcnt(0)")
    for k in range(2):
        A(f"v_pk_add_f32 {v(X1+2*k,2)}, {v(X1+2*k,2)}, {v(KT[1]+2*k,2)}")
        A(f"v_pk_add_f32 {v(X2+2*k,2)}, {v(X2+2*k,2)}, {v(KT[2]+2*k,2)}")
    D = [Ah[2], Ah[2] + 2, Ah[3]]
    for rho in range(3):
        A(f"v_cvt_pk_bf16_f32 {v(D[rho])}, {v(X2+rho)}, {v(X2+rho)}")
        A(f"v_mov_b32 {v(D[rho]+1)}, {v(D[rho])}")
    A(f"ds_write2_b64 {v(a3)}, {v(D[0],2)}, {v(D[0],2)} offset0:32 offset1:33")
    A(f"ds_write2_b64 {v(a3)}, {v(D[1],2)}, {v(D[1],2)} offset0:0 offset1:1")
    A(f"v_mov_b32 {v(vT)}, {sKR}")
    A("s_mov_b64 exec, 1")
    A(f"ds_write_b64 {v(vT)}, {v(D[2],2)}")
    A("s_mov_b64 exec, -1")
    A(f"ds_write_b16 {v(a3g)}, {v(D[0])} offset:256")
    A(f"ds_write_b16 {v(a3g)}, {v(D[1])}")
    E = [Bh[0], Bh[0] + 2, Bh[1]]
    A(f"v_cvt_pk_bf16_f32 {v(E[0])}, {v(X1+3)}, {v(X1+3)}")
    A(f"v_cvt_pk_bf16_f32 {v(E[0]+1)}, {v(X1+3)}, {v(X1+2)}")
    A(f"v_cvt_pk_bf16_f32 {v(E[1])}, {v(X1+2)}, {v(X1+2)}")
    A(f"ds_write2_b32 {v(a2)}, {v(E[0])}, {v(E[0]+1)} offset0:0 offset1:1")
    A(f"ds_write2_b32 {v(a2)}, {v(E[1])}, {v(E[1])} offset0:2 offset1:3")
    A(f"v_cvt_pk_bf16_f32 {v(E[2])}, {v(X1+1)}, {v(X1+1)}")
    A(f"v_cvt_pk_bf16_f32 {v(E[2]+1)}, {v(X1)}, {v(X1)}")
    A(f"ds_write_b16 {v(a1)}, {v(E[2])}")
    A(f"ds_write_b32 {v(a1)}, {v(E[2]+1)} offset:2")
    A(f"ds_write_b16 {v(a1s)}, {v(E[2]+1)}")
    A.label(lj)
    A(f"v_mov_b32 {v(vT2)}, 0")
    A(f"v_min_u32 {v(vT)}, 7, {v(vLane)}")
    A(f"v_lshl_add_u32 {v(vT)}, {v(vT)}, 2, {sUC}")
    A(f"ds_write_b32 {v(vT)}, {v(vT2)} offset:{C0}")
    A(f"v_min_u32 {v(vT)}, 6, {v(vLane)}")
    A(f"v_lshl_add_u32 {v(vT)}, {v(vT)}, 2, {sUC}")
    A(f"ds_write_b32 {v(vT)}, {v(vT2)} offset:{C1}")
    A("s_waitcnt lgkmcnt(0)")

def gen_flag_issue(A, task):
    A(f"v_mbcnt_lo_u32_b32 {v(vTAU)}, -1, 0")
    A(f"v_mbcnt_hi_u32_b32 {v(vTAU)}, -1, {v(vTAU)}")
    A(f"s_mul_i32 {sT0}, {task}, 820")
    A(f"s_lshr_b32 {sT0}, {sT0}, 16")
    A(f"s_lshl_b32 {sT0}, {sT0}, 6")
    A(f"s_add_u32 {sT0}, {sT0}, {WS_FLAG}")
    A(f"v_and_b32 {v(vFA)}, 15, {v(vTAU)}")
    A(f"v_lshl_add_u32 {v(vFA)}, {v(vFA)}, 2, {sT0}")
    A(f"v_mov_b32 {v(vN0)}, 0")
    A(f"global_load_dword {v(vN)}, {v(vN0)}, s[48:49] sc1")
    A(f"global_load_dword {v(vFD)}, {v(vFA)}, s[50:51] sc1")
    A(f"s_lshl_b32 {sT0}, {sHF}, 6")
    A(f"v_add_u32 {v(vTAU)}, {sT0}, {v(vTAU)}")
    A(f"s_lshl_b32 {sT0}, {sD}, 12")
    A(f"s_add_u32 {sT0}, {sT0}, {WS_UT}")
    A(f"v_lshl_add_u32 {v(vUA)}, {v(vTAU)}, 5, {sT0}")

def gen_flag_check(A, nlater):
    lpn = A.newlabel("L_u_pn"); lgo = A.newlabel("L_u_go"); lpl = A.newlabel("L_u_pl"); lok = A.newlabel("L_u_ok")
    A(f"s_waitcnt vmcnt({nlater})")
    A.label(lpn)
    A(f"v_readfirstlane_b32 s52, {v(vN)}")
    A("s_cmp_lg_u32 s52, 0")
    A(f"s_cbranch_scc1 {lgo}")
    A("s_sleep 2")
    A("s_add_u32 s93, s93, 1")
    A("s_cmp_gt_u32 s93, 300000")
    A(f"s_cbranch_scc1 {lgo}")
    A(f"global_load_dword {v(vN)}, {v(vN0)}, s[48:49] sc1")
    A("s_waitcnt vmcnt(0)")
    A(f"s_branch {lpn}")
    A.label(lgo)
    A.label(lpl)
    A(f"v_cmp_ne_u32 vcc, s52, {v(vFD)}")
    A(f"s_cbranch_vccz {lok}")
    A("s_sleep 4")
    A("s_add_u32 s93, s93, 1")
    A("s_cmp_gt_u32 s93, 300000")
    A(f"s_cbranch_scc1 {lok}")
    A(f"global_load_dword {v(vFD)}, {v(vFA)}, s[50:51] sc1")
    A("s_waitcnt vmcnt(0)")
    A(f"s_branch {lpl}")
    A.label(lok)
    A(f"global_load_dwordx4 {v(UD[0],4)}, {v(vUA)}, s[50:51] sc1")
    A(f"global_load_dwordx4 {v(UD[1],4)}, {v(vUA)}, s[50:51] offset:16 sc1")
    A(f"global_load_dword {v(UP)}, {v(vUA)}, s[50:51] offset:-4 sc1")

def gen_conv(A, sc="", sig=None, extra=None, stamp=None, after_mfma=None):
    R = Regs(1, 160)
    vLane = R.alloc(); vT = R.alloc(); vT2 = R.alloc(); vI = R.alloc(); vQ = R.alloc()
    A(f"v_mbcnt_lo_u32_b32 {v(vLane)}, -1, 0")
    A(f"v_mbcnt_hi_u32_b32 {v(vLane)}, -1, {v(vLane)}")
    A(f"v_and_b32 {v(vI)}, 15, {v(vLane)}")
    A(f"v_lshrrev_b32 {v(vQ)}, 4, {v(vLane)}")
    vK = R.alloc(); vU = [R.alloc() for _ in range(4)]
    A(f"v_lshlrev_b32 {v(vT)}, 5, {v(vI)}")
    A(f"v_lshlrev_b32 {v(vT2)}, 4, {v(vQ)}")
    A(f"v_sub_u32 {v(vK)}, {v(vT2)}, {v(vT)}")
    A(f"s_lshl_b32 {sT0}, {sHF}, 8")
    A(f"s_add_u32 {sT1}, {sT0}, {sKR}")
    A(f"s_add_u32 {sT1}, {sT1}, 480")
    A(f"v_add_u32 {v(vK)}, {sT1}, {v(vK)}")
    A(f"s_add_u32 {sT0}, {sT0}, {sUC}")
    A(f"v_lshlrev_b32 {v(vT)}, 1, {v(vI)}")
    A(f"v_add_u32 {v(vT)}, {v(vT)}, {v(vT2)}")
    A(f"v_and_b32 {v(vT2)}, 1, {v(vI)}")
    A(f"v_cmp_eq_u32 vcc, 0, {v(vT2)}")
    A(f"v_mov_b32 {v(vU[0])}, {C0 + 2}")
    A(f"v_mov_b32 {v(vU[1])}, {C1}")
    A(f"v_cndmask_b32 {v(vU[0])}, {v(vU[0])}, {v(vU[1])}, vcc")
    A(f"v_add3_u32 {v(vU[0])}, {v(vU[0])}, {v(vT)}, {sT0}")
    for k in range(1, 4):
        A(f"v_add_u32 {v(vU[k])}, {1024*k}, {v(vU[0])}")
    UO = [R.alloc(4, 4) for _ in range(2)]
    A(f"v_cmp_eq_u32 vcc, 0, {v(vTAU)}")
    A(f"v_lshl_add_u32 {v(vT)}, {v(vTAU)}, 5, {sUC}")
    A("s_waitcnt vmcnt(0)")
    A(f"v_cndmask_b32 {v(UP)}, {v(UP)}, 0, vcc")
    A(f"ds_write_b128 {v(vT)}, {v(UD[0],4)} offset:{C0 + 32}")
    A(f"ds_write_b128 {v(vT)}, {v(UD[1],4)} offset:{C0 + 48}")
    seq = [UP] + [UD[0] + k for k in range(4)] + [UD[1] + k for k in range(4)]
    for k in range(8):
        A(f"v_alignbit_b32 {v(UO[k//4] + k%4)}, {v(seq[k+1])}, {v(seq[k])}, 16")
    A(f"ds_write_b128 {v(vT)}, {v(UO[0],4)} offset:{C1 + 28}")
    A(f"ds_write_b128 {v(vT)}, {v(UO[1],4)} offset:{C1 + 44}")
    A("s_waitcnt lgkmcnt(0)")
    sig(vT, vT2)
    for k in range(2): R.rel(UO[k], 4)
    extra_ops = []
    if extra is not None:
        amt = [R.alloc() for _ in range(9)]
        extra_ops = extra(amt)
    if stamp: stamp()
    ACC = [R.alloc(4, 4) for _ in range(8)]
    NKS = 9; NUS = 5
    KS = [R.alloc(4, 4) for _ in range(NKS)]
    US = [R.alloc(4, 4) for _ in range(NUS)]
    ops = []
    for rr in range(4):
        if rr % 2 == 1:
            for m in range(8):
                for phi in range(8 - m): ops.append((rr, m, phi))
        else:
            for m in range(7, -1, -1):
                for phi in range(8 - m): ops.append((rr, m, phi))
    first = {}; last = {}
    for idx, (rr, m, phi) in enumerate(ops):
        for key in (("K", rr, phi), ("U", rr, m)):
            first.setdefault(key, idx); last[key] = idx
    LEAD = 10
    loads = []
    for kind, nslots in (("K", NKS), ("U", NUS)):
        keys = sorted([k for k in first if k[0] == kind], key=lambda k: first[k])
        freeat = [-1] * nslots
        for k in keys:
            s = min(range(nslots), key=lambda s: freeat[s])
            assert freeat[s] < first[k]
            issue = max(freeat[s] + 1, first[k] - LEAD, 0)
            loads.append((issue, first[k], k, s))
            freeat[s] = last[k]
    loads.sort()
    slot = {k: s for (_, _, k, s) in loads}
    issued = []; done_upto = [0]; li = 0; started = set()
    for idx, (rr, m, phi) in enumerate(ops):
        while li < len(loads) and loads[li][0] <= idx:
            _, _, k, s = loads[li]; li += 1
            if k[0] == "K":
                A(f"ds_read_b128 {v(KS[s],4)}, {v(vK)} offset:{64*k[1] + 512*(7-k[2])}")
                issued.append(k)
            else:
                o = 16 * k[1] + 128 * (k[2] & 1)
                A(f"ds_read2_b32 {v(US[s],2)}, {v(vU[k[2]>>1])} offset0:{o} offset1:{o+1}")
                A(f"ds_read2_b32 {v(US[s]+2,2)}, {v(vU[k[2]>>1])} offset0:{o+2} offset1:{o+3}")
                issued.append(k); issued.append(k)
        needpos = max(len(issued) - 1 - issued[::-1].index(k) for k in (("K", rr, phi), ("U", rr, m)))
        if needpos + 1 > done_upto[0]:
            N = min(len(issued) - (needpos + 1), 15)
            A(f"s_waitcnt lgkmcnt({N})")
            done_upto[0] = len(issued) - N
        c = m + phi
        cc = v(ACC[c], 4) if c in started else "0"
        started.add(c)
        A(f"v_mfma_f32_16x16x32_bf16 {v(ACC[c],4)}, {v(US[slot[('U',rr,m)]],4)}, {v(KS[slot[('K',rr,phi)]],4)}, {cc}")
        if extra_ops and idx % 5 == 4: extra_ops.pop(0)()
    if stamp: stamp()
    if after_mfma is not None: after_mfma()
    Xr = [KS[k] for k in range(4)]
    Ur = [US[k] for k in range(4)]
    vX = R.alloc(); vXp = R.alloc()
    A(f"s_lshl_b32 {sT0}, s28, 12")
    A(f"v_lshl_add_u32 {v(vX)}, {v(vLane)}, 4, {sT0}")
    A(f"v_xor_b32 {v(vXp)}, 4096, {v(vX)}")
    A(f"s_add_u32 {sT0}, {sSB}, {CX}")
    A(f"v_add_u32 {v(vX)}, {sT0}, {v(vX)}")
    A(f"v_add_u32 {v(vXp)}, {sT0}, {v(vXp)}")
    A(f"v_lshlrev_b32 {v(vT)}, 5, {v(vI)}")
    A(f"v_lshl_add_u32 {v(vT)}, {v(vQ)}, 3, {v(vT)}")
    A(f"s_lshl_b32 {sT0}, {sHF}, 11")
    A(f"s_add_u32 {sT1}, {sT0}, {sUC}")
    A(f"v_add_u32 {v(vT2)}, {sT1}, {v(vT)}")
    A(f"s_lshl_b32 {sT1}, {sD}, 12")
    A(f"s_add_u32 {sT1}, {sT1}, {sT0}")
    A(f"v_add_u32 {v(vT)}, {sT1}, {v(vT)}")
    for k in range(4):
        A(f"ds_read_b64 {v(Ur[k],2)}, {v(vT2)} offset:{C0 + 32 + 512*k}")
    lh1 = A.newlabel("L_c_e1"); lj = A.newlabel("L_c_ej")
    A(f"s_cmp_eq_u32 {sHF}, 1")
    A.fence()
    A(f"s_cbranch_scc1 {lh1}")
    for k in range(4):
        A(f"ds_write_b128 {v(vX)}, {v(ACC[4+k],4)} offset:{1024*k}")
    A(f"s_branch {lj}")
    A.label(lh1)
    for k in range(4):
        A(f"ds_write_b128 {v(vX)}, {v(ACC[k],4)} offset:{1024*k}")
    A("s_waitcnt lgkmcnt(0)")
    for k in range(4):
        for j in range(2):
            A(f"v_pk_mov_b32 {v(ACC[k]+2*j,2)}, {v(ACC[4+k]+2*j,2)}, {v(ACC[4+k]+2*j,2)} op_sel:[0,1]")
    A.label(lj)
    A("s_waitcnt lgkmcnt(0)")
    A("s_barrier")
    for k in range(4):
        A(f"ds_read_b128 {v(Xr[k],4)}, {v(vXp)} offset:{1024*k}")
    DS2 = R.alloc(2, 2)
    A(f"v_mov_b32 {v(DS2)}, {v(vDSK)}")
    A(f"v_mov_b32 {v(DS2+1)}, {v(vDSK)}")
    T4 = [KS[4], KS[5]]
    for k in range(4):
        t = T4[k & 1]; u = Ur[k]; x = Xr[k]
        A(f"v_lshlrev_b32 {v(t)}, 16, {v(u)}")
        A(f"v_and_b32 {v(t+1)}, 0xffff0000, {v(u)}")
        A(f"v_lshlrev_b32 {v(t+2)}, 16, {v(u+1)}")
        A(f"v_and_b32 {v(t+3)}, 0xffff0000, {v(u+1)}")
        A(f"v_pk_fma_f32 {v(t,2)}, {v(t,2)}, {v(DS2,2)}, {v(ACC[k],2)}")
        A(f"v_pk_fma_f32 {v(t+2,2)}, {v(t+2,2)}, {v(DS2,2)}, {v(ACC[k]+2,2)}")
        A(f"s_waitcnt lgkmcnt({3-k})")
        A(f"v_pk_add_f32 {v(x,2)}, {v(x,2)}, {v(t,2)}")
        A(f"v_pk_add_f32 {v(x+2,2)}, {v(x+2,2)}, {v(t+2,2)}")
        A(f"v_cvt_pk_bf16_f32 {v(u)}, {v(x)}, {v(x+1)}")
        A(f"v_cvt_pk_bf16_f32 {v(u+1)}, {v(x+2)}, {v(x+3)}")
        A(f"global_store_dwordx2 {v(vT)}, {v(u,2)}, s[50:51] offset:{WS_AT + 512*k} {sc}")


TP2_ROW = 336
GW = 176
def gen_tile_issue(A, rb, cb):
    A("s_load_dwordx2 s[56:57], s[0:1], 96")
    A("v_and_b32 v1, 63, v0")
    A(f"s_mul_i32 s31, {rb}, {128*1280}")
    A(f"s_mul_i32 s32, {cb}, 320")
    A("s_add_u32 s31, s31, s32")
    A("s_mul_i32 s33, s28, 672")
    A("s_lshl_b32 s34, s33, 4")
    for k in range(11):
        A("v_add_u32 v4, s33, v1")
        if k: A(f"v_add_u32 v4, {64*k}, v4")
        A("v_mul_u32_u24 v5, 3121, v4")
        A("v_lshrrev_b32 v5, 16, v5")
        A("v_mul_u32_u24 v6, 21, v5")
        A("v_sub_u32 v4, v4, v6")
        A("v_min_u32 v4, 19, v4")
        A("v_mul_u32_u24 v5, 1280, v5")
        A("v_lshl_add_u32 v5, v4, 4, v5")
        A(f"s_add_u32 m0, s34, {1024*k}")
        if k == 10: A("s_mov_b64 exec, 0xffffffff")
        A(f"buffer_load_dwordx4 v5, s[8:11], s31 offen lds")
        if k == 10: A("s_mov_b64 exec, -1")
    A("v_and_b32 v2, 15, v1")
    A("v_lshl_add_u32 v6, v2, 1, s32")
    A("s_waitcnt lgkmcnt(0)")
    for k in range(10):
        A(f"global_load_ushort v{GW+2*k}, v6, s[56:57] offset:{32*k}")

def gen_tile_finish(A, rb, cb):
    from s4b import WS_G
    A("v_mbcnt_lo_u32_b32 v1, -1, 0")
    A("v_mbcnt_hi_u32_b32 v1, -1, v1")
    A("v_and_b32 v2, 15, v1")
    A("v_lshrrev_b32 v3, 4, v1")
    A("v_lshrrev_b32 v4, 2, v2")
    A("v_lshl_add_u32 v4, v3, 3, v4")
    A("s_lshl_b32 s32, s28, 5")
    A("v_add_u32 v4, s32, v4")
    A(f"v_mul_u32_u24 v4, {TP2_ROW}, v4")
    A("v_and_b32 v5, 3, v2")
    A("v_lshl_add_u32 v4, v5, 3, v4")
    A(f"s_mul_i32 s31, {cb}, {160*4096}")
    A(f"s_lshl_b32 s32, {rb}, 8")
    A("s_add_u32 s31, s31, s32")
    A("s_lshl_b32 s32, s28, 6")
    A("s_add_u32 s31, s31, s32")
    A(f"s_add_u32 s31, s31, {WS_UT}")
    A("v_lshlrev_b32 v5, 12, v2")
    A("v_lshl_add_u32 v5, v3, 4, v5")
    A("v_add_u32 v5, s31, v5")
    A("s_waitcnt vmcnt(0)")
    for k in range(10):
        A(f"ds_read_b64_tr_b16 v[{8+4*k}:{9+4*k}], v4 offset:{32*k}")
        A(f"ds_read_b64_tr_b16 v[{10+4*k}:{11+4*k}], v4 offset:{32*k + 4*TP2_ROW}")
    for k in range(10):
        A(f"s_waitcnt lgkmcnt({min(15, 18-2*k)})")
        A(f"global_store_dwordx4 v5, v[{8+4*k}:{11+4*k}], s[50:51] sc0 sc1")
        if k < 9: A(f"v_add_u32 v5, {16*4096}, v5")
    for k in range(10):
        A(f"v_lshlrev_b32 v{GW+2*k}, 16, v{GW+2*k}")
    for k in range(10):
        for j in range(4):
            src = 8 + 4 * k + j
            t = 110 + 4 * (j & 1)
            A(f"v_lshlrev_b32 v{t}, 16, v{src}")
            A(f"v_and_b32 v{t+1}, 0xffff0000, v{src}")
            if k == 0:
                A(f"v_pk_mul_f32 v[{100+2*j}:{101+2*j}], v[{t}:{t+1}], v[{GW+2*k}:{GW+1+2*k}] op_sel:[0,0] op_sel_hi:[1,0]")
            else:
                A(f"v_pk_fma_f32 v[{100+2*j}:{101+2*j}], v[{t}:{t+1}], v[{GW+2*k}:{GW+1+2*k}], v[{100+2*j}:{101+2*j}] op_sel:[0,0,0] op_sel_hi:[1,0,1]")
    for op in ("quad_perm:[1,0,3,2]", "quad_perm:[2,3,0,1]", "row_half_mirror", "row_mirror"):
        for r in range(8):
            x = f"v{100+r}"
            A(f"v_add_f32_dpp {x}, {x}, {x} {op} row_mask:0xf bank_mask:0xf")
    A(f"s_lshl_b32 s31, {cb}, 13")
    A(f"s_lshl_b32 s32, {rb}, 9")
    A("s_add_u32 s31, s31, s32")
    A("s_lshl_b32 s32, s28, 7")
    A("s_add_u32 s31, s31, s32")
    A(f"s_add_u32 s31, s31, {WS_G}")
    A("v_lshl_add_u32 v5, v3, 5, s31")
    A("s_mov_b32 exec_lo, 0x00010001")
    A("s_mov_b32 exec_hi, 0x00010001")
    A("global_store_dwordx4 v5, v[100:103], s[50:51] sc0 sc1")
    A("global_store_dwordx4 v5, v[104:107], s[50:51] offset:16 sc0 sc1")
    A("s_mov_b64 exec, -1")
```

```python
import sys, os
AB = set(os.environ.get('AB', '').split(','))
from asmlib import *
TIMER = os.environ.get('TIMER', 's_memtime')
from s4 import v
import s4c, s4g, gemm3, final4, final5
from gemm import gen_zero
from s4b import WS_FLAG, WS_STAMP
import build8
from build3 import get_nonce, signal, F_KV, F_PQ, F_AT, F_G, SC, NAME
from build8 import gen_touch, gen_touch_wo
build8.F_G = WS_FLAG
make_wait = build8.make_wait
F_DUMMY = WS_FLAG + 0x3000

NWG = 256

def build(stamp=False, code_bytes=34000):
    A = Asm()
    A.raw(kernel_header(NAME))
    A(f"s_cmp_ge_u32 s2, {NWG}")
    A("s_cbranch_scc1 L_end")
    A("s_mov_b32 s93, 0")
    A("s_getpc_b64 s[76:77]")
    A("s_lshr_b32 s6, s2, 3")
    A("s_cmp_ge_u32 s6, 2")
    A("s_cbranch_scc1 L_nocp")
    A("s_lshl_b32 s6, s6, 15")
    A("v_lshlrev_b32 v250, 7, v0")
    A("v_add_u32 v250, s6, v250")
    A(f"v_min_u32 v250, {code_bytes}, v250")
    A("global_load_dword v251, v250, s[76:77]")
    A.label("L_nocp")
    s4g.gen_params1(A)
    A("s_and_b32 s5, s2, 7")
    A("s_lshr_b32 s6, s2, 3")
    A("s_mov_b32 s89, s5")
    A("s_mov_b32 s87, s6")
    A("s_cmp_lt_u32 s6, 8")
    A("s_cbranch_scc1 L_help")
    A("s_sub_u32 s6, s6, 8")
    A("s_and_b32 s7, s6, 3")
    A("s_lshr_b32 s4, s6, 2")
    A("s_lshr_b32 s3, s5, 1")
    A("s_lshl_b32 s3, s3, 2")
    A("s_add_u32 s3, s3, s7")
    A("s_and_b32 s5, s5, 1")
    A("s_mul_i32 s5, s5, 6")
    A("s_add_u32 s4, s4, s5")
    A("s_mul_i32 s92, s3, 12")
    A("s_add_u32 s92, s92, s4")
    A("s_add_u32 s90, s92, 128")
    A("s_mov_b32 s91, 1")
    A(f"s_mov_b32 s85, {s4g.SB}")
    def pre(pdma):
        s4g.gen_params2(A, "s90")
        gen_touch(A, "s89", "s87")
        s4g.gen_kgen(A, "s90", lambda: A("s_waitcnt vmcnt(2)"))
    nv1, lds1 = gemm3.gen_gemm(A, "s3", "s4", sc=SC, stamp_task="s92" if stamp else None, pre=pre,
                               post=lambda: s4g.gen_flag_issue(A, "s90"), post2=lambda n: s4g.gen_flag_check(A, n))
    A("s_lshl_b32 s88, s3, 3")
    A("s_add_u32 s88, s88, s4")
    A("s_lshl_b32 s88, s88, 2")
    A(f"s_add_u32 s88, s88, {F_KV}")
    A("s_lshl_b32 s30, s3, 2")
    A("s_add_u32 s30, s30, s4")
    A("s_lshl_b32 s30, s30, 2")
    A(f"s_add_u32 s30, s30, {F_PQ - 32}")
    A("s_cmp_ge_u32 s4, 8")
    A("s_cselect_b32 s88, s30, s88")
    A.fence()
    A("s_branch L_conv")
    A.label("L_help")
    if stamp: A(f"{TIMER} s[64:65]")
    A("s_load_dwordx2 s[8:9], s[0:1], 0")
    A("s_load_dwordx2 s[12:13], s[0:1], 80")
    A("s_load_dwordx4 s[48:51], s[0:1], 112")
    A("v_lshrrev_b32 v1, 6, v0")
    A("v_readfirstlane_b32 s28, v1")
    A("s_lshl_b32 s3, s6, 3")
    A("s_add_u32 s3, s3, s5")
    A("s_lshl_b32 s90, s3, 1")
    A("s_add_u32 s90, s90, 1")
    A("s_mov_b32 s91, 2")
    A(f"s_mov_b32 s85, {s4g.SB}")
    A("s_mov_b32 s84, 0")
    A("s_lshr_b32 s86, s5, 1")
    A("s_lshl_b32 s86, s86, 2")
    A("s_lshr_b32 s29, s6, 1")
    A("s_add_u32 s86, s86, s29")
    A("s_and_b32 s83, s5, 1")
    A("s_lshl_b32 s83, s83, 1")
    A("s_and_b32 s29, s6, 1")
    A("s_add_u32 s83, s83, s29")
    A("s_waitcnt lgkmcnt(0)")
    A(f"""
    s_mov_b32 s10, 2621440
    s_mov_b32 s11, 0x20000
    s_mov_b32 s14, 2457600
    s_mov_b32 s15, 0x20000
    """)
    A("s_cmp_lg_u32 s3, 0")
    A("s_cbranch_scc1 L_pf")
    s4c.gen_nonce(A)
    A.label("L_pf")
    s4g.gen_params2(A, "s90")
    A("s_sub_u32 s29, s90, 1")
    s4g.gen_params2(A, "s29", PREG=list(range(224, 232)))
    s4g.gen_tile_issue(A, "s86", "s83")
    gen_touch(A, "s89", "s87", rb=120)
    A("s_waitcnt vmcnt(31)")
    A.label("L_kg")
    s4g.gen_kgen(A, "s90", lambda: None)
    A("s_cmp_eq_u32 s84, 1")
    A("s_cbranch_scc1 L_kdone")
    if stamp: A(f"{TIMER} s[66:67]")
    s4g.gen_tile_finish(A, "s86", "s83")
    if stamp: A(f"{TIMER} s[68:69]")
    A("s_lshl_b32 s88, s83, 6")
    A("s_lshl_b32 s30, s86, 2")
    A("s_add_u32 s88, s88, s30")
    A(f"s_add_u32 s88, s88, {WS_FLAG}")
    signal(A, "s88", 120, 121)
    if stamp: A(f"{TIMER} s[70:71]")
    A("s_cmp_lg_u32 s3, 63")
    A("s_cbranch_scc1 L_nz")
    gen_zero(A)
    A.label("L_nz")
    gen_touch_wo(A, "s87")
    A("v_mov_b32 v223, v239")
    for k in range(8): A(f"v_mov_b32 v{232+k}, v{224+k}")
    A("s_sub_u32 s90, s90, 1")
    A(f"s_mov_b32 s85, {s4g.SB2}")
    A("s_mov_b32 s84, 1")
    A("s_branch L_kg")
    A.label("L_kdone")
    if stamp:
        A(f"{TIMER} s[72:73]")
        A("s_waitcnt lgkmcnt(0)")
        A(f"s_lshl_b32 s36, s90, 3")
        A(f"s_add_u32 s36, s36, s28")
        A(f"s_lshl_b32 s36, s36, 6")
        A(f"s_add_u32 s36, s36, {WS_STAMP + 0x200000 + 32}")
        A(f"v_mov_b32 v1, s36")
        for k in range(5):
            A(f"v_mov_b32 v2, s{64+2*k}")
            A(f"global_store_dword v1, v2, s[50:51] offset:{4*k}")
    A(f"s_mov_b32 s88, {F_DUMMY}")
    A.label("L_fc")
    s4g.gen_flag_issue(A, "s90")
    s4g.gen_flag_check(A, 0)
    A.label("L_conv")
    stamps = []
    def cstamp():
        k = len(stamps); stamps.append(k)
        A(f"{TIMER} s[{64+2*k}:{65+2*k}]")
        A("s_waitcnt lgkmcnt(0)")
    if stamp: cstamp()
    def extra(T):
        A("s_lshr_b32 s29, s2, 3")
        A("s_and_b32 s83, s29, 7")
        ops = final4.gen_wdma(A, "s83", T)
        def guard(f):
            def g():
                l = A.newlabel("L_wg")
                A("s_cmp_lg_u32 s91, 1")
                A(f"s_cbranch_scc1 {l}")
                f()
                A.label(l)
            return g
        return [guard(f) for f in ops]
    s4g.gen_conv(A, sc=SC, sig=lambda va, vb: signal(A, "s88", va, vb, have_nonce=True), extra=extra, stamp=cstamp if stamp else None,
                 after_mfma=lambda: final5.gen_kvpq_issue(A))
    if stamp:
        cstamp()
        A(f"s_lshl_b32 s36, s90, 3")
        A(f"s_add_u32 s36, s36, s28")
        A(f"s_lshl_b32 s36, s36, 6")
        A(f"s_add_u32 s36, s36, {WS_STAMP + 0x200000}")
        A(f"v_mov_b32 v1, s36")
        for k in stamps:
            A(f"v_mov_b32 v2, s{64+2*k}")
            A(f"global_store_dword v1, v2, s[50:51] offset:{4*k}")
    A("s_lshl_b32 s88, s90, 2")
    A(f"s_add_u32 s88, s88, {F_AT}")
    A("s_add_u32 s90, s90, 1")
    A("s_sub_u32 s91, s91, 1")
    A("s_cmp_eq_u32 s91, 0")
    A("s_cbranch_scc1 L_final")
    A("v_mov_b32 v239, v223")
    A(f"s_mov_b32 s85, {s4g.SB}")
    s4g.setup_sregs(A, "s90")
    A("s_branch L_fc")
    A.label("L_final")
    A("v_mbcnt_lo_u32_b32 v0, -1, 0")
    A("v_mbcnt_hi_u32_b32 v0, -1, v0")
    A("s_lshl_b32 s29, s28, 6")
    A("v_add_u32 v0, s29, v0")
    A("s_and_b32 s5, s2, 7")
    A("s_lshr_b32 s6, s2, 3")
    A("s_lshr_b32 s3, s6, 3")
    A("s_lshl_b32 s5, s5, 2")
    A("s_add_u32 s3, s3, s5")
    A("s_and_b32 s4, s6, 7")
    nv4 = final5.gen_final(A, "s3", "s4", nlater=4, stamp_task="s2" if stamp else None)
    A.label("L_end")
    A("s_endpgm")
    lds = 163840
    hdr = open("gated_mix__ssm_conv_s4__linear_attn_block__prompt.s.ref").read().split("; Override launch geometry")[0]
    out = hdr
    out += f"; @launch grid=({NWG},1,1) block=(256,1,1) lds={lds}\n"
    out += '.amdgcn_target "amdgcn-amd-amdhsa--gfx950"\n.text\n' + A.text()
    out += '.section .rodata,"a"\n' + kernel_desc(NAME, 256, 102, agpr=final4.NAG)
    print("vgpr", nv1, nv4, "lines", len(A.lines))
    return out

if __name__ == "__main__":
    open(sys.argv[1], "w").write(build(len(sys.argv) > 2))
```

```python
import numpy as np, os
from asmlib import *
TIMER = os.environ.get('TIMER', 's_memtime')
from s4 import Regs, v, f2u
from s4b import WS_KV, WS_STAMP
from final import WS_PQF
from gemm2 import phi_pair

SLOT = 18432
BOFF = 8192
NSLOT = int(os.environ.get('NSLOT', '6'))
GEMM_LDS = SLOT * NSLOT
ABL = set(os.environ.get('GABL', '').split(','))
KVPOS = [0, 1, 2, 5, 6, 3, 4, 7, 8, 9]

def gen_gemm(A, rb="s3", ct="s4", sc="", stamp_task=None, pre=None, post=None, mid=None, post2=None):
    stamps = []
    def stamp():
        if stamp_task is None: return
        k = len(stamps); stamps.append(k)
        A(f"{TIMER} s[{64+2*k}:{65+2*k}]")
    A(f"""
    s_load_dwordx2 s[8:9], s[0:1], 0
    s_load_dwordx2 s[12:13], s[0:1], 80
    s_load_dwordx4 s[48:51], s[0:1], 112
    """)
    stamp()
    ACC = [[4 * (4 * nt + rt) for rt in range(4)] for nt in range(5)]
    AF = [[80 + 36 * p + 4 * rt for rt in range(4)] for p in range(2)]
    BF = [[96 + 36 * p + 4 * nt for nt in range(5)] for p in range(2)]
    vDA = [152, 153]; vDB = [154, 155, 156]; vBe, vBo, vAr = 157, 158, 159
    vHi = {157: 196, 158: 197, 159: 198}
    NV = 160
    lane = 11; t1 = 12; t2 = 13; t3 = 14; vi = 15; vq = 16; t4 = 17; t5 = 18
    A(f"v_and_b32 {v(lane)}, 63, v0")
    A(f"v_lshrrev_b32 {v(t1)}, 6, v0")
    A(f"v_readfirstlane_b32 s28, {v(t1)}")
    A(f"v_and_b32 {v(vi)}, 15, {v(lane)}")
    A(f"v_lshrrev_b32 {v(vq)}, 4, {v(lane)}")
    A(f"s_lshr_b32 s53, s28, 1")
    A(f"s_and_b32 s54, s28, 1")
    A(f"s_mul_i32 s30, {ct}, 160")
    A(f"s_add_u32 s31, s30, {2560 - 160}")
    A(f"s_add_u32 s30, s30, 1280")
    A(f"s_sub_u32 s32, {ct}, 8")
    A(f"s_mul_i32 s32, s32, 320")
    A(f"s_cmp_ge_u32 {ct}, 8")
    A(f"s_cselect_b32 s30, s32, s30")
    A(f"s_cselect_b32 s31, s32, s31")
    kvtab = sum(t << (4 * p) for p, t in enumerate(KVPOS))
    idtab = sum(p << (4 * p) for p in range(10))
    A(f"s_mov_b32 s44, {kvtab & 0xffffffff}")
    A(f"s_mov_b32 s45, {kvtab >> 32}")
    A(f"s_mov_b32 s46, {idtab & 0xffffffff}")
    A(f"s_cselect_b32 s44, s46, s44")
    A(f"s_lshl_b32 s33, {rb}, 7")
    A("s_mov_b32 s47, 0x78")
    A(f"v_lshrrev_b32 {v(t1)}, 2, {v(lane)}")
    A(f"v_lshrrev_b32 {v(t2)}, 4, {v(lane)}")
    A(f"v_lshlrev_b32 {v(t2)}, 1, {v(t2)}")
    A(f"v_lshrrev_b32 {v(t2)}, {v(t2)}, s47")
    A(f"v_xor_b32 {v(t2)}, {v(t2)}, {v(lane)}")
    A(f"v_and_b32 {v(t2)}, 3, {v(t2)}")
    A(f"s_lshl_b32 s34, s28, 5")
    A(f"s_add_u32 s34, s34, s33")
    A(f"v_add_u32 {v(t1)}, s34, {v(t1)}")
    A(f"v_mul_u32_u24 {v(t1)}, 1280, {v(t1)}")
    A(f"v_lshl_add_u32 {v(vDA[0])}, {v(t2)}, 4, {v(t1)}")
    A(f"v_add_u32 {v(vDA[1])}, 20480, {v(vDA[0])}")
    A(f"v_lshrrev_b32 {v(t2)}, 2, {v(vi)}")
    A(f"v_lshlrev_b32 {v(t2)}, 1, {v(t2)}")
    A(f"v_lshrrev_b32 {v(t2)}, {v(t2)}, s47")
    A(f"v_xor_b32 {v(t2)}, {v(t2)}, {v(vq)}")
    A(f"v_and_b32 {v(t2)}, 3, {v(t2)}")
    A(f"v_lshlrev_b32 {v(t1)}, 6, {v(vi)}")
    A(f"v_lshl_add_u32 {v(t1)}, {v(t2)}, 4, {v(t1)}")
    A(f"s_lshl_b32 s34, s53, 12")
    A(f"v_add_u32 {v(vAr)}, s34, {v(t1)}")
    A(f"s_mul_i32 s34, s28, 160")
    for j in range(3):
        A(f"v_add_u32 {v(t1)}, s34, {v(lane)}")
        if j: A(f"v_add_u32 {v(t1)}, {64*j}, {v(t1)}")
        A(f"v_mul_u32_u24 {v(t2)}, 3277, {v(t1)}")
        A(f"v_lshrrev_b32 {v(t2)}, 16, {v(t2)}")
        A(f"v_mul_u32_u24 {v(t3)}, 20, {v(t2)}")
        A(f"v_sub_u32 {v(t1)}, {v(t1)}, {v(t3)}")
        A(f"v_lshrrev_b32 {v(t3)}, 3, {v(t2)}")
        A(f"v_and_b32 {v(t3)}, 1, {v(t3)}")
        A(f"v_lshrrev_b32 {v(t4)}, 1, {v(t1)}")
        A(f"v_xor_b32 {v(t4)}, {v(t4)}, {v(t3)}")
        A(f"v_lshlrev_b32 {v(t4)}, 2, {v(t4)}")
        A(f"v_lshrrev_b64 {v(20,2)}, {v(t4)}, s[44:45]")
        A(f"v_and_b32 {v(t4)}, 15, {v(20)}")
        A(f"v_and_b32 {v(t1)}, 1, {v(t1)}")
        A(f"v_lshl_add_u32 {v(t1)}, {v(t4)}, 1, {v(t1)}")
        A(f"v_cmp_gt_u32 vcc, 10, {v(t1)}")
        A(f"v_mov_b32 {v(t3)}, s31")
        A(f"v_mov_b32 {v(t4)}, s30")
        A(f"v_cndmask_b32 {v(t3)}, {v(t3)}, {v(t4)}, vcc")
        A(f"v_lshl_add_u32 {v(t3)}, {v(t1)}, 4, {v(t3)}")
        A(f"v_mul_u32_u24 {v(t2)}, 3840, {v(t2)}")
        A(f"v_add_u32 {v(vDB[j])}, {v(t2)}, {v(t3)}")
    A(f"v_lshrrev_b32 {v(t1)}, 2, {v(vi)}")
    A(f"v_lshl_add_u32 {v(t1)}, {v(vq)}, 3, {v(t1)}")
    A(f"v_mul_u32_u24 {v(t1)}, 320, {v(t1)}")
    A(f"v_and_b32 {v(t2)}, 3, {v(vi)}")
    A(f"v_lshl_add_u32 {v(t1)}, {v(t2)}, 3, {v(t1)}")
    A(f"s_mul_i32 s34, s54, 160")
    A(f"v_add_u32 {v(t1)}, s34, {v(t1)}")
    A(f"v_and_b32 {v(t2)}, 1, {v(vq)}")
    A(f"v_lshlrev_b32 {v(t2)}, 5, {v(t2)}")
    A(f"v_sub_u32 {v(t3)}, 0, {v(t2)}")
    A("s_cmp_eq_u32 s54, 0")
    A("s_cselect_b64 vcc, -1, 0")
    A(f"v_cndmask_b32 {v(t4)}, {v(t3)}, {v(t2)}, vcc")
    A(f"v_add_u32 {v(vBe)}, {v(t1)}, {v(t4)}")
    A(f"v_sub_u32 {v(vBo)}, {v(t1)}, {v(t4)}")
    for r, h in vHi.items(): A(f"v_add_u32 {v(h)}, {3*SLOT}, {v(r)}")
    A(f"s_lshl_b32 s35, s28, 11")
    A(f"s_mul_i32 s36, s28, 2560")
    A(f"s_add_u32 s36, s36, {BOFF}")
    A("s_waitcnt lgkmcnt(0)")
    A(f"""
    s_mov_b32 s10, 2621440
    s_mov_b32 s11, 0x20000
    s_mov_b32 s14, 2457600
    s_mov_b32 s15, 0x20000
    s_mov_b32 s37, 0
    s_mov_b32 s38, 0
    """)
    def dma(slot, k):
        if k < 2:
            if "A" in ABL: return
            A(f"s_add_u32 m0, s35, {slot*SLOT + 1024*k}")
            A(f"buffer_load_dwordx4 {v(vDA[k])}, s[8:11], s37 offen lds")
            if k == 1: A("s_add_u32 s37, s37, 64")
        else:
            if "B" in ABL: return
            j = k - 2
            A(f"s_add_u32 m0, s36, {slot*SLOT + 1024*j}")
            if j == 2: A("s_mov_b64 exec, 0xffffffff")
            A(f"buffer_load_dwordx4 {v(vDB[j])}, s[12:15], s38 offen lds")
            if j == 2:
                A("s_mov_b64 exec, -1")
                A(f"s_add_u32 s38, s38, {32*3840}")
    def rd(par, slot, k):
        if "rd" in ABL: return
        hi = slot >= 3
        so = (slot - 3 if hi else slot) * SLOT
        m = (lambda r: vHi[r]) if hi else (lambda r: r)
        if k < 4:
            A(f"ds_read_b128 {v(AF[par][k],4)}, {v(m(vAr))} offset:{so + 1024*k}")
        else:
            nt = k - 4
            base = m(vBe if nt % 2 == 0 else vBo)
            o = so + BOFF + nt * 32
            A(f"ds_read_b64_tr_b16 {v(BF[par][nt],2)}, {v(base)} offset:{o}")
            A(f"ds_read_b64_tr_b16 {v(BF[par][nt]+2,2)}, {v(base)} offset:{o+1280}")
    NV1 = 5 - (2 if "A" in ABL else 0) - (3 if "B" in ABL else 0)
    issued = []
    def prologue_dma():
        issued.append(1)
        for s_ in range(NSLOT - 1):
            for k in range(5): dma(s_, k)
    if pre is not None: pre(prologue_dma)
    if not issued: prologue_dma()
    if mid is not None: mid()
    for r in range(80):
        A(f"v_mov_b32 {v(r)}, 0")
    if not os.environ.get("NOPRIO"): A("s_setprio 3")
    A("s_mov_b32 s41, 0")
    A(f"s_waitcnt vmcnt({(NSLOT-2)*NV1})")
    A("s_barrier")
    for k in range(9): rd(0, 0, k)
    stamp()
    lq = A.newlabel("L_g_q")
    A(f"s_cmp_ge_u32 {ct}, 8")
    A(f"s_cbranch_scc1 {lq}")
    fin = A.newlabel("L_g_fin")
    ns0 = len(stamps)
    for variant in ("kv", "q"):
        del stamps[ns0:]
        if variant == "q": A.label(lq)
        loop = A.newlabel("L_g_loop")
        A.label(loop)
        def mf(nt, rt, par):
            if "mfma" in ABL: return
            a = v(AF[par][rt], 4); b = v(BF[par][nt], 4); c = v(ACC[nt][rt], 4)
            if variant == "kv": A(f"v_mfma_f32_16x16x32_bf16 {c}, {a}, {b}, {c}")
            else: A(f"v_mfma_f32_16x16x32_bf16 {c}, {b}, {a}, {c}")
        lex = A.newlabel("L_g_ex")
        for st in range(NSLOT):
            par = st & 1; nx = (st + 1) % NSLOT
            A(f"s_waitcnt vmcnt({(NSLOT-3)*NV1})")
            A("s_barrier")
            A("s_waitcnt lgkmcnt(0)")
            idx = 0
            extra = {1: [("r", 0)], 2: [("r", 1)], 3: [("r", 4)], 4: [("d", 0)], 5: [("r", 2)], 6: [("r", 3)], 7: [("r", 5)], 8: [("d", 2)],
                     9: [("r", 6)], 10: [("d", 1)], 11: [("r", 7)], 12: [("d", 3)], 13: [("r", 8)], 15: [("d", 4)]}
            for nt in range(5):
                for rt in range(4):
                    mf(nt, rt, par)
                    idx += 1
                    for kind, k in extra.get(idx, []):
                        if kind == "r": rd(par ^ 1, nx, k)
                        else: dma((st + NSLOT - 1) % NSLOT, k)
            if 20 % NSLOT and st == 20 % NSLOT - 1:
                A(f"s_cmp_eq_u32 s41, {20 // NSLOT}")
                A(f"s_cbranch_scc1 {lex}")
        A("s_add_u32 s41, s41, 1")
        A(f"s_cmp_lt_u32 s41, {(20 + NSLOT - 1) // NSLOT}")
        A(f"s_cbranch_scc1 {loop}")
        A.label(lex)
        A.fence()
        stamp()
        A(f"s_mov_b32 s56, {f2u(1.4426950408889634)}")
        A(f"s_mov_b32 s57, {f2u(1.4426950408889634)}")
        A(f"s_mov_b32 s58, {f2u(1e-6)}")
        A(f"s_mov_b32 s59, {f2u(1e-6)}")
        A("s_waitcnt lgkmcnt(0)")
        lane = 152; vi = 153; vq = 154; vO = 155
        A(f"v_mbcnt_lo_u32_b32 {v(lane)}, -1, 0")
        A(f"v_mbcnt_hi_u32_b32 {v(lane)}, -1, {v(lane)}")
        A(f"v_and_b32 {v(vi)}, 15, {v(lane)}")
        A(f"v_lshrrev_b32 {v(vq)}, 4, {v(lane)}")
        if variant == "q":
            A("s_waitcnt vmcnt(0)")
            if post is not None: post()
            T = 120
            VO = [124 + k for k in range(5)]
            A(f"s_lshr_b32 s34, s33, 4")
            A(f"s_lshl_b32 s36, s53, 2")
            A(f"s_add_u32 s34, s34, s36")
            A(f"s_lshl_b32 s34, s34, 5")
            A(f"s_sub_u32 s36, {ct}, 8")
            A(f"s_lshl_b32 s36, s36, 3")
            A(f"s_add_u32 s34, s34, s36")
            A(f"s_lshl_b32 s36, s54, 2")
            A(f"s_add_u32 s34, s34, s36")
            A(f"s_mul_i32 s34, s34, 768")
            A(f"s_add_u32 s34, s34, {WS_PQF}")
            A(f"v_lshl_add_u32 {v(vO)}, {v(vi)}, 4, s34")
            for k in range(5):
                A(f"v_add_u32 {v(T)}, {4*k}, {v(vq)}")
                A(f"v_mul_u32_u24 {v(T+1)}, 13108, {v(T)}")
                A(f"v_lshrrev_b32 {v(T+1)}, 16, {v(T+1)}")
                A(f"v_mul_u32_u24 {v(T+2)}, 5, {v(T+1)}")
                A(f"v_sub_u32 {v(T)}, {v(T)}, {v(T+2)}")
                A(f"v_mul_u32_u24 {v(T+1)}, 768, {v(T+1)}")
                A(f"v_lshrrev_b32 {v(T+2)}, 1, {v(T)}")
                A(f"v_lshl_add_u32 {v(T+1)}, {v(T+2)}, 8, {v(T+1)}")
                A(f"v_and_b32 {v(T)}, 1, {v(T)}")
                A(f"v_lshl_add_u32 {v(T+1)}, {v(T)}, 3, {v(T+1)}")
                A(f"v_add_u32 {v(VO[k])}, {v(T+1)}, {v(vO)}")
            vG_ = 130; vL_ = 131; zz = 132
            A(f"v_lshl_add_u32 {v(vG_)}, {v(lane)}, 4, s34")
            A(f"s_mul_i32 s36, s28, 12288")
            A(f"s_sub_u32 s37, s36, s34")
            for k in range(5): A(f"v_add_u32 {v(VO[k])}, s37, {v(VO[k])}")
            A(f"v_lshl_add_u32 {v(vL_)}, {v(lane)}, 4, s36")
            A(f"v_mov_b32 {v(zz)}, 0")
            A(f"v_mov_b32 {v(zz+1)}, 0")
            A(f"v_mul_u32_u24 {v(T)}, 768, {v(vq)}")
            A(f"v_lshl_add_u32 {v(T)}, {v(vi)}, 4, {v(T)}")
            A(f"v_add_u32 {v(T)}, s36, {v(T)}")
            A("s_barrier")
            for rt in range(4):
                A(f"ds_write_b64 {v(T)}, {v(zz,2)} offset:{3072*rt + 520}")
            A("s_mov_b32 s44, s50")
            A("s_mov_b32 s45, s51")
            k = 0
            for rt in range(4):
                for nt in range(5):
                    o = 80 + 2 * (k % 8); tt = 100 + 2 * (k % 4); k += 1
                    a0 = ACC[nt][rt]
                    phi_pair(A, a0, a0 + 1, tt, "s[56:57]", o)
                    phi_pair(A, a0 + 2, a0 + 3, tt, "s[56:57]", o + 1)
                    A(f"ds_write_b64 {v(VO[nt])}, {v(o,2)} offset:{3072*rt}")
                    if rt >= 1 and nt == 1:
                        A("s_waitcnt lgkmcnt(2)")
                        for j in range(3):
                            A(f"global_store_dwordx4 {v(vG_)}, {v(136+4*j,4)}, s[44:45] offset:{1024*j} {sc}")
                        A(f"s_add_u32 s44, s44, {32*768}")
                        A(f"s_addc_u32 s45, s45, 0")
                for j in range(3):
                    A(f"ds_read_b128 {v(136+4*j,4)}, {v(vL_)} offset:{3072*rt + 1024*j}")
                if rt == 1 and post2 is not None: post2(3)
            A("s_waitcnt lgkmcnt(0)")
            for j in range(3):
                A(f"global_store_dwordx4 {v(vG_)}, {v(136+4*j,4)}, s[44:45] offset:{1024*j} {sc}")
            A(f"s_branch {fin}")
        else:
            A("s_waitcnt vmcnt(0)")
            if post is not None: post()
            A("s_barrier")
            if stamp_task is not None: A(f"{TIMER} s[78:79]")
            A(f"s_mul_i32 s34, s53, 20480")
            A(f"v_lshl_add_u32 {v(vO)}, {v(lane)}, 4, s34")
            A(f"v_mov_b32 {v(130)}, 4")
            A(f"global_load_dword {v(131)}, {v(130)}, s[48:49] sc1")
            lw1 = A.newlabel("L_g_wc1"); lwj = A.newlabel("L_g_wcj")
            A("s_cmp_eq_u32 s54, 1")
            A(f"s_cbranch_scc1 {lw1}")
            for wc in range(2):
                if wc: A.label(lw1)
                k = 0
                for nt in (4, 3, 2, 1, 0):
                    src = KVPOS[5 * wc + nt]
                    for rp in range(2):
                        o = 80 + 4 * (k % 4); tt = 100 + 2 * (k % 4); k += 1
                        for h in range(2):
                            a = ACC[nt][2 * rp + h]
                            if src < 5:
                                phi_pair(A, a, a + 1, tt, "s[56:57]", o + 2 * h)
                                phi_pair(A, a + 2, a + 3, tt, "s[56:57]", o + 2 * h + 1)
                            else:
                                A(f"v_cvt_pk_bf16_f32 {v(o+2*h)}, {v(a)}, {v(a+1)}")
                                A(f"v_cvt_pk_bf16_f32 {v(o+2*h+1)}, {v(a+2)}, {v(a+3)}")
                        A(f"ds_write_b128 {v(vO)}, {v(o,4)} offset:{10240*rp + 1024*src}")
                if wc == 0: A(f"s_branch {lwj}")
            A.label(lwj)
            if post2 is not None: post2(1)
            hd = [40, 41]; cp = [42, 43]
            he = [[44 + 4 * j + r for r in range(4)] for j in range(2)]
            rp_ = [[52 + 4 * j + r for r in range(4)] for j in range(2)]
            T = 60
            A(f"s_lshl_b32 s34, s28, 10")
            A(f"v_lshl_add_u32 {v(vO)}, {v(lane)}, 4, s34")
            A("s_waitcnt lgkmcnt(0)")
            A("s_barrier")
            P = [[0, 4], [8, 12]]; Z = [16, 20]
            F = lambda ks, t: 80 + 16 * (ks % 2) + 4 * t
            def rdf(ks):
                A(f"ds_read_b128 {v(F(ks,0),4)}, {v(vO)} offset:{10240*ks}")
                A(f"ds_read_b128 {v(F(ks,1),4)}, {v(vO)} offset:{10240*ks + 1024}")
                A(f"ds_read_b128 {v(F(ks,2),4)}, {v(vO)} offset:{10240*ks + 5120}")
                A(f"ds_read_b128 {v(F(ks,3),4)}, {v(vO)} offset:{10240*ks + 6144}")
            rdf(0); rdf(1)
            ones = 64
            for r in range(4): A(f"v_mov_b32 {v(ones+r)}, 0x3f803f80")
            for ks in range(4):
                A(f"s_waitcnt lgkmcnt({4 if ks < 3 else 0})")
                for a in range(2):
                    for b in range(2):
                        c = v(P[a][b], 4) if ks else "0"
                        A(f"v_mfma_f32_16x16x32_bf16 {v(P[a][b],4)}, {v(F(ks,2+a),4)}, {v(F(ks,b),4)}, {c}")
                for b in range(2):
                    c = v(Z[b], 4) if ks else "0"
                    A(f"v_mfma_f32_16x16x32_bf16 {v(Z[b],4)}, {v(ones,4)}, {v(F(ks,b),4)}, {c}")
                if ks + 2 < 4: rdf(ks + 2)
            KB = 40960
            A(f"s_lshl_b32 s34, s28, 4")
            for j in range(2):
                A(f"v_add_u32 {v(T)}, s34, {v(vi)}")
                if j: A(f"v_add_u32 {v(T)}, 16, {v(T)}")
                A(f"v_mul_u32_u24 {v(hd[j])}, 3277, {v(T)}")
                A(f"v_lshrrev_b32 {v(hd[j])}, 16, {v(hd[j])}")
                A(f"v_mul_u32_u24 {v(T+1)}, 20, {v(hd[j])}")
                A(f"v_sub_u32 {v(T)}, {v(T)}, {v(T+1)}")
                A(f"v_lshlrev_b32 {v(cp[j])}, 2, {v(T)}")
                for r in range(4):
                    A(f"v_lshl_add_u32 {v(T)}, {v(vq)}, 2, s34")
                    A(f"v_add_u32 {v(T)}, {16*j + r}, {v(T)}")
                    A(f"v_mul_u32_u24 {v(he[j][r])}, 3277, {v(T)}")
                    A(f"v_lshrrev_b32 {v(he[j][r])}, 16, {v(he[j][r])}")
                    A(f"v_add_u32 {v(T)}, {v(T)}, {v(he[j][r])}")
                    A(f"v_mul_u32_u24 {v(rp_[j][r])}, 80, {v(T)}")
            A(f"v_mov_b32 {v(T+2)}, 6720")
            A(f"v_mov_b32 {v(T+3)}, 1600")
            lsk = A.newlabel("L_g_sk")
            def put(a, b):
                for r in range(4):
                    tt = 68 + (r % 4)
                    A(f"v_cmp_eq_u32 vcc, {v(he[a][r])}, {v(hd[b])}")
                    A(f"v_add_u32 {v(tt)}, {v(rp_[a][r])}, {v(cp[b])}")
                    A(f"v_cndmask_b32 {v(tt)}, {v(T+2)}, {v(tt)}, vcc")
                    A(f"ds_write_b32 {v(tt)}, {v(P[a][b]+r)} offset:{KB}")
            def putz(b):
                tt = 72 + b
                A(f"v_mul_u32_u24 {v(tt)}, {21*80}, {v(hd[b])}")
                A(f"v_add3_u32 {v(tt)}, {v(tt)}, {v(cp[b])}, {v(T+3)}")
                A(f"ds_write_b32 {v(tt)}, {v(Z[b])} offset:{KB}")
            put(0, 1); put(1, 0); put(1, 1); putz(1)
            A("s_cmp_lg_u32 s28, 0")
            A(f"s_cbranch_scc1 {lsk}")
            put(0, 0); putz(0)
            A.label(lsk)
            A(f"s_mul_i32 s34, {ct}, {4*21*20*4}")
            A(f"s_add_u32 s34, s34, {WS_KV}")
            A(f"s_add_u32 s44, s50, s34")
            A(f"s_addc_u32 s45, s51, 0")
            A(f"s_mov_b32 s46, {4*21*20*4}")
            A(f"s_mov_b32 s47, 0x20000")
            A(f"s_lshl_b32 s34, s28, 8")
            A(f"v_lshl_add_u32 {v(vO)}, {v(lane)}, 2, s34")
            A("s_waitcnt lgkmcnt(0)")
            A("s_barrier")
            for m in range(7):
                A(f"ds_read_b32 {v(80+m)}, {v(vO)} offset:{KB + 1024*m}")
            lz = A.newlabel("L_g_z"); lzo = A.newlabel("L_g_zo")
            if stamp_task is not None: A(f"{TIMER} s[74:75]")
            A.label(lz)
            A("s_waitcnt vmcnt(0)")
            A(f"v_readfirstlane_b32 s34, {v(131)}")
            A("s_cmp_lg_u32 s34, 0")
            A(f"s_cbranch_scc1 {lzo}")
            A("s_sleep 2")
            A("s_add_u32 s93, s93, 1")
            A("s_cmp_gt_u32 s93, 300000")
            A(f"s_cbranch_scc1 {lzo}")
            A(f"global_load_dword {v(131)}, {v(130)}, s[48:49] sc1")
            A(f"s_branch {lz}")
            A.label(lzo)
            if stamp_task is not None: A(f"{TIMER} s[76:77]")
            A("s_waitcnt lgkmcnt(0)")
            for m in range(7):
                if m < 4:
                    A(f"buffer_atomic_add_f32 {v(80+m)}, {v(vO)}, s[44:47], 0 offen offset:{1024*m}")
                else:
                    if m == 4: A("s_mov_b32 s34, 4096")
                    A(f"buffer_atomic_add_f32 {v(80+m)}, {v(vO)}, s[44:47], s34 offen offset:{1024*(m-4)}")
            A(f"s_branch {fin}")
    A.label(fin)
    if stamp_task is not None:
        stamp()
        A("s_waitcnt vmcnt(0)")
        stamp()
        A("s_waitcnt lgkmcnt(0)")
        A(f"s_lshl_b32 s36, {stamp_task}, 3")
        A(f"s_add_u32 s36, s36, s28")
        A(f"s_lshl_b32 s36, s36, 6")
        A(f"s_add_u32 s36, s36, {WS_STAMP}")
        A(f"v_mov_b32 v1, s36")
        for k in stamps + [5, 6, 7]:
            A(f"v_mov_b32 v2, s{64+2*k}")
            A(f"global_store_dword v1, v2, s[50:51] offset:{4*k}")
        A(f"s_getreg_b32 s36, hwreg(HW_REG_HW_ID)")
        A(f"v_mov_b32 v2, s36")
        A(f"global_store_dword v1, v2, s[50:51] offset:56")
        A(f"s_getreg_b32 s36, hwreg(HW_REG_XCC_ID)")
        A(f"v_mov_b32 v2, s36")
        A(f"global_store_dword v1, v2, s[50:51] offset:60")
    return NV, GEMM_LDS
```

```python
import sys, os
AB = set(os.environ.get('AB', '').split(','))
from asmlib import *
from s4 import v
import s4c, s4f, gemm3, final4
from gemm import gen_zero
from s4b import WS_FLAG
from build3 import get_nonce, signal, F_KV, F_PQ, F_AT, F_G, SC, NAME

NWG = 256
MIX = 'mix' in AB

def gen_touch(A0, x, jw, dst=200, rb=30, rounds=2, stride=8192):
    import re
    A = lambda t: A0(re.sub(r"\bv3([0-7])\b", lambda m: "v%d" % (rb + int(m.group(1))), t))
    A.newlabel = A0.newlabel; A.label = A0.label
    A(f"s_and_b32 s39, {x}, 1")
    A(f"s_lshr_b32 s40, {x}, 1")
    A(f"s_mul_i32 s40, s40, {512*1280}")
    A(f"s_lshl_b32 s34, {jw}, 8")
    if MIX:
        A("v_and_b32 v33, 15, v0")
        A("v_min_u32 v33, 14, v33")
        A("v_mul_u32_u24 v36, 52, v33")
        A("v_lshrrev_b32 v36, 8, v36")
        A("v_mad_u32_u24 v35, v36, 5, v33")
        A("s_mul_i32 s39, s39, 5")
        A("v_add_u32 v35, s39, v35")
        A("v_lshlrev_b32 v35, 7, v35")
    else:
        A("v_and_b32 v33, 15, v0")
        A("v_add_u32 v35, 10, v33")
        A("v_add_u32 v36, 12, v33")
        A("v_cmp_gt_u32 vcc, 8, v33")
        A("v_cndmask_b32 v35, v36, v35, vcc")
        A("v_add_u32 v36, 14, v33")
        A("v_add_u32 v37, 7, v33")
        A("v_cmp_gt_u32 vcc, 13, v33")
        A("v_cndmask_b32 v36, v36, v37, vcc")
        A("v_cmp_gt_u32 vcc, 10, v33")
        A("v_cndmask_b32 v36, v36, v33, vcc")
        A("s_cmp_eq_u32 s39, 0")
        A("s_cselect_b64 vcc, -1, 0")
        A("v_cndmask_b32 v35, v36, v35, vcc")
        A("v_lshlrev_b32 v35, 7, v35")
    for r in range(rounds):
        A("v_add_u32 v30, s34, v0")
        if r:
            A(f"v_add_u32 v30, {stride*r}, v30")
            A(f"v_min_u32 v30, 15359, v30")
        A("v_lshlrev_b32 v32, 7, v30")
        A("v_add_u32 v32, s40, v32")
        A("v_subrev_u32 v34, 5120, v30")
        A("v_lshrrev_b32 v34, 4, v34")
        A("v_mul_u32_u24 v34, 3840, v34")
        A("v_add_u32 v34, v34, v35")
        A("v_readfirstlane_b32 s29, v30")
        lb = A.newlabel("L_tb"); le = A.newlabel("L_te")
        A("s_cmp_ge_u32 s29, 5120")
        A(f"s_cbranch_scc1 {lb}")
        A(f"buffer_load_dword v{dst+r}, v32, s[8:11], 0 offen")
        A(f"s_branch {le}")
        A.label(lb)
        A(f"buffer_load_dword v{dst+r}, v34, s[12:15], 0 offen")
        A.label(le)

def gen_touch_wo(A, hj):
    A("s_load_dwordx2 s[12:13], s[0:1], 88")
    A(f"s_lshl_b32 s29, {hj}, 8")
    A("v_add_u32 v245, s29, v0")
    A("v_lshlrev_b32 v245, 7, v245")
    A("s_mov_b32 s14, 819200")
    A("s_mov_b32 s15, 0x20000")
    A("s_waitcnt lgkmcnt(0)")
    for c in range(4):
        A(f"s_mov_b32 s29, {c*2048*128}")
        A(f"buffer_load_dword v{246+c}, v245, s[12:15], s29 offen")

def make_wait(A):
    def wait(kind, WV):
        l = A.newlabel("L_w"); lo = A.newlabel("L_wo")
        a0, a1, a2, d0, d1, d2 = WV
        if kind == "kvpq":
            signal(A, "s88", a0, a1, have_nonce=True)
        A("s_cmp_lg_u32 s28, 0")
        A(f"s_cbranch_scc1 {lo}")
        A(f"v_and_b32 {v(a2)}, 63, v0")
        if kind == "kvpq":
            A(f"v_lshlrev_b32 {v(a0)}, 2, {v(a2)}")
            A(f"v_add_u32 {v(a0)}, {F_KV}, {v(a0)}")
            A(f"s_lshr_b32 s29, s3, 1")
            A(f"s_lshl_b32 s29, s29, 4")
            A(f"s_add_u32 s29, s29, {F_PQ}")
            A(f"v_and_b32 {v(a2)}, 3, {v(a2)}")
            A(f"v_lshl_add_u32 {v(a1)}, {v(a2)}, 2, s29")
            A.label(l)
            A(f"global_load_dword {v(d0)}, {v(a0)}, s[50:51] sc1")
            A(f"global_load_dword {v(d1)}, {v(a0)}, s[50:51] offset:256 sc1")
            A(f"global_load_dword {v(d2)}, {v(a1)}, s[50:51] sc1")
            A("s_waitcnt vmcnt(0)")
            A(f"v_cmp_ne_u32 vcc, s52, {v(d0)}")
            A(f"v_cmp_ne_u32 s[30:31], s52, {v(d1)}")
            A("s_or_b64 vcc, vcc, s[30:31]")
            A(f"v_cmp_ne_u32 s[30:31], s52, {v(d2)}")
            A("s_or_b64 vcc, vcc, s[30:31]")
        else:
            A(f"s_mul_i32 s29, s4, 160")
            A(f"s_add_u32 s29, s29, {F_AT}")
            A(f"v_min_u32 {v(a0)}, 39, {v(a2)}")
            A(f"v_lshl_add_u32 {v(a0)}, {v(a0)}, 2, s29")
            A(f"s_lshr_b32 s29, s3, 1")
            A(f"s_lshl_b32 s29, s29, 2")
            A(f"s_add_u32 s29, s29, {F_G}")
            A(f"v_and_b32 {v(a2)}, 3, {v(a2)}")
            A(f"v_lshl_add_u32 {v(a1)}, {v(a2)}, 6, s29")
            A.label(l)
            A(f"global_load_dword {v(d0)}, {v(a0)}, s[50:51] sc1")
            A(f"global_load_dword {v(d1)}, {v(a1)}, s[50:51] sc1")
            A("s_waitcnt vmcnt(0)")
            A(f"v_cmp_ne_u32 vcc, s52, {v(d0)}")
            A(f"v_cmp_ne_u32 s[30:31], s52, {v(d1)}")
            A("s_or_b64 vcc, vcc, s[30:31]")
        A("s_cmp_eq_u64 vcc, 0")
        A(f"s_cbranch_scc1 {lo}")
        A("s_sleep 2")
        A("s_add_u32 s93, s93, 1")
        A("s_cmp_gt_u32 s93, 300000")
        A(f"s_cbranch_scc1 {lo}")
        A(f"s_branch {l}")
        A.label(lo)
        A("s_barrier")
    return wait

def build(stamp=False):
    s4f.STAMP = stamp
    A = Asm()
    A.raw(kernel_header(NAME))
    A(f"s_cmp_ge_u32 s2, {NWG}")
    A("s_cbranch_scc1 L_end")
    A("s_mov_b32 s93, 0")
    s4f.gen_params1(A)
    A("s_and_b32 s5, s2, 7")
    A("s_lshr_b32 s6, s2, 3")
    A("s_mov_b32 s89, s5")
    A("s_mov_b32 s87, s6")
    A("s_cmp_lt_u32 s6, 8")
    A("s_cbranch_scc1 L_help")
    A("s_sub_u32 s6, s6, 8")
    A("s_and_b32 s7, s6, 3")
    A("s_lshr_b32 s4, s6, 2")
    A("s_lshr_b32 s3, s5, 1")
    A("s_lshl_b32 s3, s3, 2")
    A("s_add_u32 s3, s3, s7")
    A("s_and_b32 s5, s5, 1")
    A("s_mul_i32 s5, s5, 6")
    A("s_add_u32 s4, s4, s5")
    A("s_mul_i32 s92, s3, 12")
    A("s_add_u32 s92, s92, s4")
    A("s_add_u32 s90, s92, 128")
    A("s_mov_b32 s91, 1")
    A("s_mov_b32 s84, 0")
    def pre():
        gen_touch(A, "s89", "s87")
        s4f.gen_params2(A, "s90")
    nv1, lds1 = gemm3.gen_gemm(A, "s3", "s4", sc=SC, stamp_task="s92" if stamp else None, pre=pre)
    A("s_setprio 0")
    A("s_lshl_b32 s88, s3, 3")
    A("s_add_u32 s88, s88, s4")
    A("s_lshl_b32 s88, s88, 2")
    A(f"s_add_u32 s88, s88, {F_KV}")
    A("s_lshl_b32 s30, s3, 2")
    A("s_add_u32 s30, s30, s4")
    A("s_lshl_b32 s30, s30, 2")
    A(f"s_add_u32 s30, s30, {F_PQ - 32}")
    A("s_cmp_ge_u32 s4, 8")
    A("s_cselect_b32 s88, s30, s88")
    A.fence()
    A("v_mbcnt_lo_u32_b32 v0, -1, 0")
    A("v_mbcnt_hi_u32_b32 v0, -1, v0")
    A("s_lshl_b32 s29, s28, 6")
    A("v_add_u32 v0, s29, v0")
    A("s_branch L_s4")
    A.label("L_help")
    A("s_load_dwordx2 s[8:9], s[0:1], 0")
    A("s_load_dwordx2 s[12:13], s[0:1], 80")
    A("s_load_dwordx4 s[48:51], s[0:1], 112")
    A("v_lshrrev_b32 v1, 6, v0")
    A("v_readfirstlane_b32 s28, v1")
    A("s_lshl_b32 s3, s6, 3")
    A("s_add_u32 s3, s3, s5")
    A("s_lshl_b32 s90, s3, 1")
    A("s_mov_b32 s91, 2")
    A("s_mov_b32 s84, 0")
    A("s_waitcnt lgkmcnt(0)")
    A(f"""
    s_mov_b32 s10, 2621440
    s_mov_b32 s11, 0x20000
    s_mov_b32 s14, 2457600
    s_mov_b32 s15, 0x20000
    """)
    A("s_cmp_lg_u32 s3, 0")
    A("s_cbranch_scc1 L_pf")
    s4c.gen_nonce(A)
    gen_zero(A)
    A.label("L_pf")
    A("s_lshr_b32 s86, s5, 1")
    A("s_lshl_b32 s86, s86, 2")
    A("s_lshr_b32 s29, s6, 1")
    A("s_add_u32 s86, s86, s29")
    A("s_and_b32 s83, s5, 1")
    A("s_lshl_b32 s83, s83, 1")
    A("s_and_b32 s29, s6, 1")
    A("s_add_u32 s83, s83, s29")
    def between():
        s4f.gen_params2(A, "s90")
        gen_touch(A, "s89", "s87", rb=120)
        return 10
    def after_store():
        A("s_lshl_b32 s88, s83, 6")
        A("s_lshl_b32 s30, s86, 2")
        A("s_add_u32 s88, s88, s30")
        A(f"s_add_u32 s88, s88, {WS_FLAG}")
        signal(A, "s88", 120, 121)
        gen_touch_wo(A, "s87")
    s4f.gen_transpose(A, "s86", "s83", between=between, after_store=after_store)
    A(f"s_add_u32 s88, s88, {F_G - WS_FLAG}")
    A.label("L_s4")
    A("s_barrier")
    def done(va, vb):
        ln = A.newlabel("L_s4_nx")
        A("s_lshl_b32 s88, s90, 2")
        A(f"s_add_u32 s88, s88, {F_AT}")
        A("s_add_u32 s90, s90, 1")
        A("s_sub_u32 s91, s91, 1")
        A("s_cmp_eq_u32 s91, 0")
        A(f"s_cbranch_scc1 {ln}")
        s4f.gen_params2(A, "s90")
        A("s_mov_b32 s84, 1")
        A.label(ln)
    def after_mid(T):
        A("s_lshr_b32 s29, s2, 3")
        A("s_and_b32 s83, s29, 7")
        return final4.gen_wdma(A, "s83", T)
    nv3, lds3 = s4f.gen_s4(A, "s90", sc=SC, done=done, after_mid=after_mid)
    A("s_cmp_lg_u32 s91, 0")
    A("s_cbranch_scc1 L_s4")
    A.label("L_final")
    A("s_and_b32 s5, s2, 7")
    A("s_lshr_b32 s6, s2, 3")
    A("s_lshr_b32 s3, s6, 3")
    A("s_lshl_b32 s5, s5, 2")
    A("s_add_u32 s3, s3, s5")
    A("s_and_b32 s4, s6, 7")
    A("s_barrier")
    nv4, lds4 = final4.gen_final(A, "s3", "s4", sc="sc1", wait=make_wait(A), stamp_task="s2" if stamp else None)
    A.label("L_end")
    A("s_endpgm")
    nv = max(nv1, nv3, nv4, 250); lds = max(lds1, lds3, lds4)
    hdr = open("gated_mix__ssm_conv_s4__linear_attn_block__prompt.s.ref").read().split("; Override launch geometry")[0]
    out = hdr
    out += f"; @launch grid=({NWG},1,1) block=(256,1,1) lds={lds}\n"
    out += '.amdgcn_target "amdgcn-amd-amdhsa--gfx950"\n.text\n' + A.text()
    out += '.section .rodata,"a"\n' + kernel_desc(NAME, 256, 96, agpr=final4.NAG)
    print("vgpr", nv1, nv3, nv4, "lds", lds1, lds3, lds4, "lines", len(A.lines))
    return out

if __name__ == "__main__":
    open(sys.argv[1], "w").write(build(len(sys.argv) > 2))
```

```python
import numpy as np, os
from asmlib import *
TIMER = os.environ.get('TIMER', 's_memtime')
from s4 import Regs, v, f2u
from s4b import WS_AT, WS_G, WS_KV, WS_STAMP, WS_FLAG
from final import WS_PQF, PAIR
from final2 import Track
from final4 import WL, WGRP, ATB, NAG, a_, gen_wdma
from build3 import F_KV, F_PQ, F_AT

PADZERO = True
FA0, FA1, FD0, FD1, FD2 = 244, 245, 246, 247, 248

def gen_kvpq_issue(A):
    lsk = A.newlabel("L_kqi")
    A(f"v_mbcnt_lo_u32_b32 {v(FA1)}, -1, 0")
    A(f"v_mbcnt_hi_u32_b32 {v(FA1)}, -1, {v(FA1)}")
    A(f"v_lshlrev_b32 {v(FA0)}, 2, {v(FA1)}")
    A(f"v_add_u32 {v(FA0)}, {F_KV}, {v(FA0)}")
    A("s_and_b32 s29, s2, 7")
    A("s_lshl_b32 s29, s29, 1")
    A("s_lshr_b32 s30, s2, 7")
    A("s_add_u32 s29, s29, s30")
    A("s_lshl_b32 s29, s29, 4")
    A(f"s_add_u32 s29, s29, {F_PQ}")
    A(f"v_and_b32 {v(FA1)}, 3, {v(FA1)}")
    A(f"v_lshl_add_u32 {v(FA1)}, {v(FA1)}, 2, s29")
    A("s_cmp_lg_u32 s28, 0")
    A(f"s_cbranch_scc1 {lsk}")
    A("s_cmp_lg_u32 s91, 1")
    A(f"s_cbranch_scc1 {lsk}")
    kvpq_loads(A)
    A.label(lsk)

def kvpq_loads(A):
    A(f"global_load_dword {v(FD0)}, {v(FA0)}, s[50:51] sc1")
    A(f"global_load_dword {v(FD1)}, {v(FA0)}, s[50:51] offset:256 sc1")
    A(f"global_load_dword {v(FD2)}, {v(FA1)}, s[50:51] sc1")

def check_loop(A, regs, reload):
    l = A.newlabel("L_ck"); lo = A.newlabel("L_cko")
    A("s_cmp_lg_u32 s28, 0")
    A(f"s_cbranch_scc1 {lo}")
    A.label(l)
    A(f"v_cmp_ne_u32 vcc, s52, {v(regs[0])}")
    for r in regs[1:]:
        A(f"v_cmp_ne_u32 s[30:31], s52, {v(r)}")
        A("s_or_b64 vcc, vcc, s[30:31]")
    A("s_cmp_eq_u64 vcc, 0")
    A(f"s_cbranch_scc1 {lo}")
    A("s_sleep 2")
    A("s_add_u32 s93, s93, 1")
    A("s_cmp_gt_u32 s93, 300000")
    A(f"s_cbranch_scc1 {lo}")
    reload()
    A("s_waitcnt vmcnt(0)")
    A(f"s_branch {l}")
    A.label(lo)
    A("s_barrier")

def gen_final(A, rb="s3", cb="s4", sc="sc1", nlater=4, stamp_task=None):
    stamps = []
    def stamp():
        if stamp_task is None: return
        k = len(stamps); stamps.append(k)
        A(f"{TIMER} s[{64+2*k}:{65+2*k}]")
        A("s_waitcnt lgkmcnt(0)"); L.done = len(L.log)
    R = Regs(1, 244)
    L = Track(A, "lgkmcnt", 15); V = Track(A, "vmcnt", 63)
    A("s_load_dwordx2 s[16:17], s[0:1], 104")
    stamp()
    lane = R.alloc(); vi = R.alloc(); vq = R.alloc(); t1 = R.alloc(); t2 = R.alloc(); t3 = R.alloc()
    vPQ = R.alloc(); vMask = R.alloc(); vKW = R.alloc()
    A(f"v_and_b32 {v(lane)}, 63, v0")
    A(f"v_lshlrev_b32 {v(vPQ)}, 4, {v(lane)}")
    A(f"s_mul_i32 s35, s28, {WGRP}")
    A(f"s_add_u32 s35, s35, {WL}")
    A(f"s_mul_i32 s29, {rb}, {4*32*768}")
    A(f"s_mul_i32 s30, s28, {8*768}")
    A(f"s_add_u32 s29, s29, s30")
    A(f"s_add_u32 s29, s29, {WS_PQF}")
    A(f"s_add_u32 s20, s50, s29")
    A(f"s_addc_u32 s21, s51, 0")
    A(f"s_mov_b32 s22, {4*32*768}")
    A(f"s_mov_b32 s23, 0x20000")
    for k in range(4):
        A(f"s_add_u32 s29, s28, {k+1}")
        A(f"s_and_b32 s29, s29, 3")
        A(f"s_mul_i32 s{40+k}, s29, {32*768}")
        A(f"s_add_u32 s{24+k}, s{40+k}, 3072")
    A(f"s_mul_i32 s29, s28, {8*420*4}")
    A(f"s_add_u32 s29, s29, {WS_KV}")
    A(f"s_add_u32 s44, s50, s29")
    A(f"s_addc_u32 s45, s51, 0")
    A(f"s_mov_b32 s46, {8*420*4}")
    A(f"s_mov_b32 s47, 0x20000")
    A("s_mov_b32 s62, -1")
    A("s_mov_b32 s63, 0xffff")
    NPQ = 16
    PQ = [R.alloc(4, 4) for _ in range(NPQ)]
    A("s_mov_b32 exec_lo, 0")
    A("s_mov_b32 exec_hi, 0xffff0000")
    for p in PQ:
        A(f"v_mov_b64 {v(p,2)}, 0")
        A(f"v_mov_b64 {v(p+2,2)}, 0")
    A("s_mov_b64 exec, -1")
    A(f"s_waitcnt vmcnt({nlater})")
    check_loop(A, [FD0, FD1, FD2], lambda: kvpq_loads(A))
    stamp()
    KL = [R.alloc(4, 4) for _ in range(14)]
    for m in range(14):
        if m % 4 == 0: A(f"s_mov_b32 s29, {1024*m}")
        A(f"buffer_load_dwordx4 {v(KL[m],4)}, {v(vPQ)}, s[44:47], s29 offen offset:{1024*(m%4)}")
        V.issue(("KL", m))
    def ldpq(n):
        k, h = divmod(n, 8)
        so = f"s{40+k}" if h < 4 else f"s{24+k}"
        A(f"buffer_load_dwordx4 {v(PQ[n % NPQ],4)}, {v(vPQ)}, s[20:23], {so} offen offset:{768*(h%4)}")
        V.issue(("PQ", n))
    A("s_mov_b64 exec, s[62:63]")
    for n in range(16): ldpq(n)
    A("s_mov_b64 exec, -1")
    A(f"v_and_b32 {v(vi)}, 15, {v(lane)}")
    A(f"v_lshrrev_b32 {v(vq)}, 4, {v(lane)}")
    vr = R.alloc(); vc8 = R.alloc(); VWt = [R.alloc() for _ in range(2)]
    A(f"v_lshrrev_b32 {v(vr)}, 2, {v(vi)}")
    A(f"v_and_b32 {v(vc8)}, 3, {v(vi)}")
    A(f"v_lshl_add_u32 {v(vc8)}, {v(vc8)}, 3, s35")
    A(f"v_lshlrev_b32 {v(t3)}, 3, {v(vr)}")
    WR = [[4 * (5 * f + nt) for nt in range(5)] for f in range(5)]
    for f in range(5):
        for hf in range(2):
            bases = 0; mults = 0
            for rp in range(4):
                idx = 8 * f + 4 * hf + rp
                ho, r = PAIR[idx % 10]
                head = 2 * (idx // 10) + ho
                base = 20 * head + (r if r < 3 else 12 + r - 3)
                mult = 3 if r < 3 else 2
                bases |= base << (8 * rp); mults |= mult << (8 * rp)
            A(f"s_mov_b32 s29, {bases}")
            A(f"s_mov_b32 s30, {mults}")
            A(f"v_bfe_u32 {v(t1)}, s29, {v(t3)}, 8")
            A(f"v_bfe_u32 {v(t2)}, s30, {v(t3)}, 8")
            A(f"v_mad_u32_u24 {v(t1)}, {v(t2)}, {v(vq)}, {v(t1)}")
            A(f"v_mul_u32_u24 {v(t1)}, 160, {v(t1)}")
            A(f"v_add_u32 {v(VWt[hf])}, {v(t1)}, {v(vc8)}")
            for nt in range(5):
                A(f"ds_read_b64_tr_b16 {a_(WR[f][nt] + 2*hf, 2)}, {v(VWt[hf])} offset:{32*nt}")
    R.rel(vr); R.rel(vc8); R.rel(VWt[0]); R.rel(VWt[1])
    vK0 = R.alloc(); vK1 = R.alloc()
    A(f"v_lshrrev_b32 {v(t1)}, 2, {v(vi)}")
    A(f"v_and_b32 {v(t2)}, 3, {v(vi)}")
    A(f"v_min_u32 {v(t3)}, 2, {v(vq)}")
    A(f"v_lshl_add_u32 {v(t3)}, {v(t3)}, 4, s35")
    A(f"v_mad_u32_u24 {v(vK0)}, {v(t1)}, 3, {v(t2)}")
    A(f"v_cmp_eq_u32 vcc, 3, {v(t2)}")
    A(f"v_cndmask_b32 {v(vK0)}, {v(vK0)}, 20, vcc")
    A(f"v_mad_u32_u24 {v(vK0)}, {v(vK0)}, 40, {v(t3)}")
    A(f"v_lshl_add_u32 {v(vK1)}, {v(t1)}, 1, {v(t2)}")
    A(f"v_add_u32 {v(vK1)}, 12, {v(vK1)}")
    A(f"v_cmp_lt_u32 vcc, 1, {v(t2)}")
    A(f"v_cndmask_b32 {v(vK1)}, {v(vK1)}, 20, vcc")
    A(f"v_mad_u32_u24 {v(vK1)}, {v(vK1)}, 40, {v(t3)}")
    A(f"v_cmp_gt_u32 vcc, 2, {v(vq)}")
    A(f"v_cndmask_b32 {v(vMask)}, 0, -1, vcc")
    A(f"v_lshl_add_u32 {v(vKW)}, {v(lane)}, 3, s35")
    A(f"s_mov_b32 s58, {f2u(1e-6)}")
    A("s_waitcnt lgkmcnt(0)")
    for m in range(14):
        V.wait([("KL", m)])
        if m == 0:
            lsg = A.newlabel("L_f_sg")
            A("s_barrier")
            A("s_cmp_lg_u32 s28, 0")
            A(f"s_cbranch_scc1 {lsg}")
            A(f"v_mov_b32 {v(t1)}, s88")
            A(f"v_mov_b32 {v(t2)}, s52")
            A("s_mov_b64 exec, 1")
            A(f"global_store_dword {v(t1)}, {v(t2)}, s[50:51] sc0 sc1")
            A("s_mov_b64 exec, -1")
            A.label(lsg)
        A(f"v_cvt_pk_bf16_f32 {v(KL[m])}, {v(KL[m])}, {v(KL[m]+1)}")
        A(f"v_cvt_pk_bf16_f32 {v(KL[m]+1)}, {v(KL[m]+2)}, {v(KL[m]+3)}")
        A(f"ds_write_b64 {v(vKW)}, {v(KL[m],2)} offset:{512*m}")
        L.issue(("kw", m))
    for k in KL: R.rel(k, 4)
    KF = [[R.alloc(4, 4) for _ in range(2)] for _ in range(8)]
    for h in range(8):
        o = 105 * (h & 1)
        A(f"ds_read2_b64 {v(KF[h][0],4)}, {v(vK0)} offset0:{o} offset1:{o+1}"); L.issue(("K", h))
        A(f"ds_read2_b64 {v(KF[h][1],4)}, {v(vK1)} offset0:{o} offset1:{o+1}"); L.issue(("K", h))
        if h & 1 and h < 7:
            A(f"v_add_u32 {v(vK0)}, 1680, {v(vK0)}")
            A(f"v_add_u32 {v(vK1)}, 1680, {v(vK1)}")
    stamp()
    D = [[R.alloc(4, 4) for _ in range(2)] for _ in range(2)]
    OF = [[R.alloc(4, 4) for _ in range(5)] for _ in range(2)]
    ACC = [R.alloc(4, 4) for _ in range(5)]
    RC = [R.alloc(2, 2) for _ in range(2)]
    vG = R.alloc(); GP = R.alloc(4, 4)
    vATr = R.alloc(); vO8 = R.alloc(); vO16 = R.alloc(); vATg = R.alloc(); vATW = R.alloc(); vGa = R.alloc(); vPW = R.alloc()
    fill = []
    F = fill.append
    F(f"v_lshl_add_u32 {v(vPW)}, {v(lane)}, 4, s35")
    F(f"s_mul_i32 s29, {cb}, 160")
    F(f"s_add_u32 s29, s29, {F_AT}")
    F(f"v_min_u32 {v(FA0)}, 39, {v(lane)}")
    F(f"v_lshl_add_u32 {v(FA0)}, {v(FA0)}, 2, s29")
    F(f"s_lshr_b32 s29, {rb}, 1")
    F(f"s_lshl_b32 s29, s29, 2")
    F(f"s_add_u32 s29, s29, {WS_FLAG}")
    F(f"v_and_b32 {v(FA1)}, 3, {v(lane)}")
    F(f"v_lshl_add_u32 {v(FA1)}, {v(FA1)}, 6, s29")
    F(f"v_lshrrev_b32 {v(t1)}, 2, {v(vi)}")
    F(f"v_lshl_add_u32 {v(t1)}, {v(vq)}, 2, {v(t1)}")
    F(f"v_lshlrev_b32 {v(t1)}, 7, {v(t1)}")
    F(f"v_and_b32 {v(t2)}, 3, {v(vi)}")
    F(f"v_lshl_add_u32 {v(t1)}, {v(t2)}, 3, {v(t1)}")
    F(f"s_lshl_b32 s29, s28, 5")
    F(f"s_add_u32 s29, s29, {ATB}")
    F(f"v_add_u32 {v(vATr)}, s29, {v(t1)}")
    F(f"s_lshl_b32 s29, {rb}, 6")
    F(f"s_lshl_b32 s30, s28, 4")
    F(f"s_add_u32 s29, s29, s30")
    F(f"v_add_u32 {v(t2)}, s29, {v(vi)}")
    F(f"v_lshlrev_b32 {v(vGa)}, 2, {v(t2)}")
    F(f"v_add_u32 {v(vGa)}, {WS_G}, {v(vGa)}")
    F(f"v_mul_u32_u24 {v(t2)}, 1280, {v(t2)}")
    F(f"s_mul_i32 s29, {cb}, 160")
    F(f"v_lshl_add_u32 {v(vO8)}, {v(vq)}, 3, {v(t2)}")
    F(f"v_add_u32 {v(vO8)}, s29, {v(vO8)}")
    F(f"v_and_b32 {v(t1)}, 1, {v(vq)}")
    F(f"v_lshl_add_u32 {v(t2)}, {v(t1)}, 5, {v(t2)}")
    F(f"v_lshrrev_b32 {v(t1)}, 1, {v(vq)}")
    F(f"v_lshl_add_u32 {v(t2)}, {v(t1)}, 4, {v(t2)}")
    F(f"v_add_u32 {v(vO16)}, s29, {v(t2)}")
    F(f"s_mul_i32 s29, s28, 160")
    F(f"v_add_u32 {v(t1)}, s29, {v(lane)}")
    F(f"v_lshrrev_b32 {v(t2)}, 3, {v(t1)}")
    F(f"v_and_b32 {v(t1)}, 7, {v(t1)}")
    F(f"v_lshlrev_b32 {v(t2)}, 12, {v(t2)}")
    F(f"v_lshl_add_u32 {v(t1)}, {v(t1)}, 4, {v(t2)}")
    F(f"s_mul_i32 s29, {cb}, {80*4096}")
    F(f"s_lshl_b32 s30, {rb}, 7")
    F(f"s_add_u32 s29, s29, s30")
    F(f"s_add_u32 s29, s29, {WS_AT}")
    F(f"v_add_u32 {v(vATg)}, s29, {v(t1)}")
    F(f"s_mul_i32 s30, s28, 2560")
    F(f"s_add_u32 s30, s30, {ATB}")
    F(f"v_lshl_add_u32 {v(vATW)}, {v(lane)}, 4, s30")
    def filler(n):
        for _ in range(n):
            if fill: A(fill.pop(0))
    def at_loads():
        A(f"global_load_dword {v(FD0)}, {v(FA0)}, s[50:51] sc1")
        A(f"global_load_dword {v(FD1)}, {v(FA1)}, s[50:51] sc1")
    def O_a(P):
        k, hp = divmod(P, 4)
        V.wait([("PQ", 2 * P + 1)])
        for ho in range(2):
            p = PQ[(2 * P + ho) % NPQ]
            if not PADZERO:
                A(f"v_and_b32 {v(p+2)}, {v(vMask)}, {v(p+2)}")
                A(f"v_and_b32 {v(p+3)}, {v(vMask)}, {v(p+3)}")
        L.wait([("K", 2 * hp + 1)])
        for ho in range(2):
            p = PQ[(2 * P + ho) % NPQ]
            A(f"v_mfma_f32_16x16x32_bf16 {v(D[ho][0],4)}, {v(KF[2*hp+ho][0],4)}, {v(p,4)}, 0")
            A(f"v_mfma_f32_16x16x32_bf16 {v(D[ho][1],4)}, {v(KF[2*hp+ho][1],4)}, {v(p,4)}, 0")
        if 2 * P + 16 < 32:
            A("s_mov_b64 exec, s[62:63]")
            ldpq(2 * P + 16); ldpq(2 * P + 17)
            A("s_mov_b64 exec, -1")
    def O_b(P, ho):
        d0 = D[ho][0]; d1 = D[ho][1]; rc = RC[ho]
        A(f"v_add_f32 {v(rc)}, s58, {v(d0+3)}")
        A(f"v_rcp_f32 {v(rc)}, {v(rc)}")
        A(f"v_pk_mul_f32 {v(d0,2)}, {v(d0,2)}, {v(rc,2)} op_sel:[0,0] op_sel_hi:[1,0]")
        A(f"v_mul_f32 {v(d0+2)}, {v(d0+2)}, {v(rc)}")
        A(f"v_pk_mul_f32 {v(d1,2)}, {v(d1,2)}, {v(rc,2)} op_sel:[0,0] op_sel_hi:[1,0]")
        hp = P % 4; of = OF[(P // 4) & 1]
        dw = lambda k: of[(5 * hp + k) // 4] + (5 * hp + k) % 4
        if ho == 0:
            A(f"v_cvt_pk_bf16_f32 {v(dw(0))}, {v(D[0][0])}, {v(D[0][0]+1)}")
            A(f"v_cvt_pk_bf16_f32 {v(dw(1))}, {v(D[0][1])}, {v(D[0][1]+1)}")
        else:
            A(f"v_cvt_pk_bf16_f32 {v(dw(2))}, {v(D[0][0]+2)}, {v(D[1][0]+2)}")
            A(f"v_cvt_pk_bf16_f32 {v(dw(3))}, {v(D[1][0])}, {v(D[1][0]+1)}")
            A(f"v_cvt_pk_bf16_f32 {v(dw(4))}, {v(D[1][1])}, {v(D[1][1]+1)}")
    def P_step(k, n):
        nt, f = divmod(n, 5)
        c = v(ACC[nt], 4) if f else "0"
        A(f"v_mfma_f32_16x16x32_bf16 {v(ACC[nt],4)}, {a_(WR[f][nt],4)}, {v(OF[k&1][f],4)}, {c}")
        if k < 3 and f == 2 and nt >= 1:
            A(f"ds_write_b128 {v(vPW)}, {v(ACC[nt-1],4)} offset:{8192 + 5120*k + 1024*(nt-1)}"); L.issue(("pw", k, nt - 1))
    for P in range(4):
        O_a(P); filler(12); O_b(P, 0); O_b(P, 1)
    filler(100)
    ATR = [R.alloc(4, 4) for _ in range(3)]
    for k in range(4):
        if k == 1:
            lal = A.newlabel("L_al")
            A("s_cmp_lg_u32 s28, 0")
            A(f"s_cbranch_scc1 {lal}")
            at_loads()
            A.label(lal)
        if k == 2:
            A("s_waitcnt vmcnt(0)"); V.done = len(V.log)
            check_loop(A, [FD0, FD1], at_loads)
            for j in range(3):
                if j == 2: A("s_mov_b64 exec, 0xffffffff")
                A(f"global_load_dwordx4 {v(ATR[j],4)}, {v(vATg)}, s[50:51] {sc}"); V.issue(("AT", j))
                if j < 2: A(f"v_add_u32 {v(vATg)}, {8*4096}, {v(vATg)}")
            A("s_mov_b64 exec, -1")
            for kk in range(4):
                A(f"global_load_dword {v(GP+kk)}, {v(vGa)}, s[50:51] {sc}"); V.issue(("AT", 3 + kk))
                if kk < 3: A(f"v_add_u32 {v(vGa)}, 8192, {v(vGa)}")
        if k == 3:
            V.all()
            for j in range(3):
                if j == 2: A("s_mov_b64 exec, 0xffffffff")
                A(f"ds_write_b128 {v(vATW)}, {v(ATR[j],4)} offset:{1024*j}"); L.issue(("atw", j))
            A("s_mov_b64 exec, -1")
        n = 0
        for hp in range(4):
            P = 4 * (k + 1) + hp
            if k < 3: O_a(P)
            for _ in range(3): P_step(k, n); n += 1
            if k < 3: O_b(P, 0)
            for _ in range(2): P_step(k, n); n += 1
            if k < 3: O_b(P, 1)
            for _ in range(1 if hp < 3 else 2): P_step(k, n); n += 1
        if k < 3:
            A(f"ds_write_b128 {v(vPW)}, {v(ACC[4],4)} offset:{8192 + 5120*k + 4096}"); L.issue(("pw", k, 4))
    stamp()
    VR = [t1, t2, t3]
    for o in range(1, 4):
        A(f"s_add_u32 s29, s28, {o}")
        A(f"s_and_b32 s29, s29, 3")
        A(f"s_mul_i32 s29, s29, {WGRP}")
        A(f"s_add_u32 s29, s29, {WL + 8192 + 5120*(3-o)}")
        A(f"v_add_u32 {v(VR[o-1])}, s29, {v(vPQ)}")
    A("s_waitcnt lgkmcnt(0)")
    A("s_barrier")
    XP = [[PQ[5 * o + nt] for nt in range(5)] for o in range(3)]
    AT = [KF[2 + nt][0] for nt in range(5)]
    L.log = []; L.done = 0
    for nt in range(5):
        for o in range(3):
            A(f"ds_read_b128 {v(XP[o][nt],4)}, {v(VR[o])} offset:{1024*nt}"); L.issue(("x", nt))
        A(f"ds_read_b64_tr_b16 {v(AT[nt],2)}, {v(vATr)} offset:{2048*nt}"); L.issue(("x", nt))
    G2 = RC[0]; M2 = RC[1]
    A(f"v_add_f32 {v(GP)}, {v(GP)}, {v(GP+1)}")
    A(f"v_add_f32 {v(GP+2)}, {v(GP+2)}, {v(GP+3)}")
    A(f"v_add_f32 {v(vG)}, {v(GP)}, {v(GP+2)}")
    A(f"v_cvt_pk_bf16_f32 {v(vG)}, {v(vG)}, {v(vG)}")
    A(f"v_lshlrev_b32 {v(vG)}, 16, {v(vG)}")
    A(f"v_mul_f32 {v(vG)}, {f2u(-1.4426950408889634)}, {v(vG)}")
    A(f"v_exp_f32 {v(vG)}, {v(vG)}")
    A(f"v_add_f32 {v(vG)}, 1.0, {v(vG)}")
    A(f"v_rcp_f32 {v(vG)}, {v(vG)}")
    A(f"v_cvt_pk_bf16_f32 {v(vG)}, {v(vG)}, {v(vG)}")
    A(f"v_lshlrev_b32 {v(vG)}, 16, {v(vG)}")
    A(f"v_mov_b32 {v(G2)}, {v(vG)}")
    A(f"v_sub_f32 {v(M2)}, 1.0, {v(vG)}")
    A(f"v_cvt_pk_bf16_f32 {v(M2)}, {v(M2)}, {v(M2)}")
    A(f"v_lshlrev_b32 {v(M2)}, 16, {v(M2)}")
    OUT = [OF[0][0], OF[0][1], OF[0][2]]
    for nt in range(5):
        a = ACC[nt]; at = AT[nt]; X = D[nt & 1][0]
        o = OUT[nt // 2] + 2 * (nt % 2)
        L.wait([("x", nt)])
        for j in range(2):
            A(f"v_pk_add_f32 {v(a+2*j,2)}, {v(a+2*j,2)}, {v(XP[0][nt]+2*j,2)}")
            A(f"v_pk_add_f32 {v(XP[1][nt]+2*j,2)}, {v(XP[1][nt]+2*j,2)}, {v(XP[2][nt]+2*j,2)}")
            A(f"v_pk_add_f32 {v(a+2*j,2)}, {v(a+2*j,2)}, {v(XP[1][nt]+2*j,2)}")
            A(f"v_pk_mul_f32 {v(a+2*j,2)}, {v(a+2*j,2)}, {v(M2,2)} op_sel:[0,0] op_sel_hi:[1,0]")
        A(f"v_lshlrev_b32 {v(X)}, 16, {v(at)}")
        A(f"v_and_b32 {v(X+1)}, 0xffff0000, {v(at)}")
        A(f"v_lshlrev_b32 {v(X+2)}, 16, {v(at+1)}")
        A(f"v_and_b32 {v(X+3)}, 0xffff0000, {v(at+1)}")
        A(f"v_pk_fma_f32 {v(a,2)}, {v(X,2)}, {v(G2,2)}, {v(a,2)} op_sel:[0,0,0] op_sel_hi:[1,0,1]")
        A(f"v_pk_fma_f32 {v(a+2,2)}, {v(X+2,2)}, {v(G2,2)}, {v(a+2,2)} op_sel:[0,0,0] op_sel_hi:[1,0,1]")
        A(f"v_cvt_pk_bf16_f32 {v(o)}, {v(a)}, {v(a+1)}")
        A(f"v_cvt_pk_bf16_f32 {v(o+1)}, {v(a+2)}, {v(a+3)}")
        if nt % 2 == 1:
            ob = OUT[nt // 2]
            A(f"v_permlane16_swap_b32 {v(ob)}, {v(ob+2)}")
            A(f"v_permlane16_swap_b32 {v(ob+1)}, {v(ob+3)}")
            A(f"global_store_dwordx4 {v(vO16)}, {v(ob,4)}, s[16:17] offset:{64*(nt//2)}")
        elif nt == 4:
            A(f"global_store_dwordx2 {v(vO8)}, {v(o,2)}, s[16:17] offset:128")
    if stamp_task is not None:
        stamp()
        A("s_waitcnt vmcnt(0)")
        stamp()
        A(f"s_lshl_b32 s36, {stamp_task}, 3")
        A(f"s_add_u32 s36, s36, s28")
        A(f"s_lshl_b32 s36, s36, 6")
        A(f"s_add_u32 s36, s36, {WS_STAMP + 0x100000}")
        A(f"v_mov_b32 v1, s36")
        for k in stamps:
            A(f"v_mov_b32 v2, s{64+2*k}")
            A(f"global_store_dword v1, v2, s[50:51] offset:{4*k}")
    return R.hi
```

```python
import numpy as np, os
from asmlib import *
TIMER = os.environ.get('TIMER', 's_memtime')
from s4 import Regs, v, f2u
from s4b import WS_KV, WS_STAMP
from final import WS_PQF
from gemm2 import phi_pair

SLOT = 18432
BOFF = 8192
NSLOT = int(os.environ.get('NSLOT', '6'))
GEMM_LDS = SLOT * NSLOT
ABL = set(os.environ.get('GABL', '').split(','))
KVPOS = [0, 1, 2, 5, 6, 3, 4, 7, 8, 9]

def gen_gemm(A, rb="s3", ct="s4", sc="", stamp_task=None, pre=None, post=None, mid=None, post2=None):
    stamps = []
    def stamp():
        if stamp_task is None: return
        k = len(stamps); stamps.append(k)
        A(f"{TIMER} s[{64+2*k}:{65+2*k}]")
    A(f"""
    s_load_dwordx2 s[8:9], s[0:1], 0
    s_load_dwordx2 s[12:13], s[0:1], 80
    s_load_dwordx4 s[48:51], s[0:1], 112
    """)
    stamp()
    ACC = [[4 * (4 * nt + rt) for rt in range(4)] for nt in range(5)]
    AF = [[80 + 36 * p + 4 * rt for rt in range(4)] for p in range(2)]
    BF = [[96 + 36 * p + 4 * nt for nt in range(5)] for p in range(2)]
    vDA = [152, 153]; vDB = [154, 155, 156]; vBe, vBo, vAr = 157, 158, 159
    vHi = {157: 196, 158: 197, 159: 198}
    NV = 160
    lane = 11; t1 = 12; t2 = 13; t3 = 14; vi = 15; vq = 16; t4 = 17; t5 = 18
    A(f"v_and_b32 {v(lane)}, 63, v0")
    A(f"v_lshrrev_b32 {v(t1)}, 6, v0")
    A(f"v_readfirstlane_b32 s28, {v(t1)}")
    A(f"v_and_b32 {v(vi)}, 15, {v(lane)}")
    A(f"v_lshrrev_b32 {v(vq)}, 4, {v(lane)}")
    A(f"s_lshr_b32 s53, s28, 1")
    A(f"s_and_b32 s54, s28, 1")
    A(f"s_mul_i32 s30, {ct}, 160")
    A(f"s_add_u32 s31, s30, {2560 - 160}")
    A(f"s_add_u32 s30, s30, 1280")
    A(f"s_sub_u32 s32, {ct}, 8")
    A(f"s_mul_i32 s32, s32, 320")
    A(f"s_cmp_ge_u32 {ct}, 8")
    A(f"s_cselect_b32 s30, s32, s30")
    A(f"s_cselect_b32 s31, s32, s31")
    kvtab = sum(t << (4 * p) for p, t in enumerate(KVPOS))
    idtab = sum(p << (4 * p) for p in range(10))
    A(f"s_mov_b32 s44, {kvtab & 0xffffffff}")
    A(f"s_mov_b32 s45, {kvtab >> 32}")
    A(f"s_mov_b32 s46, {idtab & 0xffffffff}")
    A(f"s_cselect_b32 s44, s46, s44")
    A(f"s_lshl_b32 s33, {rb}, 7")
    A("s_mov_b32 s47, 0x78")
    A(f"v_lshrrev_b32 {v(t1)}, 2, {v(lane)}")
    A(f"v_lshrrev_b32 {v(t2)}, 4, {v(lane)}")
    A(f"v_lshlrev_b32 {v(t2)}, 1, {v(t2)}")
    A(f"v_lshrrev_b32 {v(t2)}, {v(t2)}, s47")
    A(f"v_xor_b32 {v(t2)}, {v(t2)}, {v(lane)}")
    A(f"v_and_b32 {v(t2)}, 3, {v(t2)}")
    A(f"s_lshl_b32 s34, s28, 5")
    A(f"s_add_u32 s34, s34, s33")
    A(f"v_add_u32 {v(t1)}, s34, {v(t1)}")
    A(f"v_mul_u32_u24 {v(t1)}, 1280, {v(t1)}")
    A(f"v_lshl_add_u32 {v(vDA[0])}, {v(t2)}, 4, {v(t1)}")
    A(f"v_add_u32 {v(vDA[1])}, 20480, {v(vDA[0])}")
    A(f"v_lshrrev_b32 {v(t2)}, 2, {v(vi)}")
    A(f"v_lshlrev_b32 {v(t2)}, 1, {v(t2)}")
    A(f"v_lshrrev_b32 {v(t2)}, {v(t2)}, s47")
    A(f"v_xor_b32 {v(t2)}, {v(t2)}, {v(vq)}")
    A(f"v_and_b32 {v(t2)}, 3, {v(t2)}")
    A(f"v_lshlrev_b32 {v(t1)}, 6, {v(vi)}")
    A(f"v_lshl_add_u32 {v(t1)}, {v(t2)}, 4, {v(t1)}")
    A(f"s_lshl_b32 s34, s53, 12")
    A(f"v_add_u32 {v(vAr)}, s34, {v(t1)}")
    A(f"s_mul_i32 s34, s28, 160")
    for j in range(3):
        A(f"v_add_u32 {v(t1)}, s34, {v(lane)}")
        if j: A(f"v_add_u32 {v(t1)}, {64*j}, {v(t1)}")
        A(f"v_mul_u32_u24 {v(t2)}, 3277, {v(t1)}")
        A(f"v_lshrrev_b32 {v(t2)}, 16, {v(t2)}")
        A(f"v_mul_u32_u24 {v(t3)}, 20, {v(t2)}")
        A(f"v_sub_u32 {v(t1)}, {v(t1)}, {v(t3)}")
        A(f"v_lshrrev_b32 {v(t3)}, 3, {v(t2)}")
        A(f"v_and_b32 {v(t3)}, 1, {v(t3)}")
        A(f"v_lshrrev_b32 {v(t4)}, 1, {v(t1)}")
        A(f"v_xor_b32 {v(t4)}, {v(t4)}, {v(t3)}")
        A(f"v_lshlrev_b32 {v(t4)}, 2, {v(t4)}")
        A(f"v_lshrrev_b64 {v(20,2)}, {v(t4)}, s[44:45]")
        A(f"v_and_b32 {v(t4)}, 15, {v(20)}")
        A(f"v_and_b32 {v(t1)}, 1, {v(t1)}")
        A(f"v_lshl_add_u32 {v(t1)}, {v(t4)}, 1, {v(t1)}")
        A(f"v_cmp_gt_u32 vcc, 10, {v(t1)}")
        A(f"v_mov_b32 {v(t3)}, s31")
        A(f"v_mov_b32 {v(t4)}, s30")
        A(f"v_cndmask_b32 {v(t3)}, {v(t3)}, {v(t4)}, vcc")
        A(f"v_lshl_add_u32 {v(t3)}, {v(t1)}, 4, {v(t3)}")
        A(f"v_mul_u32_u24 {v(t2)}, 3840, {v(t2)}")
        A(f"v_add_u32 {v(vDB[j])}, {v(t2)}, {v(t3)}")
    A(f"v_lshrrev_b32 {v(t1)}, 2, {v(vi)}")
    A(f"v_lshl_add_u32 {v(t1)}, {v(vq)}, 3, {v(t1)}")
    A(f"v_mul_u32_u24 {v(t1)}, 320, {v(t1)}")
    A(f"v_and_b32 {v(t2)}, 3, {v(vi)}")
    A(f"v_lshl_add_u32 {v(t1)}, {v(t2)}, 3, {v(t1)}")
    A(f"s_mul_i32 s34, s54, 160")
    A(f"v_add_u32 {v(t1)}, s34, {v(t1)}")
    A(f"v_and_b32 {v(t2)}, 1, {v(vq)}")
    A(f"v_lshlrev_b32 {v(t2)}, 5, {v(t2)}")
    A(f"v_sub_u32 {v(t3)}, 0, {v(t2)}")
    A("s_cmp_eq_u32 s54, 0")
    A("s_cselect_b64 vcc, -1, 0")
    A(f"v_cndmask_b32 {v(t4)}, {v(t3)}, {v(t2)}, vcc")
    A(f"v_add_u32 {v(vBe)}, {v(t1)}, {v(t4)}")
    A(f"v_sub_u32 {v(vBo)}, {v(t1)}, {v(t4)}")
    for r, h in vHi.items(): A(f"v_add_u32 {v(h)}, {3*SLOT}, {v(r)}")
    A(f"s_lshl_b32 s35, s28, 11")
    A(f"s_mul_i32 s36, s28, 2560")
    A(f"s_add_u32 s36, s36, {BOFF}")
    A("s_waitcnt lgkmcnt(0)")
    A(f"""
    s_mov_b32 s10, 2621440
    s_mov_b32 s11, 0x20000
    s_mov_b32 s14, 2457600
    s_mov_b32 s15, 0x20000
    s_mov_b32 s37, 0
    s_mov_b32 s38, 0
    """)
    def dma(slot, k):
        if k < 2:
            if "A" in ABL: return
            A(f"s_add_u32 m0, s35, {slot*SLOT + 1024*k}")
            A(f"buffer_load_dwordx4 {v(vDA[k])}, s[8:11], s37 offen lds")
            if k == 1:
                A("s_add_u32 s37, s37, 64")
                A("s_cmp_ge_u32 s37, 1280")
                A("s_cselect_b32 s10, 0, s10")
        else:
            if "B" in ABL: return
            j = k - 2
            A(f"s_add_u32 m0, s36, {slot*SLOT + 1024*j}")
            if j == 2: A("s_mov_b64 exec, 0xffffffff")
            A(f"buffer_load_dwordx4 {v(vDB[j])}, s[12:15], s38 offen lds")
            if j == 2:
                A("s_mov_b64 exec, -1")
                A(f"s_add_u32 s38, s38, {32*3840}")
    def rd(par, slot, k):
        if "rd" in ABL: return
        hi = slot >= 3
        so = (slot - 3 if hi else slot) * SLOT
        m = (lambda r: vHi[r]) if hi else (lambda r: r)
        if k < 4:
            A(f"ds_read_b128 {v(AF[par][k],4)}, {v(m(vAr))} offset:{so + 1024*k}")
        else:
            nt = k - 4
            base = m(vBe if nt % 2 == 0 else vBo)
            o = so + BOFF + nt * 32
            A(f"ds_read_b64_tr_b16 {v(BF[par][nt],2)}, {v(base)} offset:{o}")
            A(f"ds_read_b64_tr_b16 {v(BF[par][nt]+2,2)}, {v(base)} offset:{o+1280}")
    NV1 = 5 - (2 if "A" in ABL else 0) - (3 if "B" in ABL else 0)
    issued = []
    def prologue_dma():
        issued.append(1)
        for s_ in range(NSLOT - 1):
            for k in range(5): dma(s_, k)
    if pre is not None: pre(prologue_dma)
    if not issued: prologue_dma()
    if mid is not None: mid()
    for r in range(80):
        A(f"v_mov_b32 {v(r)}, 0")
    if not os.environ.get("NOPRIO"): A("s_setprio 3")
    A("s_mov_b32 s41, 0")
    A(f"s_waitcnt vmcnt({(NSLOT-2)*NV1})")
    A("s_barrier")
    for k in range(9): rd(0, 0, k)
    stamp()
    lq = A.newlabel("L_g_q")
    A(f"s_cmp_ge_u32 {ct}, 8")
    A(f"s_cbranch_scc1 {lq}")
    fin = A.newlabel("L_g_fin")
    ns0 = len(stamps)
    for variant in ("kv", "q"):
        del stamps[ns0:]
        if variant == "q": A.label(lq)
        loop = A.newlabel("L_g_loop")
        A.label(loop)
        def mf(nt, rt, par):
            if "mfma" in ABL: return
            a = v(AF[par][rt], 4); b = v(BF[par][nt], 4); c = v(ACC[nt][rt], 4)
            if variant == "kv": A(f"v_mfma_f32_16x16x32_bf16 {c}, {a}, {b}, {c}")
            else: A(f"v_mfma_f32_16x16x32_bf16 {c}, {b}, {a}, {c}")
        lex = A.newlabel("L_g_ex")
        for st in range(NSLOT):
            par = st & 1; nx = (st + 1) % NSLOT
            A(f"s_waitcnt vmcnt({(NSLOT-3)*NV1})")
            A("s_barrier")
            A("s_waitcnt lgkmcnt(0)")
            idx = 0
            extra = {1: [("r", 0)], 2: [("r", 1)], 3: [("r", 4)], 4: [("d", 0)], 5: [("r", 2)], 6: [("r", 3)], 7: [("r", 5)], 8: [("d", 2)],
                     9: [("r", 6)], 10: [("d", 1)], 11: [("r", 7)], 12: [("d", 3)], 13: [("r", 8)], 15: [("d", 4)]}
            for nt in range(5):
                for rt in range(4):
                    mf(nt, rt, par)
                    idx += 1
                    for kind, k in extra.get(idx, []):
                        if kind == "r": rd(par ^ 1, nx, k)
                        else: dma((st + NSLOT - 1) % NSLOT, k)
            if 20 % NSLOT and st == 20 % NSLOT - 1:
                A(f"s_cmp_eq_u32 s41, {20 // NSLOT}")
                A(f"s_cbranch_scc1 {lex}")
        A("s_add_u32 s41, s41, 1")
        A(f"s_cmp_lt_u32 s41, {(20 + NSLOT - 1) // NSLOT}")
        A(f"s_cbranch_scc1 {loop}")
        A.label(lex)
        A.fence()
        stamp()
        A(f"s_mov_b32 s56, {f2u(1.4426950408889634)}")
        A(f"s_mov_b32 s57, {f2u(1.4426950408889634)}")
        A(f"s_mov_b32 s58, {f2u(1e-6)}")
        A(f"s_mov_b32 s59, {f2u(1e-6)}")
        A("s_waitcnt lgkmcnt(0)")
        lane = 152; vi = 153; vq = 154; vO = 155
        A(f"v_mbcnt_lo_u32_b32 {v(lane)}, -1, 0")
        A(f"v_mbcnt_hi_u32_b32 {v(lane)}, -1, {v(lane)}")
        A(f"v_and_b32 {v(vi)}, 15, {v(lane)}")
        A(f"v_lshrrev_b32 {v(vq)}, 4, {v(lane)}")
        if variant == "q":
            A("s_waitcnt vmcnt(0)")
            if post is not None: post()
            T = 120
            VO = [124 + k for k in range(5)]
            A(f"s_lshr_b32 s34, s33, 4")
            A(f"s_lshl_b32 s36, s53, 2")
            A(f"s_add_u32 s34, s34, s36")
            A(f"s_lshl_b32 s34, s34, 5")
            A(f"s_sub_u32 s36, {ct}, 8")
            A(f"s_lshl_b32 s36, s36, 3")
            A(f"s_add_u32 s34, s34, s36")
            A(f"s_lshl_b32 s36, s54, 2")
            A(f"s_add_u32 s34, s34, s36")
            A(f"s_mul_i32 s34, s34, 768")
            A(f"s_add_u32 s34, s34, {WS_PQF}")
            A(f"v_lshl_add_u32 {v(vO)}, {v(vi)}, 4, s34")
            for k in range(5):
                A(f"v_add_u32 {v(T)}, {4*k}, {v(vq)}")
                A(f"v_mul_u32_u24 {v(T+1)}, 13108, {v(T)}")
                A(f"v_lshrrev_b32 {v(T+1)}, 16, {v(T+1)}")
                A(f"v_mul_u32_u24 {v(T+2)}, 5, {v(T+1)}")
                A(f"v_sub_u32 {v(T)}, {v(T)}, {v(T+2)}")
                A(f"v_mul_u32_u24 {v(T+1)}, 768, {v(T+1)}")
                A(f"v_lshrrev_b32 {v(T+2)}, 1, {v(T)}")
                A(f"v_lshl_add_u32 {v(T+1)}, {v(T+2)}, 8, {v(T+1)}")
                A(f"v_and_b32 {v(T)}, 1, {v(T)}")
                A(f"v_lshl_add_u32 {v(T+1)}, {v(T)}, 3, {v(T+1)}")
                A(f"v_add_u32 {v(VO[k])}, {v(T+1)}, {v(vO)}")
            vG_ = 130; vL_ = 131; zz = 132
            A(f"v_lshl_add_u32 {v(vG_)}, {v(lane)}, 4, s34")
            A(f"s_mul_i32 s36, s28, 12288")
            A(f"s_sub_u32 s37, s36, s34")
            for k in range(5): A(f"v_add_u32 {v(VO[k])}, s37, {v(VO[k])}")
            A(f"v_lshl_add_u32 {v(vL_)}, {v(lane)}, 4, s36")
            A(f"v_mov_b32 {v(zz)}, 0")
            A(f"v_mov_b32 {v(zz+1)}, 0")
            A(f"v_mul_u32_u24 {v(T)}, 768, {v(vq)}")
            A(f"v_lshl_add_u32 {v(T)}, {v(vi)}, 4, {v(T)}")
            A(f"v_add_u32 {v(T)}, s36, {v(T)}")
            A("s_barrier")
            for rt in range(4):
                A(f"ds_write_b64 {v(T)}, {v(zz,2)} offset:{3072*rt + 520}")
            A("s_mov_b32 s44, s50")
            A("s_mov_b32 s45, s51")
            k = 0
            for rt in range(4):
                for nt in range(5):
                    o = 80 + 2 * (k % 8); tt = 100 + 2 * (k % 4); k += 1
                    a0 = ACC[nt][rt]
                    phi_pair(A, a0, a0 + 1, tt, "s[56:57]", o)
                    phi_pair(A, a0 + 2, a0 + 3, tt, "s[56:57]", o + 1)
                    A(f"ds_write_b64 {v(VO[nt])}, {v(o,2)} offset:{3072*rt}")
                    if rt >= 1 and nt == 1:
                        A("s_waitcnt lgkmcnt(2)")
                        for j in range(3):
                            A(f"global_store_dwordx4 {v(vG_)}, {v(136+4*j,4)}, s[44:45] offset:{1024*j} {sc}")
                        A(f"s_add_u32 s44, s44, {32*768}")
                        A(f"s_addc_u32 s45, s45, 0")
                for j in range(3):
                    A(f"ds_read_b128 {v(136+4*j,4)}, {v(vL_)} offset:{3072*rt + 1024*j}")
                if rt == 1 and post2 is not None: post2(3)
            A("s_waitcnt lgkmcnt(0)")
            for j in range(3):
                A(f"global_store_dwordx4 {v(vG_)}, {v(136+4*j,4)}, s[44:45] offset:{1024*j} {sc}")
            A(f"s_branch {fin}")
        else:
            A("s_waitcnt vmcnt(0)")
            if post is not None: post()
            A("s_barrier")
            if stamp_task is not None: A(f"{TIMER} s[78:79]")
            A(f"s_mul_i32 s34, s53, 20480")
            A(f"v_lshl_add_u32 {v(vO)}, {v(lane)}, 4, s34")
            A(f"v_mov_b32 {v(130)}, 4")
            A(f"global_load_dword {v(131)}, {v(130)}, s[48:49] sc1")
            lw1 = A.newlabel("L_g_wc1"); lwj = A.newlabel("L_g_wcj")
            A("s_cmp_eq_u32 s54, 1")
            A(f"s_cbranch_scc1 {lw1}")
            for wc in range(2):
                if wc: A.label(lw1)
                k = 0
                for nt in (4, 3, 2, 1, 0):
                    src = KVPOS[5 * wc + nt]
                    for rp in range(2):
                        o = 80 + 4 * (k % 4); tt = 100 + 2 * (k % 4); k += 1
                        for h in range(2):
                            a = ACC[nt][2 * rp + h]
                            if src < 5:
                                phi_pair(A, a, a + 1, tt, "s[56:57]", o + 2 * h)
                                phi_pair(A, a + 2, a + 3, tt, "s[56:57]", o + 2 * h + 1)
                            else:
                                A(f"v_cvt_pk_bf16_f32 {v(o+2*h)}, {v(a)}, {v(a+1)}")
                                A(f"v_cvt_pk_bf16_f32 {v(o+2*h+1)}, {v(a+2)}, {v(a+3)}")
                        A(f"ds_write_b128 {v(vO)}, {v(o,4)} offset:{10240*rp + 1024*src}")
                if wc == 0: A(f"s_branch {lwj}")
            A.label(lwj)
            if post2 is not None: post2(1)
            hd = [40, 41]; cp = [42, 43]
            he = [[44 + 4 * j + r for r in range(4)] for j in range(2)]
            rp_ = [[52 + 4 * j + r for r in range(4)] for j in range(2)]
            T = 60
            A(f"s_lshl_b32 s34, s28, 10")
            A(f"v_lshl_add_u32 {v(vO)}, {v(lane)}, 4, s34")
            A("s_waitcnt lgkmcnt(0)")
            A("s_barrier")
            P = [[0, 4], [8, 12]]; Z = [16, 20]
            F = lambda ks, t: 80 + 16 * (ks % 2) + 4 * t
            def rdf(ks):
                A(f"ds_read_b128 {v(F(ks,0),4)}, {v(vO)} offset:{10240*ks}")
                A(f"ds_read_b128 {v(F(ks,1),4)}, {v(vO)} offset:{10240*ks + 1024}")
                A(f"ds_read_b128 {v(F(ks,2),4)}, {v(vO)} offset:{10240*ks + 5120}")
                A(f"ds_read_b128 {v(F(ks,3),4)}, {v(vO)} offset:{10240*ks + 6144}")
            rdf(0); rdf(1)
            ones = 64
            for r in range(4): A(f"v_mov_b32 {v(ones+r)}, 0x3f803f80")
            for ks in range(4):
                A(f"s_waitcnt lgkmcnt({4 if ks < 3 else 0})")
                for a in range(2):
                    for b in range(2):
                        c = v(P[a][b], 4) if ks else "0"
                        A(f"v_mfma_f32_16x16x32_bf16 {v(P[a][b],4)}, {v(F(ks,2+a),4)}, {v(F(ks,b),4)}, {c}")
                for b in range(2):
                    c = v(Z[b], 4) if ks else "0"
                    A(f"v_mfma_f32_16x16x32_bf16 {v(Z[b],4)}, {v(ones,4)}, {v(F(ks,b),4)}, {c}")
                if ks + 2 < 4: rdf(ks + 2)
            KB = 40960
            A(f"s_lshl_b32 s34, s28, 4")
            for j in range(2):
                A(f"v_add_u32 {v(T)}, s34, {v(vi)}")
                if j: A(f"v_add_u32 {v(T)}, 16, {v(T)}")
                A(f"v_mul_u32_u24 {v(hd[j])}, 3277, {v(T)}")
                A(f"v_lshrrev_b32 {v(hd[j])}, 16, {v(hd[j])}")
                A(f"v_mul_u32_u24 {v(T+1)}, 20, {v(hd[j])}")
                A(f"v_sub_u32 {v(T)}, {v(T)}, {v(T+1)}")
                A(f"v_lshlrev_b32 {v(cp[j])}, 2, {v(T)}")
                for r in range(4):
                    A(f"v_lshl_add_u32 {v(T)}, {v(vq)}, 2, s34")
                    A(f"v_add_u32 {v(T)}, {16*j + r}, {v(T)}")
                    A(f"v_mul_u32_u24 {v(he[j][r])}, 3277, {v(T)}")
                    A(f"v_lshrrev_b32 {v(he[j][r])}, 16, {v(he[j][r])}")
                    A(f"v_add_u32 {v(T)}, {v(T)}, {v(he[j][r])}")
                    A(f"v_mul_u32_u24 {v(rp_[j][r])}, 80, {v(T)}")
            A(f"v_mov_b32 {v(T+2)}, 6720")
            A(f"v_mov_b32 {v(T+3)}, 1600")
            lsk = A.newlabel("L_g_sk")
            def put(a, b):
                for r in range(4):
                    tt = 68 + (r % 4)
                    A(f"v_cmp_eq_u32 vcc, {v(he[a][r])}, {v(hd[b])}")
                    A(f"v_add_u32 {v(tt)}, {v(rp_[a][r])}, {v(cp[b])}")
                    A(f"v_cndmask_b32 {v(tt)}, {v(T+2)}, {v(tt)}, vcc")
                    A(f"ds_write_b32 {v(tt)}, {v(P[a][b]+r)} offset:{KB}")
            def putz(b):
                tt = 72 + b
                A(f"v_mul_u32_u24 {v(tt)}, {21*80}, {v(hd[b])}")
                A(f"v_add3_u32 {v(tt)}, {v(tt)}, {v(cp[b])}, {v(T+3)}")
                A(f"ds_write_b32 {v(tt)}, {v(Z[b])} offset:{KB}")
            put(0, 1); put(1, 0); put(1, 1); putz(1)
            A("s_cmp_lg_u32 s28, 0")
            A(f"s_cbranch_scc1 {lsk}")
            put(0, 0); putz(0)
            A.label(lsk)
            A(f"s_mul_i32 s34, {ct}, {4*21*20*4}")
            A(f"s_add_u32 s34, s34, {WS_KV}")
            A(f"s_add_u32 s44, s50, s34")
            A(f"s_addc_u32 s45, s51, 0")
            A(f"s_mov_b32 s46, {4*21*20*4}")
            A(f"s_mov_b32 s47, 0x20000")
            A(f"s_lshl_b32 s34, s28, 8")
            A(f"v_lshl_add_u32 {v(vO)}, {v(lane)}, 2, s34")
            A("s_waitcnt lgkmcnt(0)")
            A("s_barrier")
            for m in range(7):
                A(f"ds_read_b32 {v(80+m)}, {v(vO)} offset:{KB + 1024*m}")
            lz = A.newlabel("L_g_z"); lzo = A.newlabel("L_g_zo")
            if stamp_task is not None: A(f"{TIMER} s[74:75]")
            A.label(lz)
            A("s_waitcnt vmcnt(0)")
            A(f"v_readfirstlane_b32 s34, {v(131)}")
            A("s_cmp_lg_u32 s34, 0")
            A(f"s_cbranch_scc1 {lzo}")
            A("s_sleep 2")
            A("s_add_u32 s93, s93, 1")
            A("s_cmp_gt_u32 s93, 300000")
            A(f"s_cbranch_scc1 {lzo}")
            A(f"global_load_dword {v(131)}, {v(130)}, s[48:49] sc1")
            A(f"s_branch {lz}")
            A.label(lzo)
            if stamp_task is not None: A(f"{TIMER} s[76:77]")
            A("s_waitcnt lgkmcnt(0)")
            for m in range(7):
                if m < 4:
                    A(f"buffer_atomic_add_f32 {v(80+m)}, {v(vO)}, s[44:47], 0 offen offset:{1024*m}")
                else:
                    if m == 4: A("s_mov_b32 s34, 4096")
                    A(f"buffer_atomic_add_f32 {v(80+m)}, {v(vO)}, s[44:47], s34 offen offset:{1024*(m-4)}")
            A(f"s_branch {fin}")
    A.label(fin)
    if stamp_task is not None:
        stamp()
        A("s_waitcnt vmcnt(0)")
        stamp()
        A("s_waitcnt lgkmcnt(0)")
        A(f"s_lshl_b32 s36, {stamp_task}, 3")
        A(f"s_add_u32 s36, s36, s28")
        A(f"s_lshl_b32 s36, s36, 6")
        A(f"s_add_u32 s36, s36, {WS_STAMP}")
        A(f"v_mov_b32 v1, s36")
        for k in stamps + [5, 6, 7]:
            A(f"v_mov_b32 v2, s{64+2*k}")
            A(f"global_store_dword v1, v2, s[50:51] offset:{4*k}")
        A(f"s_getreg_b32 s36, hwreg(HW_REG_HW_ID)")
        A(f"v_mov_b32 v2, s36")
        A(f"global_store_dword v1, v2, s[50:51] offset:56")
        A(f"s_getreg_b32 s36, hwreg(HW_REG_XCC_ID)")
        A(f"v_mov_b32 v2, s36")
        A(f"global_store_dword v1, v2, s[50:51] offset:60")
    return NV, GEMM_LDS
```

```python
import numpy as np, os
from asmlib import *
TIMER = os.environ.get('TIMER', 's_memtime')
from s4 import Regs, v, f2u
from s4b import WS_AT, WS_UT, WS_FLAG, WS_STAMP
from s4f import PREG, gen_params1, gen_params2, gen_transpose

KRS = 4576
KX = 9152
XB = 17344
C0 = 0
C1 = 4164
UCS = 8288
CX = XB + 2 * UCS
ST_ROW = 288
ST_SIZE = 16 * ST_ROW
S4_SIZE = CX + 4 * 4096
SB = 163840 - S4_SIZE
assert SB % 64 == 0
sKR, sST, sUC, sCH, sHF, sD, sT0, sT1 = "s94", "s95", "s96", "s97", "s98", "s99", "s100", "s101"
sSB = "s85"
SB2 = SB - S4_SIZE
vDSK = 239
UD = [160, 164]; UP = 168; vFA = 169; vFD = 170; vN0 = 171; vN = 172; vUA = 173; vTAU = 174

def setup_sregs(A, task):
    A(f"s_lshr_b32 {sCH}, s28, 1")
    A(f"s_and_b32 {sHF}, s28, 1")
    A(f"s_lshl_b32 {sD}, {task}, 1")
    A(f"s_add_u32 {sD}, {sD}, {sCH}")
    A(f"s_mul_i32 {sST}, s28, {ST_SIZE}")
    A(f"s_add_u32 {sST}, {sST}, {XB}")
    A(f"s_add_u32 {sST}, {sST}, {sSB}")
    A(f"s_mul_i32 {sKR}, {sCH}, {KRS}")
    A(f"s_add_u32 {sKR}, {sKR}, {sSB}")
    A(f"s_mul_i32 {sUC}, {sCH}, {UCS}")
    A(f"s_add_u32 {sUC}, {sUC}, {XB}")
    A(f"s_add_u32 {sUC}, {sUC}, {sSB}")

def gen_kgen(A, task, wait_params, hook=None, hook0=None):
    R = Regs(1, 152)
    L2E = f2u(1.4426950408889634)
    L2E_LO = f2u(1.4426950408889634 - float(np.float32(1.4426950408889634)))
    LN2 = f2u(0.6931471805599453)
    INV2PI = f2u(0.15915494309189535)
    setup_sregs(A, task)
    P = list(PREG)
    vLane = R.alloc(); vT = R.alloc(); vT2 = R.alloc(); vI = R.alloc(); vQ = R.alloc()
    A(f"v_mbcnt_lo_u32_b32 {v(vLane)}, -1, 0")
    A(f"v_mbcnt_hi_u32_b32 {v(vLane)}, -1, {v(vLane)}")
    A(f"v_and_b32 {v(vI)}, 15, {v(vLane)}")
    A(f"v_lshrrev_b32 {v(vQ)}, 4, {v(vLane)}")
    vZ = R.alloc(2, 2)
    A(f"v_mov_b32 {v(vZ)}, 0")
    A(f"v_mov_b32 {v(vZ+1)}, 0")
    A(f"v_min_u32 {v(vT)}, 59, {v(vLane)}")
    A(f"v_lshl_add_u32 {v(vT)}, {v(vT)}, 3, {sKR}")
    A(f"ds_write_b64 {v(vT)}, {v(vZ,2)} offset:4096")
    R.rel(vZ, 2)
    SW = [R.alloc() for _ in range(4)]
    A(f"v_lshl_add_u32 {v(SW[0])}, {v(vLane)}, 2, {sST}")
    for k in range(1, 4):
        A(f"v_add_u32 {v(SW[k])}, {4*ST_ROW*k}, {v(SW[0])}")
    vSR = R.alloc()
    A(f"v_mul_u32_u24 {v(vSR)}, {ST_ROW}, {v(vI)}")
    A(f"v_lshl_add_u32 {v(vSR)}, {v(vQ)}, 4, {v(vSR)}")
    A(f"v_add_u32 {v(vSR)}, {sST}, {v(vSR)}")
    vX = R.alloc(); vXp = R.alloc()
    A(f"s_lshl_b32 {sT0}, s28, 11")
    A(f"v_lshl_add_u32 {v(vX)}, {v(vLane)}, 4, {sT0}")
    A(f"v_xor_b32 {v(vXp)}, 2048, {v(vX)}")
    A(f"s_add_u32 {sT0}, {sSB}, {KX}")
    A(f"v_add_u32 {v(vX)}, {sT0}, {v(vX)}")
    A(f"v_add_u32 {v(vXp)}, {sT0}, {v(vXp)}")
    A(f"s_mov_b32 s44, {L2E}")
    A(f"s_mov_b32 s45, {L2E_LO}")
    A(f"s_mov_b32 s46, {LN2}")
    A(f"s_mov_b32 s47, {INV2PI}")
    wait_params()
    for k in range(8):
        A(f"v_lshlrev_b32 {v(P[k])}, 16, {v(P[k])}")
    Are, Aim, Bre, Bim, Cre, Cim, Ldt, Dsk = P
    A(f"v_mul_f32 {v(vT)}, s44, {v(Ldt)}")
    A(f"v_fma_f32 {v(vT2)}, {v(Ldt)}, s44, -{v(vT)}")
    A(f"v_fma_f32 {v(vT2)}, {v(Ldt)}, s45, {v(vT2)}")
    A(f"v_exp_f32 {v(vT)}, {v(vT)}")
    A(f"v_mul_f32 {v(vT2)}, s46, {v(vT2)}")
    A(f"v_fma_f32 {v(vT)}, {v(vT)}, {v(vT2)}, {v(vT)}")
    A(f"v_cvt_pk_bf16_f32 {v(vT)}, {v(vT)}, {v(vT)}")
    A(f"v_lshlrev_b32 {v(Ldt)}, 16, {v(vT)}")
    dt = Ldt
    A(f"v_mul_f32 {v(Are)}, {v(dt)}, {v(Are)}")
    A(f"v_mul_f32 {v(Aim)}, {v(dt)}, {v(Aim)}")
    A(f"v_mul_f32 {v(Are)}, s44, {v(Are)}")
    A(f"v_mul_f32 {v(Aim)}, s47, {v(Aim)}")
    A(f"v_mul_f32 {v(Bre)}, {v(dt)}, {v(Bre)}")
    A(f"v_mul_f32 {v(Bim)}, {v(dt)}, {v(Bim)}")
    W = R.alloc(2, 2)
    A(f"v_mul_f32 {v(W)}, {v(Cre)}, {v(Bre)}")
    A(f"v_fma_f32 {v(W)}, -{v(Cim)}, {v(Bim)}, {v(W)}")
    A(f"v_mul_f32 {v(W+1)}, {v(Cre)}, {v(Bim)}")
    A(f"v_fma_f32 {v(W+1)}, {v(Cim)}, {v(Bre)}, {v(W+1)}")
    def cexp(x, conj=False):
        z = R.alloc(2, 2)
        xs = f2u(float(x))
        if x == 1:
            A(f"v_exp_f32 {v(vT)}, {v(Are)}")
            A(f"v_fract_f32 {v(vT2)}, {v(Aim)}")
        else:
            A(f"v_mul_f32 {v(vT)}, {xs}, {v(Are)}")
            A(f"v_mul_f32 {v(vT2)}, {xs}, {v(Aim)}")
            A(f"v_exp_f32 {v(vT)}, {v(vT)}")
            A(f"v_fract_f32 {v(vT2)}, {v(vT2)}")
        A(f"v_cos_f32 {v(z)}, {v(vT2)}")
        A(f"v_sin_f32 {v(z+1)}, {v(vT2)}")
        A(f"v_mul_f32 {v(z)}, {v(vT)}, {v(z)}")
        A(f"v_mul_f32 {v(z+1)}, {'-' if conj else ''}{v(vT)}, {v(z+1)}")
        return z
    def cmul(x, y, z=None):
        if z is None: z = R.alloc(2, 2)
        assert z != x and z != y
        A(f"v_pk_mul_f32 {v(z,2)}, {v(x,2)}, {v(y,2)} op_sel:[0,0] op_sel_hi:[1,0]")
        A(f"v_pk_fma_f32 {v(z,2)}, {v(x,2)}, {v(y,2)}, {v(z,2)} op_sel:[1,1,0] op_sel_hi:[0,1,1] neg_lo:[1,0,0]")
        return z
    HL = [R.alloc() for _ in range(4)]
    cnt = [0]; pending = []; held = []
    def drain(n=1):
        for _ in range(n):
            if pending: A(pending.pop(0))
    def flush_held():
        if held:
            h, row = held.pop()
            A(f"ds_write_b32 {v(SW[row>>2])}, {v(h)} offset:{ST_ROW*(row&3)}")
    def swrite(x, row):
        hh = HL[cnt[0] % 4]; cnt[0] += 1
        A(f"v_cvt_pk_bf16_f32 {v(hh)}, {v(x)}, {v(x+1)}")
        if held and (held[0][1] >> 2) == (row >> 2):
            h0, r0 = held.pop()
            A(f"ds_write2_b32 {v(SW[row>>2])}, {v(h0)}, {v(hh)} offset0:{72*(r0&3)} offset1:{72*(row&3)}")
        else:
            flush_held()
            held.append((hh, row))
        drain(1)
    tmp = [R.alloc(2, 2) for _ in range(2)]
    def chain(base, step, rows):
        cur = base
        for k, row in enumerate(rows):
            if k > 0: cur = cmul(cur, step, tmp[k & 1])
            swrite(cur, row)
    Y1 = cexp(8, conj=True)
    one = R.alloc(2, 2)
    A(f"v_mov_b32 {v(one)}, 1.0")
    A(f"v_mov_b32 {v(one+1)}, 0")
    swrite(one, 0)
    R.rel(one, 2)
    chain(Y1, Y1, range(1, 8))
    S = cexp(64, conj=True)
    chain(S, Y1, range(8, 16))
    R.rel(Y1, 2); R.rel(S, 2)
    Bh = [R.alloc(4, 4) for _ in range(4)]
    flush_held()
    for k in range(4):
        A(f"ds_read_b128 {v(Bh[k],4)}, {v(vSR)} offset:{64*k}")
    Ah = [R.alloc(4, 4) for _ in range(4)]
    KT = [R.alloc(4, 4) for _ in range(3)]
    def tile_reads():
        flush_held()
        for k in range(4):
            A(f"ds_read_b128 {v(Ah[k],4)}, {v(vSR)} offset:{64*k}")
    def tile_mfmas(T):
        return [f"v_mfma_f32_16x16x32_bf16 {v(KT[T],4)}, {v(Ah[k],4)}, {v(Bh[k],4)}, {'0' if k == 0 else v(KT[T],4)}" for k in range(4)]
    if hook0 is not None: hook0()
    E128 = cexp(128); E512 = cexp(512)
    V = [None] * 8
    V[0] = W
    for i in (1, 2, 3): V[i] = cmul(V[i-1], E128)
    for i in range(4, 8): V[i] = cmul(V[i-4], E512)
    V8 = cmul(V[4], E512); V12 = cmul(V8, E512)
    chain(V8, E128, (0, 1, 4, 5))
    chain(V12, E128, (8, 9, 12, 13, 2))
    for z in (V8, V12, E128, E512): R.rel(z, 2)
    tile_reads()
    E1 = cexp(1)
    E2 = cmul(E1, E1); E4 = cmul(E2, E2)
    A("s_waitcnt lgkmcnt(0)")
    pending += tile_mfmas(2)
    chain(V[2], E2, (0, 1, 4, 5))
    chain(V[3], E2, (8, 9, 12, 13))
    for q in range(4):
        chain(V[4 + q], E4, (4 * q + 2, 4 * q + 3))
    drain(100)
    if hook is not None: hook()
    tile_reads()
    z1 = cmul(V[0], E1); z2 = cmul(z1, E1)
    A("s_waitcnt lgkmcnt(0)")
    pending += tile_mfmas(1)
    swrite(V[0], 0); swrite(z1, 1)
    chain(z2, E1, range(2, 8))
    chain(V[1], E1, range(8, 16))
    drain(100)
    tile_reads()
    a0 = R.alloc(); a3 = R.alloc(); a3g = R.alloc(); a2 = R.alloc(); a1 = R.alloc(); a1s = R.alloc()
    A(f"v_lshrrev_b32 {v(vT)}, 1, {v(vQ)}")
    A(f"v_lshlrev_b32 {v(vT)}, 8, {v(vT)}")
    A(f"v_and_b32 {v(vT2)}, 1, {v(vQ)}")
    A(f"v_lshl_add_u32 {v(vT)}, {v(vT2)}, 3, {v(vT)}")
    A(f"v_lshl_add_u32 {v(vT)}, {v(vI)}, 4, {v(vT)}")
    A(f"v_sub_u32 {v(vT)}, {sKR}, {v(vT)}")
    A(f"v_add_u32 {v(a0)}, 4088, {v(vT)}")
    A(f"v_add_u32 {v(a1)}, {2*(2045-256)}, {v(vT)}")
    A(f"v_lshlrev_b32 {v(vT)}, 9, {v(vQ)}")
    A(f"v_lshl_add_u32 {v(vT)}, {v(vI)}, 4, {v(vT)}")
    A(f"v_sub_u32 {v(a3)}, {sKR}, {v(vT)}")
    A(f"v_add_u32 {v(a3)}, {2040 - 256}, {v(a3)}")
    A(f"v_and_b32 {v(vT2)}, 1, {v(vI)}")
    A(f"v_lshl_add_u32 {v(a3g)}, {v(vT2)}, 1, {v(a3)}")
    A(f"v_subrev_u32 {v(a3g)}, 2, {v(a3g)}")
    A(f"v_lshlrev_b32 {v(vT)}, 8, {v(vQ)}")
    A(f"v_lshl_add_u32 {v(vT)}, {v(vI)}, 4, {v(vT)}")
    A(f"v_sub_u32 {v(a2)}, {sKR}, {v(vT)}")
    A(f"v_add_u32 {v(a2)}, 3060, {v(a2)}")
    A(f"v_cmp_eq_u32 vcc, 0, {v(vLane)}")
    A(f"v_add_u32 {v(a1s)}, 6, {v(a1)}")
    A(f"v_add_u32 {v(vT)}, 2, {v(a1)}")
    A(f"v_cndmask_b32 {v(a1s)}, {v(a1s)}, {v(vT)}, vcc")
    A("s_waitcnt lgkmcnt(0)")
    for s in tile_mfmas(0): A(s)
    X1 = Ah[0]; X2 = Ah[1]
    lh1 = A.newlabel("L_k_h1"); lj = A.newlabel("L_k_j")
    A(f"s_cmp_eq_u32 {sHF}, 1")
    A.fence()
    A(f"s_cbranch_scc1 {lh1}")
    A(f"ds_write_b128 {v(vX)}, {v(KT[1],4)}")
    A(f"ds_write_b128 {v(vX)}, {v(KT[2],4)} offset:1024")
    A("s_waitcnt lgkmcnt(0)")
    A("s_barrier")
    A(f"ds_read_b128 {v(X1,4)}, {v(vXp)}")
    A("s_waitcnt lgkmcnt(0)")
    A(f"v_pk_add_f32 {v(X1,2)}, {v(X1,2)}, {v(KT[0],2)}")
    A(f"v_pk_add_f32 {v(X1+2,2)}, {v(X1+2,2)}, {v(KT[0]+2,2)}")
    A(f"v_cvt_pk_bf16_f32 {v(X2)}, {v(X1+3)}, {v(X1+2)}")
    A(f"v_cvt_pk_bf16_f32 {v(X2+1)}, {v(X1+1)}, {v(X1)}")
    A(f"ds_write_b64 {v(a0)}, {v(X2,2)}")
    A(f"s_branch {lj}")
    A.label(lh1)
    A(f"ds_write_b128 {v(vX)}, {v(KT[0],4)}")
    A("s_waitcnt lgkmcnt(0)")
    A("s_barrier")
    A(f"ds_read_b128 {v(X1,4)}, {v(vXp)}")
    A(f"ds_read_b128 {v(X2,4)}, {v(vXp)} offset:1024")
    A("s_waitcnt lgkmcnt(0)")
    for k in range(2):
        A(f"v_pk_add_f32 {v(X1+2*k,2)}, {v(X1+2*k,2)}, {v(KT[1]+2*k,2)}")
        A(f"v_pk_add_f32 {v(X2+2*k,2)}, {v(X2+2*k,2)}, {v(KT[2]+2*k,2)}")
    D = [Ah[2], Ah[2] + 2, Ah[3]]
    for rho in range(3):
        A(f"v_cvt_pk_bf16_f32 {v(D[rho])}, {v(X2+rho)}, {v(X2+rho)}")
        A(f"v_mov_b32 {v(D[rho]+1)}, {v(D[rho])}")
    A(f"ds_write2_b64 {v(a3)}, {v(D[0],2)}, {v(D[0],2)} offset0:32 offset1:33")
    A(f"ds_write2_b64 {v(a3)}, {v(D[1],2)}, {v(D[1],2)} offset0:0 offset1:1")
    A(f"v_mov_b32 {v(vT)}, {sKR}")
    A("s_mov_b64 exec, 1")
    A(f"ds_write_b64 {v(vT)}, {v(D[2],2)}")
    A("s_mov_b64 exec, -1")
    A(f"ds_write_b16 {v(a3g)}, {v(D[0])} offset:256")
    A(f"ds_write_b16 {v(a3g)}, {v(D[1])}")
    E = [Bh[0], Bh[0] + 2, Bh[1]]
    A(f"v_cvt_pk_bf16_f32 {v(E[0])}, {v(X1+3)}, {v(X1+3)}")
    A(f"v_cvt_pk_bf16_f32 {v(E[0]+1)}, {v(X1+3)}, {v(X1+2)}")
    A(f"v_cvt_pk_bf16_f32 {v(E[1])}, {v(X1+2)}, {v(X1+2)}")
    A(f"ds_write2_b32 {v(a2)}, {v(E[0])}, {v(E[0]+1)} offset0:0 offset1:1")
    A(f"ds_write2_b32 {v(a2)}, {v(E[1])}, {v(E[1])} offset0:2 offset1:3")
    A(f"v_cvt_pk_bf16_f32 {v(E[2])}, {v(X1+1)}, {v(X1+1)}")
    A(f"v_cvt_pk_bf16_f32 {v(E[2]+1)}, {v(X1)}, {v(X1)}")
    A(f"ds_write_b16 {v(a1)}, {v(E[2])}")
    A(f"ds_write_b32 {v(a1)}, {v(E[2]+1)} offset:2")
    A(f"ds_write_b16 {v(a1s)}, {v(E[2]+1)}")
    A.label(lj)
    A(f"v_mov_b32 {v(vT2)}, 0")
    A(f"v_min_u32 {v(vT)}, 7, {v(vLane)}")
    A(f"v_lshl_add_u32 {v(vT)}, {v(vT)}, 2, {sUC}")
    A(f"ds_write_b32 {v(vT)}, {v(vT2)} offset:{C0}")
    A(f"v_min_u32 {v(vT)}, 6, {v(vLane)}")
    A(f"v_lshl_add_u32 {v(vT)}, {v(vT)}, 2, {sUC}")
    A(f"ds_write_b32 {v(vT)}, {v(vT2)} offset:{C1}")
    A("s_waitcnt lgkmcnt(0)")

def gen_flag_issue(A, task):
    A(f"v_mbcnt_lo_u32_b32 {v(vTAU)}, -1, 0")
    A(f"v_mbcnt_hi_u32_b32 {v(vTAU)}, -1, {v(vTAU)}")
    A(f"s_mul_i32 {sT0}, {task}, 820")
    A(f"s_lshr_b32 {sT0}, {sT0}, 16")
    A(f"s_lshl_b32 {sT0}, {sT0}, 6")
    A(f"s_add_u32 {sT0}, {sT0}, {WS_FLAG}")
    A(f"v_and_b32 {v(vFA)}, 15, {v(vTAU)}")
    A(f"v_lshl_add_u32 {v(vFA)}, {v(vFA)}, 2, {sT0}")
    A(f"v_mov_b32 {v(vN0)}, 0")
    A(f"global_load_dword {v(vN)}, {v(vN0)}, s[48:49] sc1")
    A(f"global_load_dword {v(vFD)}, {v(vFA)}, s[50:51] sc1")
    A(f"s_lshl_b32 {sT0}, {sHF}, 6")
    A(f"v_add_u32 {v(vTAU)}, {sT0}, {v(vTAU)}")
    A(f"s_lshl_b32 {sT0}, {sD}, 12")
    A(f"s_add_u32 {sT0}, {sT0}, {WS_UT}")
    A(f"v_lshl_add_u32 {v(vUA)}, {v(vTAU)}, 5, {sT0}")

def gen_flag_check(A, nlater):
    lpn = A.newlabel("L_u_pn"); lgo = A.newlabel("L_u_go"); lpl = A.newlabel("L_u_pl"); lok = A.newlabel("L_u_ok")
    A(f"s_waitcnt vmcnt({nlater})")
    A.label(lpn)
    A(f"v_readfirstlane_b32 s52, {v(vN)}")
    A("s_cmp_lg_u32 s52, 0")
    A(f"s_cbranch_scc1 {lgo}")
    A("s_sleep 2")
    A("s_add_u32 s93, s93, 1")
    A("s_cmp_gt_u32 s93, 300000")
    A(f"s_cbranch_scc1 {lgo}")
    A(f"global_load_dword {v(vN)}, {v(vN0)}, s[48:49] sc1")
    A("s_waitcnt vmcnt(0)")
    A(f"s_branch {lpn}")
    A.label(lgo)
    A.label(lpl)
    A(f"v_cmp_ne_u32 vcc, s52, {v(vFD)}")
    A(f"s_cbranch_vccz {lok}")
    A("s_sleep 4")
    A("s_add_u32 s93, s93, 1")
    A("s_cmp_gt_u32 s93, 300000")
    A(f"s_cbranch_scc1 {lok}")
    A(f"global_load_dword {v(vFD)}, {v(vFA)}, s[50:51] sc1")
    A("s_waitcnt vmcnt(0)")
    A(f"s_branch {lpl}")
    A.label(lok)
    ut_loads(A)

def ut_loads(A):
    A(f"global_load_dwordx4 {v(UD[0],4)}, {v(vUA)}, s[50:51] sc1")
    A(f"global_load_dwordx4 {v(UD[1],4)}, {v(vUA)}, s[50:51] offset:16 sc1")
    A(f"global_load_dword {v(UP)}, {v(vUA)}, s[50:51] offset:-4 sc1")

def gen_conv(A, sc="", sig=None, extra=None, stamp=None, after_mfma=None):
    R = Regs(1, 160)
    vLane = R.alloc(); vT = R.alloc(); vT2 = R.alloc(); vI = R.alloc(); vQ = R.alloc()
    A(f"v_mbcnt_lo_u32_b32 {v(vLane)}, -1, 0")
    A(f"v_mbcnt_hi_u32_b32 {v(vLane)}, -1, {v(vLane)}")
    A(f"v_and_b32 {v(vI)}, 15, {v(vLane)}")
    A(f"v_lshrrev_b32 {v(vQ)}, 4, {v(vLane)}")
    vK = R.alloc(); vU = [R.alloc() for _ in range(4)]
    A(f"v_lshlrev_b32 {v(vT)}, 5, {v(vI)}")
    A(f"v_lshlrev_b32 {v(vT2)}, 4, {v(vQ)}")
    A(f"v_sub_u32 {v(vK)}, {v(vT2)}, {v(vT)}")
    A(f"s_lshl_b32 {sT0}, {sHF}, 8")
    A(f"s_add_u32 {sT1}, {sT0}, {sKR}")
    A(f"s_add_u32 {sT1}, {sT1}, 480")
    A(f"v_add_u32 {v(vK)}, {sT1}, {v(vK)}")
    A(f"s_add_u32 {sT0}, {sT0}, {sUC}")
    A(f"v_lshlrev_b32 {v(vT)}, 1, {v(vI)}")
    A(f"v_add_u32 {v(vT)}, {v(vT)}, {v(vT2)}")
    A(f"v_and_b32 {v(vT2)}, 1, {v(vI)}")
    A(f"v_cmp_eq_u32 vcc, 0, {v(vT2)}")
    A(f"v_mov_b32 {v(vU[0])}, {C0 + 2}")
    A(f"v_mov_b32 {v(vU[1])}, {C1}")
    A(f"v_cndmask_b32 {v(vU[0])}, {v(vU[0])}, {v(vU[1])}, vcc")
    A(f"v_add3_u32 {v(vU[0])}, {v(vU[0])}, {v(vT)}, {sT0}")
    for k in range(1, 4):
        A(f"v_add_u32 {v(vU[k])}, {1024*k}, {v(vU[0])}")
    UO = [R.alloc(4, 4) for _ in range(2)]
    A(f"v_cmp_eq_u32 vcc, 0, {v(vTAU)}")
    A(f"v_lshl_add_u32 {v(vT)}, {v(vTAU)}, 5, {sUC}")
    lw0 = A.newlabel("L_c_w0"); lw1 = A.newlabel("L_c_w1")
    A("s_cmp_eq_u32 s84, 2")
    A(f"s_cbranch_scc1 {lw0}")
    A("s_waitcnt vmcnt(0)")
    A.label(lw0)
    A("s_waitcnt vmcnt(7)")
    A(f"v_cndmask_b32 {v(UP)}, {v(UP)}, 0, vcc")
    A(f"ds_write_b128 {v(vT)}, {v(UD[0],4)} offset:{C0 + 32}")
    A(f"ds_write_b128 {v(vT)}, {v(UD[1],4)} offset:{C0 + 48}")
    seq = [UP] + [UD[0] + k for k in range(4)] + [UD[1] + k for k in range(4)]
    for k in range(8):
        A(f"v_alignbit_b32 {v(UO[k//4] + k%4)}, {v(seq[k+1])}, {v(seq[k])}, 16")
    A(f"ds_write_b128 {v(vT)}, {v(UO[0],4)} offset:{C1 + 28}")
    A(f"ds_write_b128 {v(vT)}, {v(UO[1],4)} offset:{C1 + 44}")
    A("s_waitcnt lgkmcnt(0)")
    A("s_barrier")
    sg = [R.alloc(), R.alloc()]
    for k in range(2): R.rel(UO[k], 4)
    extra_ops = []
    if extra is not None:
        amt = [R.alloc() for _ in range(9)]
        extra_ops = extra(amt)
    if stamp: stamp()
    ACC = [R.alloc(4, 4) for _ in range(8)]
    NKS = 9; NUS = 5
    KS = [R.alloc(4, 4) for _ in range(NKS)]
    US = [R.alloc(4, 4) for _ in range(NUS)]
    ops = []
    for rr in range(4):
        if rr % 2 == 1:
            for m in range(8):
                for phi in range(8 - m): ops.append((rr, m, phi))
        else:
            for m in range(7, -1, -1):
                for phi in range(8 - m): ops.append((rr, m, phi))
    first = {}; last = {}
    for idx, (rr, m, phi) in enumerate(ops):
        for key in (("K", rr, phi), ("U", rr, m)):
            first.setdefault(key, idx); last[key] = idx
    LEAD = 10
    loads = []
    for kind, nslots in (("K", NKS), ("U", NUS)):
        keys = sorted([k for k in first if k[0] == kind], key=lambda k: first[k])
        freeat = [-1] * nslots
        for k in keys:
            s = min(range(nslots), key=lambda s: freeat[s])
            assert freeat[s] < first[k]
            issue = max(freeat[s] + 1, first[k] - LEAD, 0)
            loads.append((issue, first[k], k, s))
            freeat[s] = last[k]
    loads.sort()
    slot = {k: s for (_, _, k, s) in loads}
    issued = []; done_upto = [0]; li = 0; started = set()
    for idx, (rr, m, phi) in enumerate(ops):
        while li < len(loads) and loads[li][0] <= idx:
            _, _, k, s = loads[li]; li += 1
            if k[0] == "K":
                A(f"ds_read_b128 {v(KS[s],4)}, {v(vK)} offset:{64*k[1] + 512*(7-k[2])}")
                issued.append(k)
            else:
                o = 16 * k[1] + 128 * (k[2] & 1)
                A(f"ds_read2_b32 {v(US[s],2)}, {v(vU[k[2]>>1])} offset0:{o} offset1:{o+1}")
                A(f"ds_read2_b32 {v(US[s]+2,2)}, {v(vU[k[2]>>1])} offset0:{o+2} offset1:{o+3}")
                issued.append(k); issued.append(k)
        needpos = max(len(issued) - 1 - issued[::-1].index(k) for k in (("K", rr, phi), ("U", rr, m)))
        if needpos + 1 > done_upto[0]:
            N = min(len(issued) - (needpos + 1), 15)
            A(f"s_waitcnt lgkmcnt({N})")
            done_upto[0] = len(issued) - N
        c = m + phi
        cc = v(ACC[c], 4) if c in started else "0"
        started.add(c)
        A(f"v_mfma_f32_16x16x32_bf16 {v(ACC[c],4)}, {v(US[slot[('U',rr,m)]],4)}, {v(KS[slot[('K',rr,phi)]],4)}, {cc}")
        if idx == 30: sig(sg[0], sg[1])
        if extra_ops and idx > 30 and idx % 4 == 3: extra_ops.pop(0)()
    if stamp: stamp()
    if after_mfma is not None: after_mfma()
    Xr = [KS[k] for k in range(4)]
    Ur = [US[k] for k in range(4)]
    vX = R.alloc(); vXp = R.alloc()
    A(f"s_lshl_b32 {sT0}, s28, 12")
    A(f"v_lshl_add_u32 {v(vX)}, {v(vLane)}, 4, {sT0}")
    A(f"v_xor_b32 {v(vXp)}, 4096, {v(vX)}")
    A(f"s_add_u32 {sT0}, {sSB}, {CX}")
    A(f"v_add_u32 {v(vX)}, {sT0}, {v(vX)}")
    A(f"v_add_u32 {v(vXp)}, {sT0}, {v(vXp)}")
    A(f"v_lshlrev_b32 {v(vT)}, 5, {v(vI)}")
    A(f"v_lshl_add_u32 {v(vT)}, {v(vQ)}, 3, {v(vT)}")
    A(f"s_lshl_b32 {sT0}, {sHF}, 11")
    A(f"s_add_u32 {sT1}, {sT0}, {sUC}")
    A(f"v_add_u32 {v(vT2)}, {sT1}, {v(vT)}")
    A(f"s_lshl_b32 {sT1}, {sD}, 12")
    A(f"s_add_u32 {sT1}, {sT1}, {sT0}")
    A(f"v_add_u32 {v(vT)}, {sT1}, {v(vT)}")
    for k in range(4):
        A(f"ds_read_b64 {v(Ur[k],2)}, {v(vT2)} offset:{C0 + 32 + 512*k}")
    lh1 = A.newlabel("L_c_e1"); lj = A.newlabel("L_c_ej")
    A(f"s_cmp_eq_u32 {sHF}, 1")
    A.fence()
    A(f"s_cbranch_scc1 {lh1}")
    for k in range(4):
        A(f"ds_write_b128 {v(vX)}, {v(ACC[4+k],4)} offset:{1024*k}")
    A(f"s_branch {lj}")
    A.label(lh1)
    for k in range(4):
        A(f"ds_write_b128 {v(vX)}, {v(ACC[k],4)} offset:{1024*k}")
    A("s_waitcnt lgkmcnt(0)")
    for k in range(4):
        for j in range(2):
            A(f"v_pk_mov_b32 {v(ACC[k]+2*j,2)}, {v(ACC[4+k]+2*j,2)}, {v(ACC[4+k]+2*j,2)} op_sel:[0,1]")
    A.label(lj)
    A("s_waitcnt lgkmcnt(0)")
    A("s_barrier")
    for k in range(4):
        A(f"ds_read_b128 {v(Xr[k],4)}, {v(vXp)} offset:{1024*k}")
    DS2 = R.alloc(2, 2)
    A(f"v_mov_b32 {v(DS2)}, {v(vDSK)}")
    A(f"v_mov_b32 {v(DS2+1)}, {v(vDSK)}")
    T4 = [KS[4], KS[5]]
    for k in range(4):
        t = T4[k & 1]; u = Ur[k]; x = Xr[k]
        A(f"v_lshlrev_b32 {v(t)}, 16, {v(u)}")
        A(f"v_and_b32 {v(t+1)}, 0xffff0000, {v(u)}")
        A(f"v_lshlrev_b32 {v(t+2)}, 16, {v(u+1)}")
        A(f"v_and_b32 {v(t+3)}, 0xffff0000, {v(u+1)}")
        A(f"v_pk_fma_f32 {v(t,2)}, {v(t,2)}, {v(DS2,2)}, {v(ACC[k],2)}")
        A(f"v_pk_fma_f32 {v(t+2,2)}, {v(t+2,2)}, {v(DS2,2)}, {v(ACC[k]+2,2)}")
        A(f"s_waitcnt lgkmcnt({3-k})")
        A(f"v_pk_add_f32 {v(x,2)}, {v(x,2)}, {v(t,2)}")
        A(f"v_pk_add_f32 {v(x+2,2)}, {v(x+2,2)}, {v(t+2,2)}")
        A(f"v_cvt_pk_bf16_f32 {v(u)}, {v(x)}, {v(x+1)}")
        A(f"v_cvt_pk_bf16_f32 {v(u+1)}, {v(x+2)}, {v(x+3)}")
        A(f"global_store_dwordx2 {v(vT)}, {v(u,2)}, s[50:51] offset:{WS_AT + 512*k} {sc}")


TP2_ROW = 336
GW = 176
def gen_tile_issue(A, rb, cb):
    A("s_load_dwordx2 s[56:57], s[0:1], 96")
    A("v_and_b32 v1, 63, v0")
    A(f"s_mul_i32 s31, {rb}, {128*1280}")
    A(f"s_mul_i32 s32, {cb}, 320")
    A("s_add_u32 s31, s31, s32")
    A("s_mul_i32 s33, s28, 672")
    A("s_lshl_b32 s34, s33, 4")
    for k in range(11):
        A("v_add_u32 v4, s33, v1")
        if k: A(f"v_add_u32 v4, {64*k}, v4")
        A("v_mul_u32_u24 v5, 3121, v4")
        A("v_lshrrev_b32 v5, 16, v5")
        A("v_mul_u32_u24 v6, 21, v5")
        A("v_sub_u32 v4, v4, v6")
        A("v_min_u32 v4, 19, v4")
        A("v_mul_u32_u24 v5, 1280, v5")
        A("v_lshl_add_u32 v5, v4, 4, v5")
        A(f"s_add_u32 m0, s34, {1024*k}")
        if k == 10: A("s_mov_b64 exec, 0xffffffff")
        A(f"buffer_load_dwordx4 v5, s[8:11], s31 offen lds")
        if k == 10: A("s_mov_b64 exec, -1")

def gen_gw_issue(A, cb):
    A(f"s_mul_i32 s32, {cb}, 320")
    A("v_and_b32 v175, 15, v0")
    A("v_lshl_add_u32 v175, v175, 1, s32")
    for k in range(10):
        A(f"global_load_ushort v{GW+2*k}, v175, s[56:57] offset:{32*k}")

def gen_tile_finish(A, rb, cb):
    from s4b import WS_G
    A("v_mbcnt_lo_u32_b32 v1, -1, 0")
    A("v_mbcnt_hi_u32_b32 v1, -1, v1")
    A("v_and_b32 v2, 15, v1")
    A("v_lshrrev_b32 v3, 4, v1")
    A("v_lshrrev_b32 v4, 2, v2")
    A("v_lshl_add_u32 v4, v3, 3, v4")
    A("s_lshl_b32 s32, s28, 5")
    A("v_add_u32 v4, s32, v4")
    A(f"v_mul_u32_u24 v4, {TP2_ROW}, v4")
    A("v_and_b32 v5, 3, v2")
    A("v_lshl_add_u32 v4, v5, 3, v4")
    A(f"s_mul_i32 s31, {cb}, {160*4096}")
    A(f"s_lshl_b32 s32, {rb}, 8")
    A("s_add_u32 s31, s31, s32")
    A("s_lshl_b32 s32, s28, 6")
    A("s_add_u32 s31, s31, s32")
    A(f"s_add_u32 s31, s31, {WS_UT}")
    A("v_lshlrev_b32 v5, 12, v2")
    A("v_lshl_add_u32 v5, v3, 4, v5")
    A("v_add_u32 v5, s31, v5")
    A("s_waitcnt vmcnt(0)")
    for k in range(10):
        A(f"ds_read_b64_tr_b16 v[{8+4*k}:{9+4*k}], v4 offset:{32*k}")
        A(f"ds_read_b64_tr_b16 v[{10+4*k}:{11+4*k}], v4 offset:{32*k + 4*TP2_ROW}")
    for k in range(10):
        A(f"s_waitcnt lgkmcnt({min(15, 18-2*k)})")
        A(f"global_store_dwordx4 v5, v[{8+4*k}:{11+4*k}], s[50:51] sc0 sc1")
        if k < 9: A(f"v_add_u32 v5, {16*4096}, v5")
    for k in range(10):
        A(f"v_lshlrev_b32 v{GW+2*k}, 16, v{GW+2*k}")
    for k in range(10):
        for j in range(4):
            src = 8 + 4 * k + j
            t = 110 + 4 * (j & 1)
            A(f"v_lshlrev_b32 v{t}, 16, v{src}")
            A(f"v_and_b32 v{t+1}, 0xffff0000, v{src}")
            if k == 0:
                A(f"v_pk_mul_f32 v[{100+2*j}:{101+2*j}], v[{t}:{t+1}], v[{GW+2*k}:{GW+1+2*k}] op_sel:[0,0] op_sel_hi:[1,0]")
            else:
                A(f"v_pk_fma_f32 v[{100+2*j}:{101+2*j}], v[{t}:{t+1}], v[{GW+2*k}:{GW+1+2*k}], v[{100+2*j}:{101+2*j}] op_sel:[0,0,0] op_sel_hi:[1,0,1]")
    for op in ("quad_perm:[1,0,3,2]", "quad_perm:[2,3,0,1]", "row_half_mirror", "row_mirror"):
        for r in range(8):
            x = f"v{100+r}"
            A(f"v_add_f32_dpp {x}, {x}, {x} {op} row_mask:0xf bank_mask:0xf")
    A(f"s_lshl_b32 s31, {cb}, 13")
    A(f"s_lshl_b32 s32, {rb}, 9")
    A("s_add_u32 s31, s31, s32")
    A("s_lshl_b32 s32, s28, 7")
    A("s_add_u32 s31, s31, s32")
    A(f"s_add_u32 s31, s31, {WS_G}")
    A("v_lshl_add_u32 v5, v3, 5, s31")
    A("s_mov_b32 exec_lo, 0x00010001")
    A("s_mov_b32 exec_hi, 0x00010001")
    A("global_store_dwordx4 v5, v[100:103], s[50:51] sc0 sc1")
    A("global_store_dwordx4 v5, v[104:107], s[50:51] offset:16 sc0 sc1")
    A("s_mov_b64 exec, -1")
```

```python
import sys, os
AB = set(os.environ.get('AB', '').split(','))
from asmlib import *
TIMER = os.environ.get('TIMER', 's_memtime')
from s4 import v
import s4c, s4g, gemm3, final4, final5
from gemm import gen_zero
from s4b import WS_FLAG, WS_STAMP
import build8
from build3 import get_nonce, signal, F_KV, F_PQ, F_AT, F_G, SC, NAME
from build8 import gen_touch, gen_touch_wo
build8.F_G = WS_FLAG
make_wait = build8.make_wait
F_DUMMY = WS_FLAG + 0x3000

NWG = 256

def gen_touch_wo2(A, hj):
    A("s_mov_b32 s72, s12")
    A("s_mov_b32 s73, s13")
    A("s_mov_b32 s74, 819200")
    A("s_mov_b32 s75, 0x20000")
    A(f"s_lshl_b32 s29, {hj}, 8")
    A("v_add_u32 v249, s29, v0")
    A("v_lshlrev_b32 v249, 7, v249")
    for c in range(4):
        A(f"s_mov_b32 s29, {c*2048*128}")
        A(f"buffer_load_dword v{250+c}, v249, s[72:75], s29 offen")

def build(stamp=False, code_bytes=34000):
    A = Asm()
    A.raw(kernel_header(NAME))
    A(f"s_cmp_ge_u32 s2, {NWG}")
    A("s_cbranch_scc1 L_end")
    A("s_mov_b32 s93, 0")
    A("s_getpc_b64 s[76:77]")
    A("s_lshr_b32 s6, s2, 3")
    A("s_cmp_ge_u32 s6, 2")
    A("s_cbranch_scc1 L_nocp")
    A("s_lshl_b32 s6, s6, 15")
    A("v_lshlrev_b32 v250, 7, v0")
    A("v_add_u32 v250, s6, v250")
    A(f"v_min_u32 v250, {code_bytes}, v250")
    A("global_load_dword v251, v250, s[76:77]")
    A.label("L_nocp")
    s4g.gen_params1(A)
    A("s_and_b32 s5, s2, 7")
    A("s_lshr_b32 s6, s2, 3")
    A("s_mov_b32 s89, s5")
    A("s_mov_b32 s87, s6")
    A("s_cmp_lt_u32 s6, 8")
    A("s_cbranch_scc1 L_help")
    A("s_sub_u32 s6, s6, 8")
    A("s_and_b32 s7, s6, 3")
    A("s_lshr_b32 s4, s6, 2")
    A("s_lshr_b32 s3, s5, 1")
    A("s_lshl_b32 s3, s3, 2")
    A("s_add_u32 s3, s3, s7")
    A("s_and_b32 s5, s5, 1")
    if "mix" in AB:
        A("s_lshl_b32 s29, s5, 2")
        A("s_add_u32 s29, s29, s4")
        A("s_lshl_b32 s30, s5, 1")
        A("s_add_u32 s30, s30, s4")
        A("s_add_u32 s30, s30, 4")
        A("s_cmp_lt_u32 s4, 4")
        A("s_cselect_b32 s4, s29, s30")
    else:
        A("s_mul_i32 s5, s5, 6")
        A("s_add_u32 s4, s4, s5")
    A("s_mul_i32 s92, s3, 12")
    A("s_add_u32 s92, s92, s4")
    A("s_add_u32 s90, s92, 128")
    A("s_mov_b32 s91, 1")
    A("s_mov_b32 s84, 2")
    A(f"s_mov_b32 s85, {s4g.SB}")
    def pre(pdma):
        s4g.gen_params2(A, "s90")
        if "t24" in AB:
            gen_touch(A, "s89", "s6", rounds=3, stride=6144)
            s4g.gen_kgen(A, "s90", lambda: A("s_waitcnt vmcnt(3)"))
        else:
            gen_touch(A, "s89", "s87")
            s4g.gen_kgen(A, "s90", lambda: A("s_waitcnt vmcnt(2)"))
    nv1, lds1 = gemm3.gen_gemm(A, "s3", "s4", sc=SC, stamp_task="s92" if stamp else None, pre=pre,
                               post=lambda: s4g.gen_flag_issue(A, "s90"), post2=lambda n: s4g.gen_flag_check(A, n))
    A("s_lshl_b32 s88, s3, 3")
    A("s_add_u32 s88, s88, s4")
    A("s_lshl_b32 s88, s88, 2")
    A(f"s_add_u32 s88, s88, {F_KV}")
    A("s_lshl_b32 s30, s3, 2")
    A("s_add_u32 s30, s30, s4")
    A("s_lshl_b32 s30, s30, 2")
    A(f"s_add_u32 s30, s30, {F_PQ - 32}")
    A("s_cmp_ge_u32 s4, 8")
    A("s_cselect_b32 s88, s30, s88")
    A.fence()
    A("s_branch L_conv")
    A.label("L_help")
    if stamp: A(f"{TIMER} s[64:65]")
    A("s_load_dwordx2 s[8:9], s[0:1], 0")
    A("s_load_dwordx2 s[12:13], s[0:1], 80")
    A("s_load_dwordx4 s[48:51], s[0:1], 112")
    A("v_lshrrev_b32 v1, 6, v0")
    A("v_readfirstlane_b32 s28, v1")
    A("s_lshl_b32 s3, s6, 3")
    A("s_add_u32 s3, s3, s5")
    A("s_lshl_b32 s90, s3, 1")
    A("s_add_u32 s90, s90, 1")
    A("s_mov_b32 s91, 2")
    A(f"s_mov_b32 s85, {s4g.SB}")
    A("s_mov_b32 s84, 0")
    A("s_lshr_b32 s86, s5, 1")
    A("s_lshl_b32 s86, s86, 2")
    A("s_lshr_b32 s29, s6, 1")
    A("s_add_u32 s86, s86, s29")
    A("s_and_b32 s83, s5, 1")
    A("s_lshl_b32 s83, s83, 1")
    A("s_and_b32 s29, s6, 1")
    A("s_add_u32 s83, s83, s29")
    A("s_waitcnt lgkmcnt(0)")
    A(f"""
    s_mov_b32 s10, 2621440
    s_mov_b32 s11, 0x20000
    s_mov_b32 s14, 2457600
    s_mov_b32 s15, 0x20000
    """)
    A("s_cmp_lg_u32 s3, 0")
    A("s_cbranch_scc1 L_pf")
    s4c.gen_nonce(A)
    A.label("L_pf")
    s4g.gen_params2(A, "s90")
    A("s_sub_u32 s29, s90, 1")
    s4g.gen_params2(A, "s29", PREG=list(range(224, 232)))
    s4g.gen_tile_issue(A, "s86", "s83")
    A("s_waitcnt vmcnt(19) lgkmcnt(0)")
    A.label("L_kg")
    def kg_hook0():
        l = A.newlabel("L_kh0"); l2 = A.newlabel("L_kh1")
        A("s_cmp_eq_u32 s84, 1")
        A(f"s_cbranch_scc1 {l}")
        s4g.gen_gw_issue(A, "s83")
        if "t24" not in AB: gen_touch(A, "s89", "s87", rb=204)
        A(f"s_branch {l2}")
        A.label(l)
        signal(A, "s88", 204, 205)
        A.label(l2)
    def kg_hook():
        l = A.newlabel("L_kh")
        A("s_cmp_eq_u32 s84, 0")
        A(f"s_cbranch_scc1 {l}")
        s4g.gen_flag_issue(A, "s90")
        A.label(l)
    s4g.gen_kgen(A, "s90", lambda: None, hook=kg_hook, hook0=kg_hook0)
    A("s_cmp_eq_u32 s84, 1")
    A("s_cbranch_scc1 L_kdone")
    if stamp: A(f"{TIMER} s[66:67]")
    s4g.gen_tile_finish(A, "s86", "s83")
    if stamp: A(f"{TIMER} s[68:69]")
    A("s_lshl_b32 s88, s83, 6")
    A("s_lshl_b32 s30, s86, 2")
    A("s_add_u32 s88, s88, s30")
    A(f"s_add_u32 s88, s88, {WS_FLAG}")
    if stamp: A(f"{TIMER} s[70:71]")
    A("v_mov_b32 v223, v239")
    for k in range(8): A(f"v_mov_b32 v{232+k}, v{224+k}")
    A("s_sub_u32 s90, s90, 1")
    A(f"s_mov_b32 s85, {s4g.SB2}")
    A("s_mov_b32 s84, 1")
    A("s_branch L_kg")
    A.label("L_kdone")
    if stamp:
        A(f"{TIMER} s[72:73]")
        A("s_waitcnt lgkmcnt(0)")
        A(f"s_lshl_b32 s36, s90, 3")
        A(f"s_add_u32 s36, s36, s28")
        A(f"s_lshl_b32 s36, s36, 6")
        A(f"s_add_u32 s36, s36, {WS_STAMP + 0x200000 + 32}")
        A(f"v_mov_b32 v1, s36")
        for k in range(5):
            A(f"v_mov_b32 v2, s{64+2*k}")
            A(f"global_store_dword v1, v2, s[50:51] offset:{4*k}")
    A(f"s_mov_b32 s88, {F_DUMMY}")
    A("s_cmp_lg_u32 s3, 63")
    A("s_cbranch_scc1 L_nz")
    gen_zero(A)
    A.label("L_nz")
    s4g.gen_flag_check(A, 0)
    A.label("L_conv")
    stamps = []
    def cstamp():
        k = len(stamps); stamps.append(k)
        A(f"{TIMER} s[{64+2*k}:{65+2*k}]")
        A("s_waitcnt lgkmcnt(0)")
    if stamp: cstamp()
    def extra(T):
        def first():
            l0 = A.newlabel("L_wot")
            A("s_cmp_lg_u32 s91, 2")
            A(f"s_cbranch_scc1 {l0}")
            A(f"v_add_u32 v{s4g.vUA}, 8192, v{s4g.vUA}")
            s4g.ut_loads(A)
            gen_touch_wo2(A, "s87")
            A.label(l0)
        A("s_lshr_b32 s29, s2, 3")
        A("s_and_b32 s83, s29, 7")
        ops = final4.gen_wdma(A, "s83", T)
        def guard(f):
            def g():
                l = A.newlabel("L_wg")
                A("s_cmp_lg_u32 s91, 1")
                A(f"s_cbranch_scc1 {l}")
                f()
                A.label(l)
            return g
        return [first] + [guard(f) for f in ops]
    s4g.gen_conv(A, sc=SC, sig=lambda va, vb: signal(A, "s88", va, vb, have_nonce=True), extra=extra, stamp=cstamp if stamp else None,
                 after_mfma=lambda: final5.gen_kvpq_issue(A))
    if stamp:
        cstamp()
        A(f"s_lshl_b32 s36, s90, 3")
        A(f"s_add_u32 s36, s36, s28")
        A(f"s_lshl_b32 s36, s36, 6")
        A(f"s_add_u32 s36, s36, {WS_STAMP + 0x200000}")
        A(f"v_mov_b32 v1, s36")
        for k in stamps:
            A(f"v_mov_b32 v2, s{64+2*k}")
            A(f"global_store_dword v1, v2, s[50:51] offset:{4*k}")
    A("s_lshl_b32 s88, s90, 2")
    A(f"s_add_u32 s88, s88, {F_AT}")
    A("s_add_u32 s90, s90, 1")
    A("s_sub_u32 s91, s91, 1")
    A("s_cmp_eq_u32 s91, 0")
    A("s_cbranch_scc1 L_final")
    A("v_mov_b32 v239, v223")
    A(f"s_mov_b32 s85, {s4g.SB}")
    s4g.setup_sregs(A, "s90")
    A("s_branch L_conv")
    A.label("L_final")
    A("v_mbcnt_lo_u32_b32 v0, -1, 0")
    A("v_mbcnt_hi_u32_b32 v0, -1, v0")
    A("s_lshl_b32 s29, s28, 6")
    A("v_add_u32 v0, s29, v0")
    A("s_and_b32 s5, s2, 7")
    A("s_lshr_b32 s6, s2, 3")
    A("s_lshr_b32 s3, s6, 3")
    A("s_lshl_b32 s5, s5, 2")
    A("s_add_u32 s3, s3, s5")
    A("s_and_b32 s4, s6, 7")
    nv4 = final5.gen_final(A, "s3", "s4", nlater=4, stamp_task="s2" if stamp else None)
    A.label("L_end")
    A("s_endpgm")
    lds = 163840
    hdr = open("gated_mix__ssm_conv_s4__linear_attn_block__prompt.s.ref").read().split("; Override launch geometry")[0]
    out = hdr
    out += f"; @launch grid=({NWG},1,1) block=(256,1,1) lds={lds}\n"
    out += '.amdgcn_target "amdgcn-amd-amdhsa--gfx950"\n.text\n' + A.text()
    out += '.section .rodata,"a"\n' + kernel_desc(NAME, 256, 102, agpr=final4.NAG)
    print("vgpr", nv1, nv4, "lines", len(A.lines))
    return out

if __name__ == "__main__":
    open(sys.argv[1], "w").write(build(len(sys.argv) > 2))
```
